```python
import torch

def _softmax(x, axis=-1):
    return torch.softmax(x, dim=axis)
def _gelu(x):
    return torch.nn.functional.gelu(x, approximate="tanh")
def _silu(x):
    return torch.nn.functional.silu(x)
def _sigmoid(x):
    return torch.sigmoid(x)
def _layernorm(x, axis=-1, eps=1e-5):
    m = x.mean(dim=axis, keepdim=True)
    v = x.var(dim=axis, keepdim=True, unbiased=False)
    return (x - m) / torch.sqrt(v + eps)
def _scatter_add(tgt, idx, src, axis=0):
    return tgt.clone().index_add_(axis, idx, src)
def _segment_sum(src, seg, n):
    out = torch.zeros((n,) + src.shape[1:], dtype=src.dtype)
    return out.index_add_(0, seg, src)
def _pad(x, pw):
    flat = tuple(v for pair in reversed(pw) for v in pair)
    return torch.nn.functional.pad(x, flat)

kernel_name = 'parallel_sum__linear_kernel_hedgehog__dense_activation_squared_relu__prompt'

def setup_inputs():

    _w = (lambda a: (lambda t: t.to(torch.bfloat16) if t.is_floating_point() else t)(torch.as_tensor(a)))
    def _A_setup():
        B, S, D, H = 1, 2048, 512, 32
        Dh = D // H
        return {
            "x": _w((lambda *s: torch.randn(*s, dtype=torch.bfloat16) * 0.05)(B, S, D)),
            "wqkv": _w((lambda *s: torch.randn(*s, dtype=torch.bfloat16) * 0.8)(D, 3 * D)),
            "w_phi": _w((lambda *s: torch.randn(*s, dtype=torch.bfloat16) * 0.8)(H, Dh, Dh) * (Dh ** -0.5)),
            "wo": _w((lambda *s: torch.randn(*s, dtype=torch.bfloat16) * 0.2)(D, D)),
        }
    _A_in = _A_setup()

    def _B_setup():
        B, S, D, F = 1, 2048, 512, 1792
        return {
            "x": _w((lambda *s: torch.randn(*s, dtype=torch.bfloat16) * 0.05)(B, S, D)),
            "w1": _w((lambda *s: torch.randn(*s, dtype=torch.bfloat16) * 0.05)(D, F)),
            "b1": _w((lambda *s: torch.randn(*s, dtype=torch.bfloat16) * 0.4)(F)),
            "w2": _w((lambda *s: torch.randn(*s, dtype=torch.bfloat16) * 0.05)(F, D)),
            "b2": _w((lambda *s: torch.randn(*s, dtype=torch.bfloat16) * 3.2)(D)),
        }
    _B_in = _B_setup()

    return {
        "A_x": _A_in["x"],
        "A_wqkv": _A_in["wqkv"],
        "A_w_phi": _A_in["w_phi"],
        "A_wo": _A_in["wo"],
        "B_x": _B_in["x"],
        "B_w1": _B_in["w1"],
        "B_b1": _B_in["b1"],
        "B_w2": _B_in["w2"],
        "B_b2": _B_in["b2"],
    }

def reference(A_x, A_wqkv, A_w_phi, A_wo, B_x, B_w1, B_b1, B_w2, B_b2):
    def _A_ref(x, wqkv, w_phi, wo):
        B, S, D = x.shape
        H = 32; Dh = D // H
        qkv = (lambda x, *d: x.permute(*d))((x @ wqkv).reshape(B, S, 3, H, Dh), 2, 0, 3, 1, 4)
        q, k, v = qkv[0], qkv[1], qkv[2]
        pq = torch.einsum("bhsd,hdf->bhsf", q, w_phi)
        pk = torch.einsum("bhsd,hdf->bhsf", k, w_phi)
        phi_q = torch.concatenate([_softmax(pq, axis=-1), _softmax(-pq, axis=-1)], axis=-1)
        phi_k = torch.concatenate([_softmax(pk, axis=-1), _softmax(-pk, axis=-1)], axis=-1)
        kv = torch.einsum("bhsf,bhsd->bhfd", phi_k, v)
        z  = torch.einsum("bhsf->bhf", phi_k)
        num = torch.einsum("bhqf,bhfd->bhqd", phi_q, kv)
        den = torch.einsum("bhqf,bhf->bhq", phi_q, z)[..., None] + 1e-6
        o = num / den
        return (lambda x, *d: x.permute(*d))(o, 0, 2, 1, 3).reshape(B, S, D) @ wo

    def _B_ref(x, w1, b1, w2, b2):
        h = torch.einsum("bsd,df->bsf", x, w1) + b1
        zero = torch.zeros_like(h)
        r = torch.where(h > zero, h, zero)
        h = r * r
        out = torch.einsum("bsf,fd->bsd", h, w2) + b2
        return out

    x = A_x
    xn = _layernorm(x, axis=-1)
    return x + _A_ref(xn, A_wqkv, A_w_phi, A_wo) + _B_ref(xn, B_w1, B_b1, B_w2, B_b2)
```

```python
import re

def regs(s):
    s = s.strip()
    s = s.lstrip('-')
    m = re.fullmatch(r'abs\((.*)\)', s)
    if m: s = m.group(1)
    m = re.fullmatch(r'\|(.*)\|', s)
    if m: s = m.group(1)
    m = re.fullmatch(r'([vsa])(\d+)', s)
    if m: return {m.group(1) + m.group(2)}
    m = re.fullmatch(r'([vsa])\[(\d+):(\d+)\]', s)
    if m: return {m.group(1) + str(i) for i in range(int(m.group(2)), int(m.group(3)) + 1)}
    if s in ('vcc', 'exec', 'm0', 'scc'): return {s}
    if s in ('vcc_lo', 'vcc_hi'): return {'vcc'}
    if s in ('exec_lo', 'exec_hi'): return {'exec'}
    return set()

def v(i, n=1):
    return f"v{i}" if n == 1 else f"v[{i}:{i+n-1}]"
def ag(i, n=1):
    return f"a{i}" if n == 1 else f"a[{i}:{i+n-1}]"
def s(i, n=1):
    return f"s{i}" if n == 1 else f"s[{i}:{i+n-1}]"

TRANS = ('v_exp_f32', 'v_log_f32', 'v_rcp_f32', 'v_rsq_f32', 'v_sqrt_f32', 'v_sin_f32', 'v_cos_f32')

class Ins:
    __slots__ = ('kind', 'w', 'r', 'rc', 'rab', 'passes', 'text', 'dpp', 'trans', 'ws', 'wide_store', 'op')
    def __init__(self, **k):
        self.kind = k.get('kind'); self.w = k.get('w', set()); self.r = k.get('r', set())
        self.rc = k.get('rc', set()); self.rab = k.get('rab', set()); self.passes = k.get('passes', 0)
        self.text = k.get('text'); self.dpp = k.get('dpp', False); self.trans = k.get('trans', False)
        self.ws = k.get('ws', 1); self.wide_store = k.get('wide_store', set()); self.op = k.get('op', '')

def need(p, c):
    n = 0
    pv = {x for x in p.w if x[0] in 'va'}
    ps = {x for x in p.w if x[0] == 's' or x in ('vcc',)}
    if p.kind == 'valu':
        if c.kind == 'mfma' and pv & (c.rab | c.rc): n = max(n, 2)
        if c.kind == 'valu':
            if c.dpp and pv & c.r: n = max(n, 2)
            if c.op.startswith('v_permlane') and pv & c.r: n = max(n, 2)
            if c.op.startswith(('v_readlane', 'v_readfirstlane')) and pv & c.r: n = max(n, 1)
            if p.trans and not c.trans and pv & c.r: n = max(n, 1)
            if ps & c.r: n = max(n, 4 if c.op.startswith(('v_readlane', 'v_writelane', 'v_div_fmas')) else 2)
            if 'exec' in p.w: n = max(n, 5 if c.dpp else 4)
        if c.kind in ('vmem',) and ps & c.r: n = max(n, 5)
        if c.kind == 'mfma' and 'exec' in p.w: n = max(n, 4)
        if c.kind == 'salu' and ps & c.r: n = max(n, 1)
    if p.kind == 'mfma':
        P = p.passes
        tbl_c = {2: 4, 4: 6, 8: 10, 16: 18}; tbl = {2: 5, 4: 8, 8: 12, 16: 20}; tbl_war = {2: 1, 4: 3, 8: 7, 16: 15}
        if c.kind == 'mfma':
            if pv & c.rab: n = max(n, tbl[P])
            if pv & c.rc:
                if pv == c.rc and c.passes == P: n = max(n, 2 if P == 2 else 0)
                else: n = max(n, tbl_c[P])
            elif pv & c.w: n = max(n, tbl_c[P])
        elif c.kind in ('valu', 'vmem', 'ds'):
            if pv & (c.r | c.w): n = max(n, tbl[P])
            if c.kind == 'valu' and p.rc & c.w: n = max(n, tbl_war[P])
    if p.kind == 'salu':
        if 'm0' in p.w and 'm0' in c.r: n = max(n, 1)
    if p.wide_store and (p.wide_store & c.w): n = max(n, 2)
    return n

class Asm:
    def __init__(self):
        self.lines = []; self.hist = []
        self.nins = 0
    def raw(self, text):
        self.lines.append(text)
    def comment(self, t): self.lines.append("    ; " + t)
    def label(self, l):
        self.lines.append(l + ":")
    def fence(self):
        self._emit(Ins(kind='nop', text='s_nop 15', ws=16), check=False)
        self._emit(Ins(kind='nop', text='s_nop 3', ws=4), check=False)
    def _emit(self, ins, check=True):
        if check:
            dist = 0; req = 0
            for p in reversed(self.hist):
                r = need(p, ins)
                if r > dist: req = max(req, r - dist)
                dist += p.ws
                if dist > 24: break
            while req > 0:
                k = min(req, 16)
                nop = Ins(kind='nop', text=f's_nop {k-1}', ws=k)
                self.lines.append("    " + nop.text); self.hist.append(nop); req -= k; self.nins += 1
        self.lines.append("    " + ins.text); self.hist.append(ins); self.nins += 1
        if len(self.hist) > 64: self.hist = self.hist[-40:]
    def valu(self, op, dst, *srcs, mod="", rmw=False, extra_w=(), extra_r=()):
        w = regs(dst); r = set()
        for x in srcs: r |= regs(str(x))
        if rmw or op.startswith(('v_fmac', 'v_permlane', 'v_dot2c')) or 'row_' in mod or 'quad_perm' in mod: r |= w
        if op.startswith('v_permlane'):
            w |= regs(str(srcs[0]))
        for x in extra_w: w |= regs(x)
        for x in extra_r: r |= regs(x)
        if op.startswith('v_cndmask') and len(srcs) == 2: r |= {'vcc'}
        if op.startswith('v_cmpx'): w |= {'exec'}
        dpp = ('row_' in mod or 'quad_perm' in mod)
        t = f"{op} {dst}, " + ", ".join(str(x) for x in srcs) + ((" " + mod) if mod else "")
        self._emit(Ins(kind='valu', w=w, r=r, text=t, dpp=dpp, trans=op.startswith(TRANS), op=op))
    def salu(self, op, dst, *srcs, extra_w=(), extra_r=()):
        w = regs(dst) if dst is not None else set(); r = set()
        for x in srcs: r |= regs(str(x))
        for x in extra_w: w |= regs(x)
        for x in extra_r: r |= regs(x)
        ops = ([dst] if dst is not None else []) + [str(x) for x in srcs]
        self._emit(Ins(kind='salu', w=w, r=r, text=f"{op} " + ", ".join(ops), op=op))
    def scmp(self, op, a, b):
        self._emit(Ins(kind='salu', w={'scc'}, r=regs(str(a)) | regs(str(b)), text=f"{op} {a}, {b}", op=op))
    def mfma(self, d, a, b, c, op='v_mfma_f32_16x16x32_bf16'):
        passes = 8 if '32x32' in op else 4
        self._emit(Ins(kind='mfma', w=regs(d), r=regs(a) | regs(b) | regs(str(c)), rab=regs(a) | regs(b), rc=regs(str(c)), passes=passes,
                       text=f"{op} {d}, {a}, {b}, {c}", op=op))
    def ds_read(self, op, dst, addr, offset=0):
        assert 0 <= offset < 65536, offset
        self._emit(Ins(kind='ds', w=regs(dst), r=regs(addr), text=f"{op} {dst}, {addr}" + (f" offset:{offset}" if offset else ""), op=op))
    def ds_write(self, op, addr, src, offset=0):
        assert 0 <= offset < 65536, offset
        self._emit(Ins(kind='ds', r=regs(addr) | regs(src), text=f"{op} {addr}, {src}" + (f" offset:{offset}" if offset else ""), op=op))
    def bload(self, op, dst, voff, srd, soff=0, offset=0, flags=""):
        assert 0 <= offset < 4096, offset
        r = regs(voff) | regs(srd) | regs(str(soff))
        if 'd16' in op: r |= regs(dst)
        self._emit(Ins(kind='vmem', w=regs(dst), r=r,
                       text=f"{op} {dst}, {voff}, {srd}, {soff} offen" + (f" offset:{offset}" if offset else "") + ((" " + flags) if flags else ""), op=op))
    def bload_lds(self, voff, srd, soff=0, flags="", op="buffer_load_dwordx4"):
        self._emit(Ins(kind='vmem', r=regs(voff) | regs(srd) | regs(str(soff)) | {'m0'},
                       text=f"{op} {voff}, {srd}, {soff} offen" + ((" " + flags) if flags else "") + " lds", op=op))
    def bstore(self, op, src, voff, srd, soff=0, offset=0, flags=""):
        assert 0 <= offset < 4096, offset
        ws = regs(src) if ('x4' in op or 'x3' in op) else set()
        self._emit(Ins(kind='vmem', r=regs(src) | regs(voff) | regs(srd) | regs(str(soff)), wide_store=ws,
                       text=f"{op} {src}, {voff}, {srd}, {soff} offen" + (f" offset:{offset}" if offset else "") + ((" " + flags) if flags else ""), op=op))
    def other(self, text, ws=1):
        self._emit(Ins(kind='other', text=text, ws=ws), check=False)
    def waitcnt(self, vm=None, lgkm=None):
        t = "s_waitcnt" + (f" vmcnt({vm})" if vm is not None else "") + (f" lgkmcnt({lgkm})" if lgkm is not None else "")
        assert vm is None or 0 <= vm <= 63, vm
        assert lgkm is None or 0 <= lgkm <= 15, lgkm
        self.other(t)
    def barrier(self): self.other("s_barrier")
    def nop(self, n): self._emit(Ins(kind='nop', text=f's_nop {n-1}', ws=n), check=False)
    def text(self): return "\n".join(self.lines) + "\n"

def kernel_header(name):
    return f".globl {name}\n.p2align 8\n.type {name},@function\n{name}:\n"
def kernel_desc(name, vgpr, sgpr=102):
    acc = min(256, (vgpr + 3) // 4 * 4)
    return (f".amdhsa_kernel {name}\n  .amdhsa_next_free_vgpr {vgpr}\n  .amdhsa_next_free_sgpr {sgpr}\n  .amdhsa_accum_offset {acc}\n"
            "  .amdhsa_group_segment_fixed_size 0\n  .amdhsa_kernarg_size 96\n  .amdhsa_user_sgpr_count 2\n"
            "  .amdhsa_user_sgpr_kernarg_segment_ptr 1\n  .amdhsa_system_sgpr_workgroup_id_x 1\n"
            "  .amdhsa_float_denorm_mode_32 3\n  .amdhsa_float_denorm_mode_16_64 3\n.end_amdhsa_kernel\n")
```

```python
import sys
from asmlib import *
STAMPS = '--stamps' in sys.argv
NAME = "parallel_sum__linear_kernel_hedgehog__dense_activation_squared_relu__prompt"
AWS = 0; PHIQ = 0x1000000; ACC = 0x1800000; WS_BYTES = 0x2000000; STAMP_OFF = 0x8000000
L2E = 0x3fb8aa3b
DPPM = "row_mask:0xf bank_mask:0xf"

class VM:
    def __init__(self): self.q = []
    def add(self, tag, n=1): self.q += [tag] * n
    def need(self, *tags):
        last = -1
        for i, t in enumerate(self.q):
            if t in tags: last = i
        return len(self.q) - 1 - last if last >= 0 else 63

def srd(a, d, base, nbytes):
    a.salu('s_mov_b32', s(d), s(base)); a.salu('s_and_b32', s(d+1), s(base+1), 0xffff)
    a.salu('s_mov_b32', s(d+2), hex(nbytes)); a.salu('s_mov_b32', s(d+3), '0x00020000')

def rbf_pairs(a, vals, tmp):
    for i in range(0, len(vals), 2):
        a.valu('v_cvt_pk_bf16_f32', v(tmp[i//2]), v(vals[i]), v(vals[i+1]))
    for i in range(0, len(vals), 2):
        a.valu('v_lshlrev_b32', v(vals[i]), 16, v(tmp[i//2]))
        a.valu('v_and_b32', v(vals[i+1]), '0xffff0000', v(tmp[i//2]))

class Stamper:
    def __init__(self, a, vm, kidx, srdreg, vtmp, stmp, wave_sreg):
        self.a, self.vm, self.k, self.srd, self.vt, self.st, self.w = a, vm, kidx, srdreg, vtmp, stmp, wave_sreg
        self.n = 0
    def setup(self, wsbase):
        if not STAMPS: return
        a = self.a
        a.salu('s_add_u32', s(self.srd), s(wsbase), hex(STAMP_OFF + self.k * 0x100000)); a.salu('s_addc_u32', s(self.srd+1), s(wsbase+1), 0)
        a.salu('s_and_b32', s(self.srd+1), s(self.srd+1), 0xffff)
        a.salu('s_mov_b32', s(self.srd+2), '0x100000'); a.salu('s_mov_b32', s(self.srd+3), '0x00020000')
    def stamp(self):
        if not STAMPS: return
        a = self.a; st = self.st; vt = self.vt
        a.other(f"s_memrealtime {s(st,2)}")
        a.salu('s_lshl_b32', s(st+2), s(self.w), 15); a.salu('s_lshl_b32', s(st+3), 's2', 7); a.salu('s_add_u32', s(st+2), s(st+2), s(st+3))
        a.waitcnt(lgkm=0)
        a.valu('v_mov_b32', v(vt), s(st)); a.valu('v_mov_b32', v(vt+1), s(st+1)); a.valu('v_mov_b32', v(vt+2), 0)
        a.salu('s_mov_b64', 'exec', 1)
        a.bstore('buffer_store_dwordx2', v(vt, 2), v(vt+2), s(self.srd, 4), s(st+2), offset=self.n * 8)
        a.salu('s_mov_b64', 'exec', -1)
        self.vm.add('stamp'); self.n += 1

def gen_k1():
    a = Asm(); vm = VM()
    kn = "k1_kernel"
    a.raw(kernel_header(kn))
    S_X, S_WQ, S_W1, S_WP, S_B1, S_WS, S_DBG, S_ST = 20, 24, 28, 32, 36, 40, 44, 96
    sR, sC, sW, sROT, sWK, sTH, sCQ, sPB = 48, 49, 50, 51, 52, 53, 54, 55
    T1, T2 = 60, 76
    st0 = 92
    a.scmp('s_cmp_ge_u32', 's2', 256); a.other("s_cbranch_scc1 L_k1_end")
    for d, off in ((4, 0), (6, 8), (8, 16), (10, 40), (12, 48), (14, 80), (16, 88)):
        a.other(f"s_load_dwordx2 {s(d,2)}, s[0:1], {off}")
    vL, vKV, vF, vQ, aK, aV, aF, aQ, vWP, vB1 = 1, 2, 3, 4, 5, 6, 7, 11, 12, 14
    vCUR = 22
    vFLAG = 28; vT0, vT1, vT2 = 29, 30, 31
    ACC0 = 32; ACCQ = 64; WF = 72; TMP = 104; XF = 128
    stp = Stamper(a, vm, 0, S_ST, TMP + 20, st0, sW)
    a.valu('v_lshrrev_b32', v(vT0), 6, 'v0'); a.valu('v_and_b32', v(vL), 63, 'v0')
    a.valu('v_readfirstlane_b32', s(sW), v(vT0))
    a.salu('s_and_b32', s(56), 's2', 7); a.salu('s_lshr_b32', s(57), 's2', 3)
    a.salu('s_lshr_b32', s(58), s(56), 1); a.salu('s_lshl_b32', s(58), s(58), 3); a.salu('s_lshr_b32', s(59), s(57), 2)
    a.salu('s_add_u32', s(sR), s(58), s(59))
    a.salu('s_and_b32', s(58), s(56), 1); a.salu('s_lshl_b32', s(58), s(58), 2); a.salu('s_and_b32', s(sC), s(57), 3)
    a.salu('s_add_u32', s(sC), s(sC), s(58))
    a.salu('s_lshl_b32', s(sROT), s(59), 1)
    a.salu('s_lshl_b32', s(sWK), s(sW), 10); a.salu('s_lshr_b32', s(sTH), s(sW), 2); a.salu('s_and_b32', s(sCQ), s(sW), 3)
    a.salu('s_lshl_b32', s(sPB), s(sCQ), 1); a.salu('s_min_u32', s(sPB), s(sPB), 5)
    for p in range(16):
        a.salu('s_add_u32', s(56), s(sROT), p); a.salu('s_and_b32', s(56), s(56), 15)
        a.salu('s_mul_i32', s(T1+p), s(56), 98304); a.salu('s_mul_i32', s(T2+p), s(56), 114688)
    a.waitcnt(lgkm=0)
    srd(a, S_X, 4, 2097152); srd(a, S_WQ, 6, 1572864); srd(a, S_W1, 10, 1835008); srd(a, S_WP, 8, 16384)
    srd(a, S_B1, 12, 3584); srd(a, S_WS, 16, WS_BYTES); srd(a, S_DBG, 14, 256)
    stp.setup(16); stp.stamp()
    a.valu('v_mov_b32', v(TMP), 0); a.valu('v_mov_b32', v(TMP+1), 0); a.valu('v_mov_b32', v(TMP+2), 0); a.valu('v_mov_b32', v(TMP+3), 0)
    a.valu('v_lshlrev_b32', v(vT0), 4, v(vL))
    a.salu('s_lshl_b32', s(56), s(sC), 14); a.salu('s_lshl_b32', s(57), s(sW), 11); a.salu('s_add_u32', s(56), s(56), s(57))
    a.salu('s_add_u32', s(56), s(56), hex(ACC))
    a.scmp('s_cmp_lg_u32', s(sR), 0); a.other("s_cbranch_scc1 L_k1_nozero")
    a.bstore('buffer_store_dwordx4', v(TMP, 4), v(vT0), s(S_WS, 4), s(56), flags="sc0 sc1")
    a.bstore('buffer_store_dwordx4', v(TMP, 4), v(vT0), s(S_WS, 4), s(56), offset=1024, flags="sc0 sc1")
    a.label("L_k1_nozero")
    a.valu('v_lshrrev_b32', v(vT0), 3, v(vL)); a.valu('v_and_b32', v(vT1), 7, v(vL))
    a.salu('s_lshl_b32', s(56), s(sR), 6); a.salu('s_lshl_b32', s(57), s(sW), 3); a.salu('s_add_u32', s(56), s(56), s(57))
    a.valu('v_add_u32', v(vT2), s(56), v(vT0)); a.valu('v_lshlrev_b32', v(vT2), 10, v(vT2)); a.valu('v_lshl_add_u32', v(vT2), v(vT1), 4, v(vT2))
    X = 32; F = 64
    a.salu('s_lshr_b32', s(57), s(sROT), 1)
    for j in range(8):
        a.salu('s_add_u32', s(58), s(57), j); a.salu('s_and_b32', s(58), s(58), 7); a.salu('s_lshl_b32', s(58), s(58), 7)
        a.bload('buffer_load_dwordx4', v(X+4*j, 4), v(vT2), s(S_X, 4), s(58)); vm.add('x')
    vXW = vCUR + 4
    a.salu('s_lshl_b32', s(57), s(sW), 3)
    a.valu('v_add_u32', v(vT0), s(57), v(vT0))
    a.valu('v_and_b32', v(vT2), 15, v(vT0)); a.valu('v_xor_b32', v(vT2), v(vT2), v(vT1)); a.valu('v_lshlrev_b32', v(vT2), 4, v(vT2))
    a.valu('v_lshl_add_u32', v(vXW), v(vT0), 10, v(vT2))
    vG, vI = TMP + 4, TMP + 5
    a.valu('v_lshrrev_b32', v(vG), 4, v(vL)); a.valu('v_and_b32', v(vI), 15, v(vL))
    a.salu('s_lshl_b32', s(56), s(sC), 2); a.salu('s_add_u32', s(56), s(56), s(sCQ)); a.salu('s_lshl_b32', s(56), s(56), 9)
    a.valu('v_lshlrev_b32', v(vT0), 7, v(vG)); a.valu('v_lshl_add_u32', v(vT0), v(vI), 1, v(vT0))
    vWPH = vFLAG
    a.bload('buffer_load_ushort', v(vWP), v(vT0), s(S_WP, 4), s(56), offset=0)
    a.bload('buffer_load_ushort', v(vFLAG), v(vT0), s(S_WP, 4), s(56), offset=32)
    a.bload('buffer_load_ushort', v(vWP+1), v(vT0), s(S_WP, 4), s(56), offset=64)
    a.bload('buffer_load_ushort', v(vCUR+3), v(vT0), s(S_WP, 4), s(56), offset=96); vm.add('small', 4)
    a.salu('s_mul_i32', s(56), s(sC), 448); a.salu('s_lshl_b32', s(57), s(sPB), 6); a.salu('s_add_u32', s(56), s(56), s(57))
    a.valu('v_lshlrev_b32', v(vT0), 3, v(vG))
    for i in range(4):
        a.bload('buffer_load_dwordx2', v(vB1+2*i, 2), v(vT0), s(S_B1, 4), s(56), offset=32*i); vm.add('small')
    a.salu('s_lshr_b32', s(56), s(sW), 1); a.salu('s_and_b32', s(56), s(56), 1); a.salu('s_lshl_b32', s(56), s(56), 3)
    a.valu('v_lshlrev_b32', v(vT0), 1, v(vG)); a.valu('v_or_b32', v(vT0), s(56), v(vT0)); a.valu('v_xor_b32', v(vT0), v(vT0), v(vI))
    a.valu('v_lshrrev_b32', v(vT1), 3, v(vT0)); a.valu('v_lshlrev_b32', v(vT1), 10, v(vT1))
    a.valu('v_and_b32', v(vT0), 7, v(vT0)); a.valu('v_lshl_add_u32', v(vT1), v(vT0), 4, v(vT1))
    a.salu('s_lshl_b32', s(56), s(sW), 2); a.valu('v_add_u32', v(vT0), s(56), v(vG))
    a.valu('v_mul_u32_u24', v(vT0), 3072, v(vT0)); a.valu('v_add_u32', v(vT1), v(vT1), v(vT0))
    a.salu('s_lshl_b32', s(56), s(sC), 7); a.salu('s_add_u32', s(56), s(56), 1024)
    a.valu('v_add_u32', v(vKV), s(56), v(vT1))
    a.valu('v_lshrrev_b32', v(vT0), 5, v(vL))
    a.salu('s_and_b32', s(56), s(sW), 1); a.salu('s_lshl_b32', s(56), s(56), 1); a.salu('s_and_b32', s(57), s(sW), 4); a.salu('s_or_b32', s(56), s(56), s(57))
    a.valu('v_or_b32', v(vT1), s(56), v(vT0)); a.valu('v_lshlrev_b32', v(vT1), 1, v(vT1))
    a.valu('v_and_b32', v(vT2), 31, v(vL)); a.valu('v_xor_b32', v(vT1), v(vT1), v(vT2)); a.valu('v_lshlrev_b32', v(vT1), 4, v(vT1))
    a.salu('s_lshl_b32', s(56), s(sW), 1); a.valu('v_add_u32', v(vT0), s(56), v(vT0)); a.valu('v_mul_u32_u24', v(vT0), 3584, v(vT0))
    a.valu('v_add_u32', v(vT1), v(vT1), v(vT0))
    a.salu('s_mul_i32', s(56), s(sC), 448); a.salu('s_and_b32', s(56), s(56), '0xffffff80')
    a.valu('v_add_u32', v(vF), s(56), v(vT1))
    a.valu('v_and_b32', v(vT0), 1, v(vG)); a.salu('s_and_b32', s(56), s(sW), 1); a.salu('s_lshl_b32', s(56), s(56), 1)
    a.valu('v_or_b32', v(vT0), s(56), v(vT0)); a.valu('v_lshlrev_b32', v(vT0), 1, v(vT0))
    a.valu('v_and_b32', v(vT1), 7, v(vL)); a.valu('v_xor_b32', v(vT1), v(vT1), v(vT0)); a.valu('v_lshlrev_b32', v(vT1), 4, v(vT1))
    a.valu('v_lshrrev_b32', v(vT0), 3, v(vL)); a.salu('s_lshl_b32', s(56), s(sCQ), 3); a.valu('v_add_u32', v(vT0), s(56), v(vT0))
    a.valu('v_mul_u32_u24', v(vT0), 3072, v(vT0)); a.valu('v_add_u32', v(vT1), v(vT1), v(vT0))
    a.salu('s_lshl_b32', s(56), s(sC), 7); a.valu('v_add_u32', v(vQ), s(56), v(vT1))
    NST = 28; NSLOT = 9; MISC = NSLOT * 16384
    slot = lambda i: (i + 4) % NSLOT
    def dma(i):
        if i >= NST: return
        for h in range(2):
            a.salu('s_add_u32', 'm0', s(sWK), hex(slot(i) * 16384 + h * 8192))
            if i < 8:
                a.bload_lds(v(vKV), s(S_WQ, 4), s(T1 + 2*i + h))
            elif i < 24:
                if h == 0: a.bload_lds(v(vF), s(S_W1, 4), s(T2 + i - 8))
                else:
                    a.salu('s_add_u32', s(56), s(T2 + i - 8), 16 * 3584); a.bload_lds(v(vF), s(S_W1, 4), s(56))
            else:
                j = i - 24
                a.salu('s_add_u32', s(56), s(sTH), s(sROT)); a.salu('s_add_u32', s(56), s(56), 4*j + 2*h); a.salu('s_and_b32', s(56), s(56), 15)
                a.salu('s_mul_i32', s(56), s(56), 98304); a.bload_lds(v(vQ), s(S_WQ, 4), s(56))
            vm.add(('st', i))
    for i in range(5): dma(i)
    vRR, vROW, vFS, vC8 = TMP + 6, TMP + 7, TMP + 8, TMP + 9
    a.valu('v_lshrrev_b32', v(vRR), 2, v(vI)); a.valu('v_lshl_add_u32', v(vROW), v(vG), 3, v(vRR))
    a.valu('v_and_b32', v(vT0), 1, v(vG)); a.valu('v_lshl_or_b32', v(vFS), v(vT0), 2, v(vRR))
    a.valu('v_and_b32', v(vC8), 3, v(vI)); a.valu('v_lshlrev_b32', v(vC8), 3, v(vC8))
    a.valu('v_xor_b32', v(vT1), s(sCQ), v(vFS)); a.valu('v_lshl_add_u32', v(vT1), v(vT1), 5, v(vC8)); a.valu('v_lshl_add_u32', v(aK), v(vROW), 8, v(vT1))
    a.valu('v_xor_b32', v(aV), 128, v(aK))
    a.salu('s_and_b32', s(56), s(sC), 1); a.salu('s_add_u32', s(56), s(56), s(sPB)); a.salu('s_lshl_b32', s(56), s(56), 1)
    for i in range(4):
        a.salu('s_add_u32', s(57), s(56), i)
        a.valu('v_xor_b32', v(vT1), s(57), v(vFS)); a.valu('v_lshl_add_u32', v(vT1), v(vT1), 5, v(vC8)); a.valu('v_lshl_add_u32', v(aF+i), v(vROW), 9, v(vT1))
    a.valu('v_lshrrev_b32', v(vT1), 1, v(vRR)); a.valu('v_lshl_or_b32', v(vT1), v(vT0), 1, v(vT1)); a.valu('v_xor_b32', v(vT1), s(sCQ), v(vT1))
    a.valu('v_lshl_add_u32', v(vT1), v(vT1), 5, v(vC8)); a.valu('v_lshl_add_u32', v(aQ), v(vROW), 7, v(vT1))
    vXR = vCUR + 5
    a.valu('v_xor_b32', v(vT1), v(vG), v(vI)); a.valu('v_lshlrev_b32', v(vT1), 4, v(vT1)); a.valu('v_lshl_add_u32', v(vT1), v(vI), 10, v(vT1))
    a.salu('s_lshl_b32', s(56), s(sTH), 15); a.valu('v_add_u32', v(vXR), s(56), v(vT1))
    a.waitcnt(vm=vm.need('x'))
    stp.stamp()
    for j in range(32):
        a.valu('v_lshlrev_b32', v(F+2*j), 16, v(X+j)); a.valu('v_and_b32', v(F+2*j+1), '0xffff0000', v(X+j))
    S0 = X
    for k in range(4): a.valu('v_add_f32', v(S0+k), v(F+k), v(F+4+k))
    for j in range(8, 64): a.valu('v_add_f32', v(S0+j%4), v(S0+j%4), v(F+j))
    a.valu('v_add_f32', v(S0), v(S0), v(S0+1)); a.valu('v_add_f32', v(S0+2), v(S0+2), v(S0+3)); a.valu('v_add_f32', v(S0), v(S0), v(S0+2))
    def red8(r):
        a.valu('v_add_f32_dpp', v(r), v(r), v(r), mod="quad_perm:[1,0,3,2] " + DPPM)
        a.valu('v_add_f32_dpp', v(r), v(r), v(r), mod="quad_perm:[2,3,0,1] " + DPPM)
        a.valu('v_add_f32_dpp', v(r), v(r), v(r), mod="row_half_mirror " + DPPM)
    red8(S0)
    vMEAN, vMB = S0 + 4, S0 + 5
    a.valu('v_mul_f32', v(vMEAN), '0x3b000000', v(S0))
    a.valu('v_cvt_pk_bf16_f32', v(vMB), v(vMEAN), v(vMEAN)); a.valu('v_lshlrev_b32', v(vMB), 16, v(vMB))
    for j in range(64): a.valu('v_sub_f32', v(F+j), v(F+j), v(vMB))
    for k in range(4): a.valu('v_mul_f32', v(S0+k), v(F+k), v(F+k))
    for j in range(4, 64): a.valu('v_fmac_f32', v(S0+j%4), v(F+j), v(F+j))
    a.valu('v_add_f32', v(S0), v(S0), v(S0+1)); a.valu('v_add_f32', v(S0+2), v(S0+2), v(S0+3)); a.valu('v_add_f32', v(S0), v(S0), v(S0+2))
    red8(S0)
    a.valu('v_sub_f32', v(vMEAN), v(vMEAN), v(vMB))
    a.valu('v_mul_f32', v(S0), '0x3b000000', v(S0))
    a.valu('v_fma_f32', v(S0), '-' + v(vMEAN), v(vMEAN), v(S0)); a.valu('v_max_f32', v(S0), 0, v(S0))
    a.valu('v_cvt_pk_bf16_f32', v(S0), v(S0), v(S0)); a.valu('v_lshlrev_b32', v(S0), 16, v(S0))
    a.valu('v_add_f32', v(S0), '0x3727c5ac', v(S0))
    a.valu('v_cvt_pk_bf16_f32', v(S0), v(S0), v(S0)); a.valu('v_lshlrev_b32', v(S0), 16, v(S0))
    a.valu('v_sqrt_f32', v(S0), v(S0))
    a.valu('v_cvt_pk_bf16_f32', v(S0), v(S0), v(S0)); a.valu('v_lshlrev_b32', v(S0), 16, v(S0))
    vRI = vT0
    a.valu('v_rcp_f32', v(vRI), v(S0))
    a.valu('v_fma_f32', v(vT1), '-' + v(S0), v(vRI), 1.0); a.valu('v_fma_f32', v(vRI), v(vT1), v(vRI), v(vRI))
    rbf_pairs(a, [F+j for j in range(64)], [X+j for j in range(32)])
    for j in range(64): a.valu('v_mul_f32', v(F+j), v(F+j), v(vRI))
    for j in range(32): a.valu('v_cvt_pk_bf16_f32', v(X+j), v(F+2*j), v(F+2*j+1))
    a.valu('v_xor_b32', v(vT1), 128, v(vXW))
    for j in range(8):
        a.ds_write('ds_write_b128', v(vXW if j % 2 == 0 else vT1), v(X+4*j, 4), offset=(j >> 1) * 256)
    a.waitcnt(vm=vm.need('small'))
    a.valu('v_lshl_or_b32', v(vWP), v(vFLAG), 16, v(vWP)); a.valu('v_lshl_or_b32', v(vWP+1), v(vCUR+3), 16, v(vWP+1))
    a.waitcnt(lgkm=0); a.barrier()
    stp.stamp()
    a.salu('s_or_b32', s(56), s(sR), s(sW)); a.scmp('s_cmp_lg_u32', s(56), 0); a.other("s_cbranch_scc1 L_k1_noflag")
    a.valu('v_mov_b32', v(vT0), 1); a.salu('s_lshl_b32', s(56), s(sC), 2); a.valu('v_mov_b32', v(vT1), s(56))
    a.salu('s_mov_b64', 'exec', 1)
    a.bstore('buffer_atomic_add', v(vT0), v(vT1), s(S_DBG, 4), 0, flags="sc1")
    a.salu('s_mov_b64', 'exec', -1)
    a.label("L_k1_noflag")
    for q4 in range(1, 4): a.valu('v_xor_b32', v(vCUR+q4-1), q4 << 6, v(vXR))
    for tb in range(2):
        for ks in range(16):
            base = vXR if ks % 4 == 0 else vCUR + ks % 4 - 1
            a.ds_read('ds_read_b128', v(XF + (tb*16+ks)*4, 4), v(base), offset=(ks >> 2) * 256 + tb * 16384)
    xf = lambda tb, ks: v(XF + (tb*16+ks)*4, 4)
    wf = lambda buf, i: v(WF + buf*16 + i*4, 4)
    started = set()
    def acc(d, A, B):
        c = d if d in started else 0
        started.add(d); a.mfma(d, A, B, c)
    accK = lambda tb: v(ACC0 + tb*4, 4); accV = lambda tb: v(ACC0 + 8 + tb*4, 4)
    accF = lambda i, tb: v(ACC0 + (i*2+tb)*4, 4); accQ = lambda tb: v(ACCQ + tb*4, 4)
    def reads(j):
        sb = slot(j) * 16384; buf = j & 1
        if j < 8: lst = [(aK, 0, 1024), (aV, 0, 1024), (aK, 8192, 1024), (aV, 8192, 1024)]; bases = [aK, aV]
        elif j < 24: lst = [(aF+i, 0, 2048) for i in range(4)]; bases = [aF+i for i in range(4)]
        else: lst = [(aQ, i*4096, 512) for i in range(4)]; bases = [aQ]
        hi = (sb // 49152) * 49152; lo = sb - hi
        cur = {}
        for n, b in enumerate(bases):
            if hi: a.valu('v_add_u32', v(vCUR+n), hex(hi), v(b)); cur[b] = vCUR + n
            else: cur[b] = b
        for i, (b, off, d2) in enumerate(lst):
            r0 = WF + buf*16 + i*4
            a.ds_read('ds_read_b64_tr_b16', v(r0, 2), v(cur[b]), offset=lo + off)
            a.ds_read('ds_read_b64_tr_b16', v(r0+2, 2), v(cur[b]), offset=lo + off + d2)
    def mfmas(j):
        buf = j & 1
        if j < 8:
            for h in range(2):
                for tb in range(2): acc(accK(tb), wf(buf, 2*h), xf(tb, 2*j+h))
                for tb in range(2): acc(accV(tb), xf(tb, 2*j+h), wf(buf, 2*h+1))
        elif j < 24:
            if j == 8: started.clear()
            for i in range(4):
                for tb in range(2): acc(accF(i, tb), wf(buf, i), xf(tb, j-8))
        else:
            for i in range(4):
                for tb in range(2): acc(accQ(tb), wf(buf, i), xf(tb, 4*(j-24)+i))
    KVP = TMP + 8
    def kv_epilogue():
        P = ACC0 + 16; MX = ACC0 + 24; MN = ACCQ; E2 = WF + 16; T = WF + 24
        KA = TMP; VB = TMP + 4
        for tb in range(2):
            for h in range(2): a.valu('v_cvt_pk_bf16_f32', v(KA+2*tb+h), v(ACC0+tb*4+2*h), v(ACC0+tb*4+2*h+1))
        for tb in range(2):
            for h in range(2): a.valu('v_cvt_pk_bf16_f32', v(VB+2*tb+h), v(ACC0+8+tb*4+2*h), v(ACC0+8+tb*4+2*h+1))
        a.waitcnt(vm=vm.need('small'))
        for tb in range(2): a.mfma(v(P+4*tb, 4), v(KA+2*tb, 2), v(vWP, 2), 0, op='v_mfma_f32_16x16x16_bf16')
        rbf_pairs(a, [P+i for i in range(8)], [T+i for i in range(4)])
        for i in range(8):
            a.valu('v_max_f32_dpp', v(MX+i), v(P+i), v(P+i), mod="row_ror:8 " + DPPM)
        for i in range(8):
            a.valu('v_min_f32_dpp', v(MN+i), v(P+i), v(P+i), mod="row_ror:8 " + DPPM)
        for sh in (4, 2, 1):
            for i in range(8): a.valu('v_max_f32_dpp', v(MX+i), v(MX+i), v(MX+i), mod=f"row_ror:{sh} " + DPPM)
            for i in range(8): a.valu('v_min_f32_dpp', v(MN+i), v(MN+i), v(MN+i), mod=f"row_ror:{sh} " + DPPM)
        for i in range(8): a.valu('v_sub_f32', v(MX+i), v(P+i), v(MX+i))
        for i in range(8): a.valu('v_sub_f32', v(MN+i), v(MN+i), v(P+i))
        for i in range(8): a.valu('v_mul_f32', v(MX+i), hex(L2E), v(MX+i))
        for i in range(8): a.valu('v_mul_f32', v(MN+i), hex(L2E), v(MN+i))
        for i in range(8): a.valu('v_exp_f32', v(MX+i), v(MX+i))
        for i in range(8): a.valu('v_exp_f32', v(MN+i), v(MN+i))
        for i in range(8): a.valu('v_add_f32_dpp', v(P+i), v(MX+i), v(MX+i), mod="row_ror:8 " + DPPM)
        for i in range(8): a.valu('v_add_f32_dpp', v(E2+i), v(MN+i), v(MN+i), mod="row_ror:8 " + DPPM)
        for sh in (4, 2, 1):
            for i in range(8): a.valu('v_add_f32_dpp', v(P+i), v(P+i), v(P+i), mod=f"row_ror:{sh} " + DPPM)
            for i in range(8): a.valu('v_add_f32_dpp', v(E2+i), v(E2+i), v(E2+i), mod=f"row_ror:{sh} " + DPPM)
        for i in range(8): a.valu('v_rcp_f32', v(P+i), v(P+i))
        for i in range(8): a.valu('v_rcp_f32', v(E2+i), v(E2+i))
        for i in range(8): a.valu('v_mul_f32', v(MX+i), v(MX+i), v(P+i))
        for i in range(8): a.valu('v_mul_f32', v(MN+i), v(MN+i), v(E2+i))
        PHP = T; PHM = T + 4; ONE = KA
        for i in range(4): a.valu('v_cvt_pk_bf16_f32', v(PHP+i), v(MX+2*i), v(MX+2*i+1))
        for i in range(4): a.valu('v_cvt_pk_bf16_f32', v(PHM+i), v(MN+2*i), v(MN+2*i+1))
        for i in range(4): a.valu('v_mov_b32', v(ONE+i), '0x3f803f80')
        a.mfma(v(KVP, 4), v(PHP, 4), v(VB, 4), 0); a.mfma(v(KVP+4, 4), v(PHM, 4), v(VB, 4), 0)
        a.mfma(v(P, 4), v(ONE, 4), v(PHP, 4), 0); a.mfma(v(P+4, 4), v(ONE, 4), v(PHM, 4), 0)
        a.valu('v_and_b32', v(vT0), 16, v(vL)); a.valu('v_cmp_ne_u32', 'vcc', 0, v(vT0))
        a.valu('v_cndmask_b32', v(KVP+8), v(P), v(P+4), 'vcc')
        a.valu('v_lshlrev_b32', v(vT0), 4, v(vL)); a.salu('s_mul_i32', s(56), s(sCQ), 3072); a.salu('s_add_u32', s(56), s(56), hex(MISC))
        a.valu('v_add_u32', v(vT2), s(56), v(vT0))
        a.scmp('s_cmp_eq_u32', s(sTH), 0); a.other("s_cbranch_scc1 L_k1_nopark")
        a.ds_write('ds_write_b128', v(vT2), v(KVP, 4)); a.ds_write('ds_write_b128', v(vT2), v(KVP+4, 4), offset=1024)
        a.ds_write('ds_write_b32', v(vT2), v(KVP+8), offset=2048)
        a.label("L_k1_nopark")
    def kv_publish():
        a.scmp('s_cmp_lg_u32', s(sTH), 0); a.other("s_cbranch_scc1 L_k1_nopub")
        Q = TMP
        a.ds_read('ds_read_b128', v(Q, 4), v(vT2)); a.ds_read('ds_read_b128', v(Q+4, 4), v(vT2), offset=1024)
        a.ds_read('ds_read_b32', v(vT0), v(vT2), offset=2048)
        a.waitcnt(vm=vm.need('flag'), lgkm=0)
        for i in range(8): a.valu('v_add_f32', v(KVP+i), v(KVP+i), v(Q+i))
        a.valu('v_add_f32', v(KVP+8), v(KVP+8), v(vT0))
        a.label("L_k1_poll")
        a.valu('v_readfirstlane_b32', s(56), v(vFLAG)); a.nop(2); a.scmp('s_cmp_lg_u32', s(56), 0); a.other("s_cbranch_scc1 L_k1_flagok")
        a.salu('s_lshl_b32', s(56), s(sC), 2); a.valu('v_mov_b32', v(vT0), s(56)); a.other("s_sleep 4")
        a.bload('buffer_load_dword', v(vFLAG), v(vT0), s(S_DBG, 4), 0, flags="sc0 sc1"); a.waitcnt(vm=0)
        a.other("s_branch L_k1_poll")
        a.label("L_k1_flagok")
        a.salu('s_lshl_b32', s(56), s(sC), 2); a.salu('s_add_u32', s(56), s(56), s(sCQ)); a.salu('s_lshl_b32', s(56), s(56), 12)
        a.salu('s_add_u32', s(56), s(56), hex(ACC))
        a.valu('v_lshlrev_b32', v(vT0), 2, v(vL))
        for i in range(8): a.bstore('buffer_atomic_add_f32', v(KVP+i), v(vT0), s(S_WS, 4), s(56), offset=256*i)
        a.salu('s_mov_b32', 'exec_hi', 0)
        a.bstore('buffer_atomic_add_f32', v(KVP+8), v(vT0), s(S_WS, 4), s(56), offset=2048)
        a.salu('s_mov_b64', 'exec', -1)
        a.label("L_k1_nopub")
    def h_epilogue():
        B = TMP
        T = TMP + 16
        for i in range(4):
            for h in range(2):
                a.valu('v_lshlrev_b32', v(B+4*i+2*h), 16, v(vB1+2*i+h)); a.valu('v_and_b32', v(B+4*i+2*h+1), '0xffff0000', v(vB1+2*i+h))
        a.valu('v_lshlrev_b32', v(vT0), 4, v(vL))
        a.salu('s_mul_i32', s(56), s(sR), 294912); a.salu('s_mul_i32', s(57), s(sC), 7); a.salu('s_add_u32', s(57), s(57), s(sPB))
        a.salu('s_lshl_b32', s(57), s(57), 12); a.salu('s_add_u32', s(56), s(56), s(57)); a.salu('s_lshl_b32', s(57), s(sTH), 11); a.salu('s_add_u32', s(56), s(56), s(57))
        a.salu('s_add_u32', s(57), s(56), 4096)
        for pp in range(2):
            for tb in range(2):
                vals = [ACC0 + ((2*pp+e)*2+tb)*4 + r for e in range(2) for r in range(4)]
                bs = [B + 4*(2*pp+e) + r for e in range(2) for r in range(4)]
                rbf_pairs(a, vals, [T+i for i in range(4)])
                for x, b in zip(vals, bs): a.valu('v_add_f32', v(x), v(x), v(b))
                rbf_pairs(a, vals, [T+i for i in range(4)])
                for x in vals: a.valu('v_max_f32', v(x), 0, v(x))
                for x in vals: a.valu('v_mul_f32', v(x), v(x), v(x))
                O = vals[0]
                a.valu('v_cvt_pk_bf16_f32', v(T), v(vals[0]), v(vals[1])); a.valu('v_cvt_pk_bf16_f32', v(T+1), v(vals[2]), v(vals[3]))
                a.valu('v_cvt_pk_bf16_f32', v(O+2), v(vals[4]), v(vals[5])); a.valu('v_cvt_pk_bf16_f32', v(O+3), v(vals[6]), v(vals[7]))
                a.valu('v_mov_b32', v(O), v(T)); a.valu('v_mov_b32', v(O+1), v(T+1))
                a.bstore('buffer_store_dwordx4', v(O, 4), v(vT0), s(S_WS, 4), s(56 + pp), offset=tb*1024); vm.add('hst')
    def allred(op, rs, tmp):
        for sw in ('v_permlane16_swap_b32', 'v_permlane32_swap_b32'):
            for r, t in zip(rs, tmp): a.valu('v_mov_b32', v(t), v(r))
            for r, t in zip(rs, tmp): a.valu(sw, v(r), v(t))
            for r, t in zip(rs, tmp): a.valu(op, v(r), v(r), v(t))
    def q_epilogue():
        QB = TMP; P = TMP + 4; T = TMP + 12; M = WF; E = WF + 8; E2 = WF + 16; TT = WF + 24
        for tb in range(2):
            for h in range(2): a.valu('v_cvt_pk_bf16_f32', v(QB+2*tb+h), v(ACCQ+tb*4+2*h), v(ACCQ+tb*4+2*h+1))
        for tb in range(2): a.mfma(v(P+4*tb, 4), v(vWP, 2), v(QB+2*tb, 2), 0, op='v_mfma_f32_16x16x16_bf16')
        rbf_pairs(a, [P+i for i in range(8)], [T+i for i in range(4)])
        for tb in range(2):
            p = P + 4*tb
            a.valu('v_max3_f32', v(M+tb), v(p), v(p+1), v(p+2)); a.valu('v_max_f32', v(M+tb), v(M+tb), v(p+3))
            a.valu('v_min3_f32', v(M+2+tb), v(p), v(p+1), v(p+2)); a.valu('v_min_f32', v(M+2+tb), v(M+2+tb), v(p+3))
        allred('v_max_f32', [M, M+1], [TT, TT+1]); allred('v_min_f32', [M+2, M+3], [TT+2, TT+3])
        for i in range(8): a.valu('v_sub_f32', v(E+i), v(P+i), v(M+i//4))
        for i in range(8): a.valu('v_sub_f32', v(E2+i), v(M+2+i//4), v(P+i))
        for i in range(8): a.valu('v_mul_f32', v(E+i), hex(L2E), v(E+i))
        for i in range(8): a.valu('v_mul_f32', v(E2+i), hex(L2E), v(E2+i))
        for i in range(8): a.valu('v_exp_f32', v(E+i), v(E+i))
        for i in range(8): a.valu('v_exp_f32', v(E2+i), v(E2+i))
        for tb in range(2):
            for k, e in enumerate((E, E2)):
                d = M + 2*k + tb
                a.valu('v_add_f32', v(d), v(e+4*tb), v(e+4*tb+1)); a.valu('v_add_f32', v(TT), v(e+4*tb+2), v(e+4*tb+3)); a.valu('v_add_f32', v(d), v(d), v(TT))
        allred('v_add_f32', [M, M+1, M+2, M+3], [TT, TT+1, TT+2, TT+3])
        for i in range(4): a.valu('v_rcp_f32', v(M+i), v(M+i))
        for i in range(8): a.valu('v_mul_f32', v(E+i), v(E+i), v(M+i//4))
        for i in range(8): a.valu('v_mul_f32', v(E2+i), v(E2+i), v(M+2+i//4))
        for tb in range(2):
            o = P + 4*tb
            a.valu('v_cvt_pk_bf16_f32', v(o), v(E+4*tb), v(E+4*tb+1)); a.valu('v_cvt_pk_bf16_f32', v(o+1), v(E+4*tb+2), v(E+4*tb+3))
            a.valu('v_cvt_pk_bf16_f32', v(o+2), v(E2+4*tb), v(E2+4*tb+1)); a.valu('v_cvt_pk_bf16_f32', v(o+3), v(E2+4*tb+2), v(E2+4*tb+3))
        a.salu('s_lshl_b32', s(56), s(sR), 5); a.salu('s_lshl_b32', s(57), s(sC), 2); a.salu('s_add_u32', s(56), s(56), s(57)); a.salu('s_add_u32', s(56), s(56), s(sCQ))
        a.salu('s_lshl_b32', s(56), s(56), 12); a.salu('s_lshl_b32', s(57), s(sTH), 11); a.salu('s_add_u32', s(56), s(56), s(57)); a.salu('s_add_u32', s(56), s(56), hex(PHIQ))
        a.valu('v_lshlrev_b32', v(vT0), 4, v(vL))
        for tb in range(2): a.bstore('buffer_store_dwordx4', v(P+4*tb, 4), v(vT0), s(S_WS, 4), s(56), offset=tb*1024)
    for j in range(NST + 1):
        if j < NST:
            a.waitcnt(vm=vm.need(('st', j)), lgkm=0); a.barrier()
            if j == 0:
                for i in range(5, 9): dma(i)
            else: dma(j + 8)
            if j == 4:
                a.salu('s_lshl_b32', s(56), s(sC), 2); a.valu('v_mov_b32', v(vT0), s(56))
                a.bload('buffer_load_dword', v(vFLAG), v(vT0), s(S_DBG, 4), 0, flags="sc0 sc1"); vm.add('flag')
            reads(j)
        else:
            a.waitcnt(lgkm=0)
        if j == 9: kv_publish()
        if j >= 1: mfmas(j - 1)
        if j == 8: stp.stamp(); kv_epilogue(); stp.stamp()
        if j == 24: stp.stamp(); h_epilogue()
    stp.stamp()
    q_epilogue()
    stp.stamp()
    a.label("L_k1_end"); a.other("s_endpgm")
    return a.text(), kernel_desc(kn, 256), MISC + 12288

def gen_km():
    a = Asm(); kn = "km_kernel"
    a.raw(kernel_header(kn))
    a.scmp('s_cmp_ge_u32', 's2', 256); a.other("s_cbranch_scc1 L_km_end")
    a.other("s_load_dwordx2 s[4:5], s[0:1], 88")
    a.valu('v_lshrrev_b32', 'v2', 6, 'v0'); a.valu('v_and_b32', 'v1', 63, 'v0'); a.valu('v_readfirstlane_b32', 's10', 'v2')
    a.salu('s_lshr_b32', 's11', 's2', 3); a.salu('s_and_b32', 's12', 's2', 7)
    a.salu('s_and_b32', 's13', 's10', 3); a.salu('s_lshr_b32', 's14', 's10', 2)
    a.waitcnt(lgkm=0); srd(a, 20, 4, WS_BYTES)
    a.valu('v_lshlrev_b32', 'v2', 4, 'v1'); a.valu('v_lshlrev_b32', 'v3', 2, 'v1'); a.valu('v_lshrrev_b32', 'v4', 4, 'v1'); a.valu('v_lshlrev_b32', 'v4', 4, 'v4')
    a.salu('s_lshl_b32', 's15', 's12', 2); a.salu('s_lshl_b32', 's16', 's14', 1); a.salu('s_add_u32', 's15', 's15', 's16')
    for e in range(2):
        PH = 8 + e*32; KV = PH + 4; Z = PH + 12
        a.salu('s_add_u32', 's16', 's15', e)
        a.salu('s_lshl_b32', 's17', 's11', 5); a.salu('s_add_u32', 's17', 's17', 's16'); a.salu('s_lshl_b32', 's17', 's17', 12)
        a.salu('s_lshl_b32', 's18', 's13', 10); a.salu('s_add_u32', 's17', 's17', 's18'); a.salu('s_add_u32', 's17', 's17', hex(PHIQ))
        a.bload('buffer_load_dwordx4', v(PH, 4), 'v2', 's[20:23]', 's17')
        a.salu('s_lshl_b32', 's17', 's16', 12); a.salu('s_add_u32', 's17', 's17', hex(ACC))
        for i in range(8): a.bload('buffer_load_dword', v(KV+i), 'v3', 's[20:23]', 's17', offset=256*i, flags="sc0 sc1")
        a.bload('buffer_load_dwordx4', v(Z, 4), 'v4', 's[20:23]', 's17', offset=2048, flags="sc0 sc1")
        a.bload('buffer_load_dwordx4', v(Z+4, 4), 'v4', 's[20:23]', 's17', offset=2048+64, flags="sc0 sc1")
    a.waitcnt(vm=0)
    O = 72
    for e in range(2):
        PH = 8 + e*32; KV = PH + 4; Z = PH + 12; KA = PH + 20; ZA = PH + 24; T = PH + 28
        for i in range(4): a.valu('v_cvt_pk_bf16_f32', v(KA+i), v(KV+2*i), v(KV+2*i+1))
        for i in range(4): a.valu('v_cvt_pk_bf16_f32', v(ZA+i), v(Z+2*i), v(Z+2*i+1))
        a.mfma(v(KV, 4), v(KA, 4), v(PH, 4), 0); a.mfma(v(Z, 4), v(ZA, 4), v(PH, 4), 0)
        rbf_pairs(a, [KV+i for i in range(4)], [T, T+1])
        a.valu('v_cvt_pk_bf16_f32', v(Z), v(Z), v(Z)); a.valu('v_lshlrev_b32', v(Z), 16, v(Z))
        a.valu('v_add_f32', v(Z), '0x358637bd', v(Z))
        a.valu('v_cvt_pk_bf16_f32', v(Z), v(Z), v(Z)); a.valu('v_lshlrev_b32', v(Z), 16, v(Z))
        a.valu('v_rcp_f32', v(Z+1), v(Z))
        a.valu('v_fma_f32', v(Z+2), '-' + v(Z), v(Z+1), 1.0); a.valu('v_fma_f32', v(Z+1), v(Z+2), v(Z+1), v(Z+1))
        for i in range(4): a.valu('v_mul_f32', v(KV+i), v(KV+i), v(Z+1))
        a.valu('v_cvt_pk_bf16_f32', v(O+2*e), v(KV), v(KV+1)); a.valu('v_cvt_pk_bf16_f32', v(O+2*e+1), v(KV+2), v(KV+3))
    a.salu('s_mul_i32', 's17', 's11', 294912); a.salu('s_lshl_b32', 's18', 's12', 1); a.salu('s_add_u32', 's18', 's18', 's14'); a.salu('s_add_u32', 's18', 's18', 56)
    a.salu('s_lshl_b32', 's18', 's18', 12); a.salu('s_add_u32', 's17', 's17', 's18'); a.salu('s_lshl_b32', 's18', 's13', 10); a.salu('s_add_u32', 's17', 's17', 's18')
    a.bstore('buffer_store_dwordx4', v(O, 4), 'v2', 's[20:23]', 's17')
    a.label("L_km_end"); a.other("s_endpgm")
    return a.text(), kernel_desc(kn, 80, 32), 0

def gen_k2():
    a = Asm(); vm = VM(); kn = "k2_kernel"
    a.raw(kernel_header(kn))
    a.scmp('s_cmp_ge_u32', 's2', 256); a.other("s_cbranch_scc1 L_k2_end")
    for d, off in ((4, 0), (6, 24), (8, 56), (10, 64), (12, 72), (14, 88)):
        a.other(f"s_load_dwordx2 {s(d,2)}, s[0:1], {off}")
    S_X, S_WO, S_W2, S_B2, S_OUT, S_WS, S_CUR, S_ST = 20, 24, 28, 32, 36, 40, 44, 96
    sR, sC, sW, sROT, sLB = 48, 49, 50, 51, 52
    KS = 60
    vL, vDW, vAO, aW = 1, 2, 3, 4
    vT0, vT1, vT2, vT3 = 8, 9, 10, 11
    ACC0 = 12; WF = 76; AF = 108
    stp = Stamper(a, vm, 2, S_ST, 252, 92, sW)
    a.valu('v_lshrrev_b32', v(vT0), 6, 'v0'); a.valu('v_and_b32', v(vL), 63, 'v0'); a.valu('v_readfirstlane_b32', s(sW), v(vT0))
    a.salu('s_and_b32', s(56), 's2', 7); a.salu('s_lshr_b32', s(57), 's2', 3)
    a.salu('s_lshr_b32', s(58), s(56), 1); a.salu('s_lshl_b32', s(58), s(58), 3); a.salu('s_lshr_b32', s(59), s(57), 2)
    a.salu('s_add_u32', s(sR), s(58), s(59))
    a.salu('s_and_b32', s(58), s(56), 1); a.salu('s_lshl_b32', s(58), s(58), 2); a.salu('s_and_b32', s(sC), s(57), 3)
    a.salu('s_add_u32', s(sC), s(sC), s(58))
    a.salu('s_mov_b32', s(sROT), s(59))
    a.salu('s_mul_i32', s(sLB), s(sW), 20480); a.salu('s_mul_i32', s(56), s(sW), 9)
    for p in range(9):
        a.salu('s_add_u32', s(57), s(sROT), p); a.salu('s_sub_u32', s(58), s(57), 9); a.scmp('s_cmp_ge_u32', s(57), 9)
        a.salu('s_cselect_b32', s(57), s(58), s(57)); a.salu('s_add_u32', s(KS+p), s(57), s(56))
    a.waitcnt(lgkm=0)
    srd(a, S_X, 4, 2097152); srd(a, S_WO, 6, 524288); srd(a, S_W2, 8, 1835008); srd(a, S_B2, 10, 1024); srd(a, S_OUT, 12, 2097152); srd(a, S_WS, 14, WS_BYTES)
    a.salu('s_mov_b32', s(S_CUR+3), '0x00020000')
    stp.setup(14); stp.stamp()
    a.valu('v_lshrrev_b32', v(vT0), 4, v(vL)); a.valu('v_lshlrev_b32', v(vT1), 1, v(vT0)); a.valu('v_and_b32', v(vT2), 7, v(vL))
    a.valu('v_xor_b32', v(vT1), v(vT1), v(vT2)); a.valu('v_lshlrev_b32', v(vT1), 4, v(vT1)); a.valu('v_lshrrev_b32', v(vT2), 3, v(vL))
    a.valu('v_lshl_add_u32', v(vT1), v(vT2), 10, v(vT1)); a.salu('s_lshl_b32', s(56), s(sC), 7); a.valu('v_add_u32', v(vDW), s(56), v(vT1))
    a.salu('s_mul_i32', s(56), s(sR), 294912); a.valu('v_lshlrev_b32', v(vT1), 4, v(vL)); a.valu('v_add_u32', v(vAO), s(56), v(vT1))
    def dmaW(p):
        a.scmp('s_cmp_lt_u32', s(KS+p), 56)
        for k in range(3): a.salu('s_cselect_b32', s(S_CUR+k), s(S_W2+k), s(S_WO+k))
        a.salu('s_sub_u32', s(56), s(KS+p), 56); a.salu('s_cselect_b32', s(56), s(KS+p), s(56)); a.salu('s_lshl_b32', s(56), s(56), 15)
        for i in range(4):
            a.salu('s_add_u32', 'm0', s(sLB), hex((p % 5) * 4096 + i * 1024))
            if i: a.salu('s_add_u32', s(56), s(56), 8192)
            a.bload_lds(v(vDW), s(S_CUR, 4), s(56)); vm.add(('W', p))
    def ldA(p):
        a.salu('s_lshl_b32', s(57), s(KS+p), 12)
        for tb in range(4):
            a.bload('buffer_load_dwordx4', v(AF + (p*4+tb)*4, 4), v(vAO), s(S_WS, 4), s(57), offset=tb*1024); vm.add(('A', p))
    for p in range(5): dmaW(p); ldA(p)
    for p in range(5, 9): ldA(p)
    a.valu('v_and_b32', v(vT1), 15, v(vL)); a.valu('v_lshrrev_b32', v(vT2), 2, v(vT1)); a.valu('v_lshl_add_u32', v(vT3), v(vT0), 2, v(vT2))
    a.valu('v_lshrrev_b32', v(vT2), 1, v(vT2)); a.valu('v_and_b32', v(aW), 1, v(vT0)); a.valu('v_lshl_or_b32', v(vT2), v(aW), 1, v(vT2))
    a.valu('v_and_b32', v(vT1), 3, v(vT1)); a.valu('v_lshlrev_b32', v(vT1), 3, v(vT1)); a.valu('v_lshl_add_u32', v(vT1), v(vT2), 5, v(vT1))
    a.valu('v_lshl_add_u32', v(vT1), v(vT3), 7, v(vT1)); a.valu('v_add_u32', v(aW), s(sLB), v(vT1))
    for nb in range(1, 4): a.valu('v_xor_b32', v(aW+nb), nb << 5, v(aW))
    def reads(p):
        for nb in range(4):
            r0 = WF + (p & 1) * 16 + nb * 4
            a.ds_read('ds_read_b64_tr_b16', v(r0, 2), v(aW+nb), offset=(p % 5) * 4096)
            a.ds_read('ds_read_b64_tr_b16', v(r0+2, 2), v(aW+nb), offset=(p % 5) * 4096 + 2048)
    def mfmas(p):
        for nb in range(4):
            for tb in range(4):
                d = v(ACC0 + (nb*4+tb)*4, 4)
                a.mfma(d, v(WF + (p & 1)*16 + nb*4, 4), v(AF + (p*4+tb)*4, 4), d if p else 0)
    vXX, vBB = AF, AF + 4
    for p in range(10):
        if p < 9:
            a.waitcnt(vm=vm.need(('W', p)), lgkm=0)
            if p == 0: stp.stamp()
            if p >= 1 and p + 4 <= 8: dmaW(p + 4)
            reads(p)
        else: a.waitcnt(lgkm=0)
        if p >= 1:
            a.waitcnt(vm=vm.need(('A', p-1)))
            mfmas(p - 1)
        if p == 2:
            a.valu('v_lshrrev_b32', v(vT0), 3, v(vL)); a.valu('v_and_b32', v(vT1), 7, v(vL)); a.valu('v_lshlrev_b32', v(vT1), 4, v(vT1))
            a.salu('s_lshl_b32', s(56), s(sR), 6); a.salu('s_lshl_b32', s(57), s(sW), 3); a.salu('s_add_u32', s(56), s(56), s(57))
            a.valu('v_add_u32', v(vT0), s(56), v(vT0)); a.valu('v_lshl_add_u32', v(vT3), v(vT0), 10, v(vT1))
            a.salu('s_lshl_b32', s(59), s(sC), 7)
            a.bload('buffer_load_dwordx4', v(vXX, 4), v(vT3), s(S_X, 4), s(59)); a.bload('buffer_load_dwordx4', v(vBB, 4), v(vT1), s(S_B2, 4), s(59)); vm.add('xb', 2)
    stp.stamp()
    a.valu('v_lshrrev_b32', v(vT0), 4, v(vL)); a.valu('v_and_b32', v(vT1), 15, v(vL)); a.valu('v_xor_b32', v(vT0), v(vT0), v(vT1))
    a.valu('v_lshlrev_b32', v(vT0), 4, v(vT0)); a.valu('v_lshl_add_u32', v(vT0), v(vT1), 8, v(vT0)); a.valu('v_add_u32', v(aW), s(sLB), v(vT0))
    for nb in range(1, 4): a.valu('v_xor_b32', v(aW+nb), nb << 6, v(aW))
    for nb in range(4):
        for tb in range(4): a.ds_write('ds_write_b128', v(aW+nb), v(ACC0 + (nb*4+tb)*4, 4), offset=tb*4096)
    a.valu('v_lshrrev_b32', v(vT0), 3, v(vL)); a.salu('s_lshl_b32', s(57), s(sW), 3); a.valu('v_add_u32', v(vT0), s(57), v(vT0))
    a.valu('v_and_b32', v(vT1), 7, v(vL)); a.valu('v_lshlrev_b32', v(vT1), 1, v(vT1)); a.valu('v_and_b32', v(vT2), 15, v(vT0)); a.valu('v_xor_b32', v(vT1), v(vT1), v(vT2))
    a.valu('v_lshlrev_b32', v(vT1), 4, v(vT1));
    RA = WF
    a.valu('v_lshl_add_u32', v(RA), v(vT0), 8, v(vT1)); a.valu('v_xor_b32', v(RA+1), 16, v(RA))
    for k in range(1, 3):
        for e in range(2): a.valu('v_add_u32', v(RA+2*k+e), hex(k*61440), v(RA+e))
    a.waitcnt(lgkm=0); a.barrier()
    R = AF + 16
    for p in range(8):
        for e in range(2): a.ds_read('ds_read_b128', v(R + (p*2+e)*4, 4), v(RA + 2*(p//3) + e), offset=(p % 3) * 20480)
    a.waitcnt(lgkm=0, vm=0)
    for p in range(1, 8):
        for i in range(8): a.valu('v_add_f32', v(R+i), v(R+i), v(R+p*8+i))
    U = R + 8
    for i in range(4):
        a.valu('v_lshlrev_b32', v(U+2*i), 16, v(vBB+i)); a.valu('v_and_b32', v(U+2*i+1), '0xffff0000', v(vBB+i))
    for i in range(8): a.valu('v_add_f32', v(R+i), v(R+i), v(U+i))
    for i in range(4):
        a.valu('v_lshlrev_b32', v(U+2*i), 16, v(vXX+i)); a.valu('v_and_b32', v(U+2*i+1), '0xffff0000', v(vXX+i))
    for i in range(8): a.valu('v_add_f32', v(R+i), v(R+i), v(U+i))
    for i in range(4): a.valu('v_cvt_pk_bf16_f32', v(U+i), v(R+2*i), v(R+2*i+1))
    a.bstore('buffer_store_dwordx4', v(U, 4), v(vT3), s(S_OUT, 4), s(59))
    stp.stamp()
    a.label("L_k2_end"); a.other("s_endpgm")
    return a.text(), kernel_desc(kn, 256), 163840

k1, d1, l1 = gen_k1(); km, dm, lm = gen_km(); k2, d2, l2 = gen_k2()
hdr = open("cdna_kernels/" + NAME + ".s.ref").read().split("; Override")[0]
out = hdr
out += f"; @launch kernel=k1_kernel grid=(256,1,1) block=(512,1,1) lds={l1}\n"
out += f"; @launch kernel=km_kernel grid=(256,1,1) block=(512,1,1) lds={lm}\n"
out += f"; @launch kernel=k2_kernel grid=(256,1,1) block=(512,1,1) lds={l2}\n"
out += '.amdgcn_target "amdgcn-amd-amdhsa--gfx950"\n.text\n' + k1 + km + k2
out += '.section .rodata,"a"\n.p2align 6\n' + d1 + ".p2align 6\n" + dm + ".p2align 6\n" + d2
sys.stdout.write(out)
```

```python
import sys
from asmlib import *
STAMPS = '--stamps' in sys.argv
EXP = [x[2:] for x in sys.argv[1:] if x.startswith('--')]
NAME = "parallel_sum__linear_kernel_hedgehog__dense_activation_squared_relu__prompt"
AWS = 0; ACC = 0x1800000; FL = 0x1A00000; WS_BYTES = 0x2000000; STAMP_OFF = 0x8000000
F_EPOCH = FL; F_ZF = FL + 0x1000; F_KF = FL + 0x2000; F_HF = FL + 0x4000; F_OF = FL + 0x8000
L2E = 0x3fb8aa3b
DPPM = "row_mask:0xf bank_mask:0xf"
COH = "sc0 sc1"

class VM:
    def __init__(self): self.q = []
    def add(self, tag, n=1): self.q += [tag] * n
    def need(self, *tags):
        last = -1
        for i, t in enumerate(self.q):
            if t in tags: last = i
        assert last >= 0, tags
        return min(63, len(self.q) - 1 - last)

def srd(a, d, base, nbytes):
    a.salu('s_mov_b32', s(d), s(base)); a.salu('s_and_b32', s(d+1), s(base+1), 0xffff)
    a.salu('s_mov_b32', s(d+2), hex(nbytes)); a.salu('s_mov_b32', s(d+3), '0x00020000')

def rbf_pairs(a, vals, tmp):
    for i in range(0, len(vals), 2):
        a.valu('v_cvt_pk_bf16_f32', v(tmp[i//2]), v(vals[i]), v(vals[i+1]))
    for i in range(0, len(vals), 2):
        a.valu('v_lshlrev_b32', v(vals[i]), 16, v(tmp[i//2]))
        a.valu('v_and_b32', v(vals[i+1]), '0xffff0000', v(tmp[i//2]))

def interleave(ms, fs, lead=0, per=2):
    fs = list(fs)
    for _ in range(min(lead, len(fs))): fs.pop(0)()
    for m in ms:
        m()
        for _ in range(min(per, len(fs))): fs.pop(0)()
    for f in fs: f()

def gen():
    a = Asm(); vm = VM()
    kn = NAME + "_kernel"
    a.raw(kernel_header(kn))
    S_X, S_WQ, S_W1, S_WP, S_B1, S_WS, S_W2, S_WO, S_B2, S_OUT = 24, 28, 32, 36, 40, 44, 48, 52, 36, 40
    sR, sC, sW, sROT, sWK, sTH, sCQ, sPB, sTAG = 56, 57, 58, 59, 60, 61, 62, 63, 64
    t0, t1, t2, t3 = 65, 66, 67, 68
    T1 = 70
    KS = 86
    sSPIN = 93
    stamp_pairs = [94, 96, 98, 100, 4, 6, 8, 10, 12, 14, 16, 18]
    nst = [0]
    def stamp():
        if STAMPS:
            a.other(f"s_memrealtime {s(stamp_pairs[nst[0]],2)}"); nst[0] += 1
    a.scmp('s_cmp_ge_u32', 's2', 256); a.other("s_cbranch_scc1 L_end")
    stamp()
    for d, off in ((4, 0), (6, 8), (8, 16), (10, 40), (12, 48), (14, 88), (16, 56), (18, 24), (20, 64), (22, 72)):
        a.other(f"s_load_dwordx2 {s(d,2)}, s[0:1], {off}")
    vL, vKV, vF, vQ, aK, aV, aF, aQ, vWP, vB1 = 1, 2, 3, 4, 5, 6, 7, 11, 12, 14
    vCUR = 22; vFLAG = 28; vT0, vT1, vT2 = 29, 30, 31
    ACC0 = 32; ACCQ = 64; WF = 72; TMP = 104; XF = 128
    vEP = TMP + 23
    a.valu('v_lshrrev_b32', v(vT0), 6, 'v0'); a.valu('v_and_b32', v(vL), 63, 'v0')
    a.valu('v_readfirstlane_b32', s(sW), v(vT0))
    a.salu('s_and_b32', s(t0), 's2', 7); a.salu('s_lshr_b32', s(t1), 's2', 3)
    if 'nopf' not in EXP:
        a.other(f"s_getpc_b64 {s(S_W2,2)}")
        a.salu('s_and_b32', s(S_W2+1), s(S_W2+1), 0xffff); a.salu('s_mov_b32', s(S_W2+2), 'CODE_BYTES'); a.salu('s_mov_b32', s(S_W2+3), '0x00020000')
        a.salu('s_and_b32', s(t2), s(t1), 3); a.salu('s_lshl_b32', s(t2), s(t2), 13)
        a.valu('v_lshlrev_b32', v(vT1), 7, v(vL))
        a.scmp('s_cmp_lg_u32', s(sW), 7); a.other("s_cbranch_scc1 L_nopf")
        a.bload('buffer_load_dword', v(vEP), v(vT1), s(S_W2, 4), s(t2))
        a.label("L_nopf")
    a.salu('s_lshr_b32', s(t2), s(t0), 1); a.salu('s_lshl_b32', s(t2), s(t2), 3); a.salu('s_lshr_b32', s(t3), s(t1), 2)
    a.salu('s_add_u32', s(sR), s(t2), s(t3))
    a.salu('s_and_b32', s(t2), s(t0), 1); a.salu('s_lshl_b32', s(t2), s(t2), 2); a.salu('s_and_b32', s(sC), s(t1), 3)
    a.salu('s_add_u32', s(sC), s(sC), s(t2))
    a.salu('s_lshl_b32', s(sROT), s(t3), 1)
    a.salu('s_lshl_b32', s(sWK), s(sW), 10); a.salu('s_lshr_b32', s(sTH), s(sW), 2); a.salu('s_and_b32', s(sCQ), s(sW), 3)
    a.salu('s_lshl_b32', s(sPB), s(sCQ), 1); a.salu('s_min_u32', s(sPB), s(sPB), 5)
    a.valu('v_lshrrev_b32', v(vT0), 3, v(vL)); a.valu('v_and_b32', v(vT1), 7, v(vL))
    a.salu('s_lshl_b32', s(t0), s(sR), 6); a.salu('s_lshl_b32', s(t1), s(sW), 3); a.salu('s_add_u32', s(t0), s(t0), s(t1))
    a.valu('v_add_u32', v(vT2), s(t0), v(vT0)); a.valu('v_lshlrev_b32', v(vT2), 10, v(vT2)); a.valu('v_lshl_add_u32', v(vT2), v(vT1), 4, v(vT2))
    a.waitcnt(lgkm=0)
    srd(a, S_X, 4, 2097152); srd(a, S_WS, 14, WS_BYTES)
    X = 32; F = 64
    for j in range(8):
        a.salu('s_add_u32', s(t2), s(t3), j); a.salu('s_and_b32', s(t2), s(t2), 7); a.salu('s_lshl_b32', s(t2), s(t2), 7)
        a.bload('buffer_load_dwordx4', v(X+4*j, 4), v(vT2), s(S_X, 4), s(t2)); vm.add('x')
    a.valu('v_mov_b32', v(TMP), 0); a.salu('s_mov_b32', s(t2), hex(F_EPOCH))
    a.bload('buffer_load_dword', v(vEP), v(TMP), s(S_WS, 4), s(t2), flags=COH); vm.add('x')
    srd(a, S_WQ, 6, 1572864); srd(a, S_W1, 10, 1835008); srd(a, S_WP, 8, 16384); srd(a, S_B1, 12, 3584)
    srd(a, S_W2, 16, 1835008); srd(a, S_WO, 18, 524288)
    for p in range(16):
        a.salu('s_add_u32', s(T1+p), s(sROT), p); a.salu('s_and_b32', s(T1+p), s(T1+p), 15)
    for i in range(1, 4): a.valu('v_mov_b32', v(TMP+i), 0)
    vXW = vCUR + 4
    a.valu('v_lshlrev_b32', v(vXW), 4, v(vL))
    a.salu('s_lshl_b32', s(t0), s(sC), 14); a.salu('s_lshl_b32', s(t1), s(sW), 11); a.salu('s_add_u32', s(t0), s(t0), s(t1)); a.salu('s_add_u32', s(t0), s(t0), hex(ACC))
    a.scmp('s_cmp_lg_u32', s(sR), 0); a.other("s_cbranch_scc1 L_nozero")
    a.bstore('buffer_store_dwordx4', v(TMP, 4), v(vXW), s(S_WS, 4), s(t0), flags=COH)
    a.bstore('buffer_store_dwordx4', v(TMP, 4), v(vXW), s(S_WS, 4), s(t0), offset=1024, flags=COH)
    a.label("L_nozero")
    a.salu('s_lshl_b32', s(t1), s(sW), 3)
    a.valu('v_add_u32', v(vT0), s(t1), v(vT0))
    a.valu('v_and_b32', v(vT2), 15, v(vT0)); a.valu('v_xor_b32', v(vT2), v(vT2), v(vT1)); a.valu('v_lshlrev_b32', v(vT2), 4, v(vT2))
    a.valu('v_lshl_add_u32', v(vXW), v(vT0), 10, v(vT2))
    vG, vI = TMP + 4, TMP + 5
    a.valu('v_lshrrev_b32', v(vG), 4, v(vL)); a.valu('v_and_b32', v(vI), 15, v(vL))
    a.salu('s_lshr_b32', s(t0), s(sW), 1); a.salu('s_and_b32', s(t0), s(t0), 1); a.salu('s_lshl_b32', s(t0), s(t0), 3)
    a.valu('v_lshlrev_b32', v(vT0), 1, v(vG)); a.valu('v_or_b32', v(vT0), s(t0), v(vT0)); a.valu('v_xor_b32', v(vT0), v(vT0), v(vI))
    a.valu('v_lshrrev_b32', v(vT1), 3, v(vT0)); a.valu('v_lshlrev_b32', v(vT1), 10, v(vT1))
    a.valu('v_and_b32', v(vT0), 7, v(vT0)); a.valu('v_lshl_add_u32', v(vT1), v(vT0), 4, v(vT1))
    a.salu('s_lshl_b32', s(t0), s(sW), 2); a.valu('v_add_u32', v(vT0), s(t0), v(vG))
    a.valu('v_mul_u32_u24', v(vT0), 3072, v(vT0)); a.valu('v_add_u32', v(vT1), v(vT1), v(vT0))
    a.salu('s_lshl_b32', s(t0), s(sC), 7); a.salu('s_add_u32', s(t0), s(t0), 1024)
    a.valu('v_add_u32', v(vKV), s(t0), v(vT1))
    NST = 14
    REG = lambda i: {0: 2, 1: 3, 2: 4}.get(i, (i - 3) % 4) * 32768
    MISC = 4 * 32768
    vDW, vAO = vKV, vQ
    def dma_ops(i):
        ops = []
        for q in range(4):
            def op(q=q):
                if i < 4:
                    a.salu('s_add_u32', 'm0', s(sWK), hex(REG(i) + q * 8192))
                    a.salu('s_mul_i32', s(t0), s(T1 + 4*i + q), 98304); a.bload_lds(v(vKV), s(S_WQ, 4), s(t0))
                elif i < 12:
                    a.salu('s_add_u32', 'm0', s(sWK), hex(REG(i) + q * 8192))
                    a.salu('s_mul_i32', s(t0), s(T1 + 2*(i-4) + (q >> 1)), 114688)
                    if q & 1: a.salu('s_add_u32', s(t0), s(t0), 16 * 3584)
                    a.bload_lds(v(vF), s(S_W1, 4), s(t0))
                elif i < 14:
                    a.salu('s_add_u32', 'm0', s(sWK), hex(REG(i) + q * 8192))
                    a.salu('s_add_u32', s(t0), s(sTH), s(T1 + 8*(i-12) + 2*q)); a.salu('s_and_b32', s(t0), s(t0), 15)
                    a.salu('s_mul_i32', s(t0), s(t0), 98304); a.bload_lds(v(vQ), s(S_WQ, 4), s(t0))
                else:
                    p = i - 14
                    a.salu('s_lshl_b32', s(t1), s(sWK), 2); a.salu('s_add_u32', 'm0', s(t1), hex(REG(i) + q * 1024))
                    if p < 7:
                        a.salu('s_lshl_b32', s(t0), s(KS+p), 15);
                        if q: a.salu('s_add_u32', s(t0), s(t0), q * 8192)
                        a.bload_lds(v(vDW), s(S_W2, 4), s(t0))
                    else:
                        a.salu('s_lshl_b32', s(t0), s(sW), 16); a.salu('s_add_u32', s(t0), s(t0), (p - 7) * 32768 + q * 8192)
                        a.bload_lds(v(vDW), s(S_WO, 4), s(t0))
                vm.add(('st', i))
            ops.append(op)
        return ops
    a.barrier()
    for i in range(3):
        for op in dma_ops(i): op()
    a.salu('s_lshl_b32', s(t0), s(sC), 2); a.salu('s_add_u32', s(t0), s(t0), s(sCQ)); a.salu('s_lshl_b32', s(t0), s(t0), 9)
    a.valu('v_lshlrev_b32', v(vT0), 7, v(vG)); a.valu('v_lshl_add_u32', v(vT0), v(vI), 1, v(vT0))
    a.bload('buffer_load_ushort', v(vWP), v(vT0), s(S_WP, 4), s(t0), offset=0)
    a.bload('buffer_load_ushort', v(vFLAG), v(vT0), s(S_WP, 4), s(t0), offset=32)
    a.bload('buffer_load_ushort', v(vWP+1), v(vT0), s(S_WP, 4), s(t0), offset=64)
    a.bload('buffer_load_ushort', v(vCUR+3), v(vT0), s(S_WP, 4), s(t0), offset=96); vm.add('small', 4)
    a.salu('s_mul_i32', s(t0), s(sC), 448); a.salu('s_lshl_b32', s(t1), s(sPB), 6); a.salu('s_add_u32', s(t0), s(t0), s(t1))
    a.valu('v_lshlrev_b32', v(vT0), 3, v(vG))
    for i in range(4):
        a.bload('buffer_load_dwordx2', v(vB1+2*i, 2), v(vT0), s(S_B1, 4), s(t0), offset=32*i); vm.add('small')
    a.valu('v_lshrrev_b32', v(vT0), 5, v(vL))
    a.salu('s_and_b32', s(t0), s(sW), 1); a.salu('s_lshl_b32', s(t0), s(t0), 1); a.salu('s_and_b32', s(t1), s(sW), 4); a.salu('s_or_b32', s(t0), s(t0), s(t1))
    a.valu('v_or_b32', v(vT1), s(t0), v(vT0)); a.valu('v_lshlrev_b32', v(vT1), 1, v(vT1))
    a.valu('v_and_b32', v(vT2), 31, v(vL)); a.valu('v_xor_b32', v(vT1), v(vT1), v(vT2)); a.valu('v_lshlrev_b32', v(vT1), 4, v(vT1))
    a.salu('s_lshl_b32', s(t0), s(sW), 1); a.valu('v_add_u32', v(vT0), s(t0), v(vT0)); a.valu('v_mul_u32_u24', v(vT0), 3584, v(vT0))
    a.valu('v_add_u32', v(vT1), v(vT1), v(vT0))
    a.salu('s_mul_i32', s(t0), s(sC), 448); a.salu('s_and_b32', s(t0), s(t0), '0xffffff80')
    a.valu('v_add_u32', v(vF), s(t0), v(vT1))
    a.valu('v_and_b32', v(vT0), 1, v(vG)); a.salu('s_and_b32', s(t0), s(sW), 1); a.salu('s_lshl_b32', s(t0), s(t0), 1)
    a.valu('v_or_b32', v(vT0), s(t0), v(vT0)); a.valu('v_lshlrev_b32', v(vT0), 1, v(vT0))
    a.valu('v_and_b32', v(vT1), 7, v(vL)); a.valu('v_xor_b32', v(vT1), v(vT1), v(vT0)); a.valu('v_lshlrev_b32', v(vT1), 4, v(vT1))
    a.valu('v_lshrrev_b32', v(vT0), 3, v(vL)); a.salu('s_lshl_b32', s(t0), s(sCQ), 3); a.valu('v_add_u32', v(vT0), s(t0), v(vT0))
    a.valu('v_mul_u32_u24', v(vT0), 3072, v(vT0)); a.valu('v_add_u32', v(vT1), v(vT1), v(vT0))
    a.salu('s_lshl_b32', s(t0), s(sC), 7); a.valu('v_add_u32', v(vQ), s(t0), v(vT1))
    vRR, vROW, vFS, vC8 = TMP + 6, TMP + 7, TMP + 8, TMP + 9
    a.valu('v_lshrrev_b32', v(vRR), 2, v(vI)); a.valu('v_lshl_add_u32', v(vROW), v(vG), 3, v(vRR))
    a.valu('v_and_b32', v(vT0), 1, v(vG)); a.valu('v_lshl_or_b32', v(vFS), v(vT0), 2, v(vRR))
    a.valu('v_and_b32', v(vC8), 3, v(vI)); a.valu('v_lshlrev_b32', v(vC8), 3, v(vC8))
    a.valu('v_xor_b32', v(vT1), s(sCQ), v(vFS)); a.valu('v_lshl_add_u32', v(vT1), v(vT1), 5, v(vC8)); a.valu('v_lshl_add_u32', v(aK), v(vROW), 8, v(vT1))
    a.valu('v_xor_b32', v(aV), 128, v(aK))
    a.salu('s_and_b32', s(t0), s(sC), 1); a.salu('s_add_u32', s(t0), s(t0), s(sPB)); a.salu('s_lshl_b32', s(t0), s(t0), 1)
    for i in range(4):
        a.salu('s_add_u32', s(t1), s(t0), i)
        a.valu('v_xor_b32', v(vT1), s(t1), v(vFS)); a.valu('v_lshl_add_u32', v(vT1), v(vT1), 5, v(vC8)); a.valu('v_lshl_add_u32', v(aF+i), v(vROW), 9, v(vT1))
    a.valu('v_lshrrev_b32', v(vT1), 1, v(vRR)); a.valu('v_lshl_or_b32', v(vT1), v(vT0), 1, v(vT1)); a.valu('v_xor_b32', v(vT1), s(sCQ), v(vT1))
    a.valu('v_lshl_add_u32', v(vT1), v(vT1), 5, v(vC8)); a.valu('v_lshl_add_u32', v(aQ), v(vROW), 7, v(vT1))
    vXR = vCUR + 5
    a.valu('v_xor_b32', v(vT1), v(vG), v(vI)); a.valu('v_lshlrev_b32', v(vT1), 4, v(vT1)); a.valu('v_lshl_add_u32', v(vT1), v(vI), 10, v(vT1))
    a.salu('s_lshl_b32', s(t0), s(sTH), 15); a.valu('v_add_u32', v(vXR), s(t0), v(vT1))
    a.salu('s_lshr_b32', s(t0), s(sROT), 1); a.salu('s_mul_i32', s(t1), s(sW), 7)
    for p in range(7):
        a.salu('s_add_u32', s(t2), s(t0), p); a.salu('s_sub_u32', s(t3), s(t2), 7); a.scmp('s_cmp_ge_u32', s(t2), 7)
        a.salu('s_cselect_b32', s(t2), s(t3), s(t2)); a.salu('s_add_u32', s(KS+p), s(t2), s(t1))
    a.waitcnt(vm=vm.need('x'))
    stamp()
    a.valu('v_readfirstlane_b32', s(sTAG), v(vEP))
    for j in range(32):
        a.valu('v_lshlrev_b32', v(F+2*j), 16, v(X+j)); a.valu('v_and_b32', v(F+2*j+1), '0xffff0000', v(X+j))
    a.salu('s_add_u32', s(sTAG), s(sTAG), 1)
    S0 = X
    for k in range(4): a.valu('v_add_f32', v(S0+k), v(F+k), v(F+4+k))
    for j in range(8, 64): a.valu('v_add_f32', v(S0+j%4), v(S0+j%4), v(F+j))
    a.valu('v_add_f32', v(S0), v(S0), v(S0+1)); a.valu('v_add_f32', v(S0+2), v(S0+2), v(S0+3)); a.valu('v_add_f32', v(S0), v(S0), v(S0+2))
    def red8(r):
        a.valu('v_add_f32_dpp', v(r), v(r), v(r), mod="quad_perm:[1,0,3,2] " + DPPM)
        a.valu('v_add_f32_dpp', v(r), v(r), v(r), mod="quad_perm:[2,3,0,1] " + DPPM)
        a.valu('v_add_f32_dpp', v(r), v(r), v(r), mod="row_half_mirror " + DPPM)
    red8(S0)
    vMEAN, vMB = S0 + 4, S0 + 5
    a.valu('v_mul_f32', v(vMEAN), '0x3b000000', v(S0))
    a.valu('v_cvt_pk_bf16_f32', v(vMB), v(vMEAN), v(vMEAN)); a.valu('v_lshlrev_b32', v(vMB), 16, v(vMB))
    for j in range(64): a.valu('v_sub_f32', v(F+j), v(F+j), v(vMB))
    for k in range(4): a.valu('v_mul_f32', v(S0+k), v(F+k), v(F+k))
    for j in range(4, 64): a.valu('v_fmac_f32', v(S0+j%4), v(F+j), v(F+j))
    a.valu('v_add_f32', v(S0), v(S0), v(S0+1)); a.valu('v_add_f32', v(S0+2), v(S0+2), v(S0+3)); a.valu('v_add_f32', v(S0), v(S0), v(S0+2))
    red8(S0)
    a.valu('v_sub_f32', v(vMEAN), v(vMEAN), v(vMB))
    a.valu('v_mul_f32', v(S0), '0x3b000000', v(S0))
    a.valu('v_fma_f32', v(S0), '-' + v(vMEAN), v(vMEAN), v(S0)); a.valu('v_max_f32', v(S0), 0, v(S0))
    a.valu('v_cvt_pk_bf16_f32', v(S0), v(S0), v(S0)); a.valu('v_lshlrev_b32', v(S0), 16, v(S0))
    a.valu('v_add_f32', v(S0), '0x3727c5ac', v(S0))
    a.valu('v_cvt_pk_bf16_f32', v(S0), v(S0), v(S0)); a.valu('v_lshlrev_b32', v(S0), 16, v(S0))
    a.valu('v_sqrt_f32', v(S0), v(S0))
    a.valu('v_cvt_pk_bf16_f32', v(S0), v(S0), v(S0)); a.valu('v_lshlrev_b32', v(S0), 16, v(S0))
    vRI = vT0
    a.valu('v_rcp_f32', v(vRI), v(S0))
    a.valu('v_fma_f32', v(vT1), '-' + v(S0), v(vRI), 1.0); a.valu('v_fma_f32', v(vRI), v(vT1), v(vRI), v(vRI))
    a.valu('v_xor_b32', v(vT1), 128, v(vXW))
    for j in range(8):
        fs = [F + 8*j + i for i in range(8)]
        rbf_pairs(a, fs, [X + 4*j + i for i in range(4)])
        for f in fs: a.valu('v_mul_f32', v(f), v(f), v(vRI))
        for i in range(4): a.valu('v_cvt_pk_bf16_f32', v(X+4*j+i), v(fs[2*i]), v(fs[2*i+1]))
        a.ds_write('ds_write_b128', v(vXW if j % 2 == 0 else vT1), v(X+4*j, 4), offset=(j >> 1) * 256)
    a.waitcnt(lgkm=0); a.barrier()
    stamp()
    for q4 in range(1, 4): a.valu('v_xor_b32', v(vCUR+q4-1), q4 << 6, v(vXR))
    for ks in range(16):
        for tb in range(2):
            base = vXR if ks % 4 == 0 else vCUR + ks % 4 - 1
            a.ds_read('ds_read_b128', v(XF + (tb*16+ks)*4, 4), v(base), offset=(ks >> 2) * 256 + tb * 16384)
    xf = lambda tb, ks: v(XF + (tb*16+ks)*4, 4)
    wf = lambda buf, i: v(WF + buf*16 + i*4, 4)
    started = set()
    accK = lambda tb: v(ACC0 + tb*4, 4); accV = lambda tb: v(ACC0 + 8 + tb*4, 4)
    accF = lambda i, tb: v(ACC0 + (i*2+tb)*4, 4); accQ = lambda tb: v(ACCQ + tb*4, 4)
    curbase = {}
    def read_ops(hs):
        j = hs >> 1; sb = REG(j) + (hs & 1) * 16384; buf = hs & 1
        if hs < 8: lst = [(aK, 0, 1024), (aV, 0, 1024), (aK, 8192, 1024), (aV, 8192, 1024)]; bases = [aK, aV]
        elif hs < 24: lst = [(aF+i, 0, 2048) for i in range(4)]; bases = [aF+i for i in range(4)]
        else: lst = [(aQ, i*4096, 512) for i in range(4)]; bases = [aQ]
        hi = (sb // 65536) * 65536; lo = sb - hi
        cur = {}
        for n, b in enumerate(bases):
            if hi:
                if curbase.get(n) != (b, hi):
                    a.valu('v_add_u32', v(vCUR+n), hex(hi), v(b)); curbase[n] = (b, hi)
                cur[b] = vCUR + n
            else: cur[b] = b
        ops = []
        for i, (b, off, d2) in enumerate(lst):
            r0 = WF + buf*16 + i*4
            ops.append(lambda r0=r0, b=b, off=off: a.ds_read('ds_read_b64_tr_b16', v(r0, 2), v(cur[b]), offset=lo + off))
            ops.append(lambda r0=r0, b=b, off=off, d2=d2: a.ds_read('ds_read_b64_tr_b16', v(r0+2, 2), v(cur[b]), offset=lo + off + d2))
        return ops
    def mfma_ops(hs):
        if hs < 0: return []
        buf = hs & 1; L = []
        if hs < 8:
            for h in range(2):
                for tb in range(2): L.append((accK(tb), wf(buf, 2*h), xf(tb, 2*hs+h), 'kv'))
                for tb in range(2): L.append((accV(tb), xf(tb, 2*hs+h), wf(buf, 2*h+1), 'kv'))
        elif hs < 24:
            for i in range(4):
                for tb in range(2): L.append((accF(i, tb), wf(buf, i), xf(tb, hs-8), 'f'))
        else:
            for i in range(4):
                for tb in range(2): L.append((accQ(tb), wf(buf, i), xf(tb, 4*(hs-24)+i), 'q'))
        ops = []
        for d, A, B, ph in L:
            def op(d=d, A=A, B=B, ph=ph):
                c = d if (d, ph) in started else 0
                started.add((d, ph)); a.mfma(d, A, B, c)
            ops.append(op)
        return ops
    uid = [0]
    def spin(vreg, voff, soff_imm_setup, label):
        a.salu('s_mov_b32', s(sSPIN), 0)
        a.label(f"L_{label}_chk")
        a.valu('v_cmp_ne_u32', 'vcc', s(sTAG), v(vreg))
        a.nop(1); a.scmp('s_cmp_eq_u64', 'vcc', 0); a.other(f"s_cbranch_scc1 L_{label}_ok")
        a.salu('s_add_u32', s(sSPIN), s(sSPIN), 1); a.scmp('s_cmp_ge_u32', s(sSPIN), 200000); a.other(f"s_cbranch_scc1 L_{label}_ok")
        a.other("s_sleep 2")
        soff_imm_setup()
        a.bload('buffer_load_dword', v(vreg), v(voff), s(S_WS, 4), s(t0), flags=COH); a.waitcnt(vm=0)
        a.other(f"s_branch L_{label}_chk")
        a.label(f"L_{label}_ok")
    def flag_store(setup):
        setup()
        a.valu('v_mov_b32', v(vT0), 0); a.valu('v_mov_b32', v(vT1), s(sTAG))
        a.salu('s_mov_b64', 'exec', 1)
        a.bstore('buffer_store_dword', v(vT1), v(vT0), s(S_WS, 4), s(t0), flags=COH)
        a.salu('s_mov_b64', 'exec', -1)
    KVP = TMP + 8
    def zf_off(): a.salu('s_lshl_b32', s(t0), s(sC), 7); a.salu('s_add_u32', s(t0), s(t0), hex(F_ZF))
    def kv_epilogue():
        P = ACC0 + 16; MX = ACC0 + 24; MN = ACCQ; E2 = WF + 16; T = WF + 24
        KA = TMP; VB = TMP + 4
        for tb in range(2):
            for h in range(2): a.valu('v_cvt_pk_bf16_f32', v(KA+2*tb+h), v(ACC0+tb*4+2*h), v(ACC0+tb*4+2*h+1))
        for tb in range(2):
            for h in range(2): a.valu('v_cvt_pk_bf16_f32', v(VB+2*tb+h), v(ACC0+8+tb*4+2*h), v(ACC0+8+tb*4+2*h+1))
        for tb in range(2): a.mfma(v(P+4*tb, 4), v(KA+2*tb, 2), v(vWP, 2), 0, op='v_mfma_f32_16x16x16_bf16')
        rbf_pairs(a, [P+i for i in range(8)], [T+i for i in range(4)])
        for i in range(8): a.valu('v_max_f32_dpp', v(MX+i), v(P+i), v(P+i), mod="row_ror:8 " + DPPM)
        for i in range(8): a.valu('v_min_f32_dpp', v(MN+i), v(P+i), v(P+i), mod="row_ror:8 " + DPPM)
        for sh in (4, 2, 1):
            for i in range(8): a.valu('v_max_f32_dpp', v(MX+i), v(MX+i), v(MX+i), mod=f"row_ror:{sh} " + DPPM)
            for i in range(8): a.valu('v_min_f32_dpp', v(MN+i), v(MN+i), v(MN+i), mod=f"row_ror:{sh} " + DPPM)
        for i in range(8): a.valu('v_sub_f32', v(MX+i), v(P+i), v(MX+i))
        for i in range(8): a.valu('v_sub_f32', v(MN+i), v(MN+i), v(P+i))
        for i in range(8): a.valu('v_mul_f32', v(MX+i), hex(L2E), v(MX+i))
        for i in range(8): a.valu('v_mul_f32', v(MN+i), hex(L2E), v(MN+i))
        for i in range(8): a.valu('v_exp_f32', v(MX+i), v(MX+i))
        for i in range(8): a.valu('v_exp_f32', v(MN+i), v(MN+i))
        for i in range(8): a.valu('v_add_f32_dpp', v(P+i), v(MX+i), v(MX+i), mod="row_ror:8 " + DPPM)
        for i in range(8): a.valu('v_add_f32_dpp', v(E2+i), v(MN+i), v(MN+i), mod="row_ror:8 " + DPPM)
        for sh in (4, 2, 1):
            for i in range(8): a.valu('v_add_f32_dpp', v(P+i), v(P+i), v(P+i), mod=f"row_ror:{sh} " + DPPM)
            for i in range(8): a.valu('v_add_f32_dpp', v(E2+i), v(E2+i), v(E2+i), mod=f"row_ror:{sh} " + DPPM)
        for i in range(8): a.valu('v_rcp_f32', v(P+i), v(P+i))
        for i in range(8): a.valu('v_rcp_f32', v(E2+i), v(E2+i))
        for i in range(8): a.valu('v_mul_f32', v(MX+i), v(MX+i), v(P+i))
        for i in range(8): a.valu('v_mul_f32', v(MN+i), v(MN+i), v(E2+i))
        PHP = T; PHM = T + 4; ONE = KA
        for i in range(4): a.valu('v_cvt_pk_bf16_f32', v(PHP+i), v(MX+2*i), v(MX+2*i+1))
        for i in range(4): a.valu('v_cvt_pk_bf16_f32', v(PHM+i), v(MN+2*i), v(MN+2*i+1))
        for i in range(4): a.valu('v_mov_b32', v(ONE+i), '0x3f803f80')
        a.mfma(v(KVP, 4), v(PHP, 4), v(VB, 4), 0); a.mfma(v(KVP+4, 4), v(PHM, 4), v(VB, 4), 0)
        a.mfma(v(P, 4), v(ONE, 4), v(PHP, 4), 0); a.mfma(v(P+4, 4), v(ONE, 4), v(PHM, 4), 0)
        a.valu('v_and_b32', v(vT0), 16, v(vL)); a.valu('v_cmp_ne_u32', 'vcc', 0, v(vT0))
        a.valu('v_cndmask_b32', v(KVP+8), v(P), v(P+4), 'vcc')
        a.valu('v_lshlrev_b32', v(vT0), 4, v(vL)); a.salu('s_mul_i32', s(t0), s(sCQ), 3072); a.salu('s_add_u32', s(t0), s(t0), hex(MISC))
        a.valu('v_add_u32', v(vT2), s(t0), v(vT0))
        a.scmp('s_cmp_eq_u32', s(sTH), 0); a.other("s_cbranch_scc1 L_nopark")
        a.ds_write('ds_write_b128', v(vT2), v(KVP, 4)); a.ds_write('ds_write_b128', v(vT2), v(KVP+4, 4), offset=1024)
        a.ds_write('ds_write_b32', v(vT2), v(KVP+8), offset=2048)
        a.label("L_nopark")
    def kv_publish():
        a.scmp('s_cmp_lg_u32', s(sTH), 0); a.other("s_cbranch_scc1 L_nopub")
        Q = TMP
        a.ds_read('ds_read_b128', v(Q, 4), v(vT2)); a.ds_read('ds_read_b128', v(Q+4, 4), v(vT2), offset=1024)
        a.ds_read('ds_read_b32', v(vT0), v(vT2), offset=2048)
        a.waitcnt(vm=vm.need('zf'), lgkm=0)
        for i in range(8): a.valu('v_add_f32', v(KVP+i), v(KVP+i), v(Q+i))
        a.valu('v_add_f32', v(KVP+8), v(KVP+8), v(vT0))
        a.valu('v_mov_b32', v(vT1), 0)
        spin(vFLAG, vT1, zf_off, "zf")
        a.salu('s_lshl_b32', s(t0), s(sC), 2); a.salu('s_add_u32', s(t0), s(t0), s(sCQ)); a.salu('s_lshl_b32', s(t0), s(t0), 12)
        a.salu('s_add_u32', s(t0), s(t0), hex(ACC))
        a.valu('v_lshlrev_b32', v(vT0), 2, v(vL))
        for i in range(8): a.bstore('buffer_atomic_add_f32', v(KVP+i), v(vT0), s(S_WS, 4), s(t0), offset=256*i)
        a.salu('s_mov_b32', 'exec_hi', 0)
        a.bstore('buffer_atomic_add_f32', v(KVP+8), v(vT0), s(S_WS, 4), s(t0), offset=2048)
        a.salu('s_mov_b64', 'exec', -1)
        a.label("L_nopub")
        vm.add('atom_marker')
        vm.q.pop()
        vm.mark_atom = len(vm.q)
    def kv_flag():
        a.scmp('s_cmp_lg_u32', s(sTH), 0); a.other("s_cbranch_scc1 L_nokf")
        a.waitcnt(vm=len(vm.q) - vm.mark_atom)
        def off():
            a.salu('s_lshl_b32', s(t0), s(sC), 2); a.salu('s_add_u32', s(t0), s(t0), s(sCQ)); a.salu('s_lshl_b32', s(t0), s(t0), 7)
            a.salu('s_lshl_b32', s(t1), s(sR), 2); a.salu('s_add_u32', s(t0), s(t0), s(t1)); a.salu('s_add_u32', s(t0), s(t0), hex(F_KF))
        flag_store(off)
        a.label("L_nokf")
    def h_epilogue():
        B = TMP; T = TMP + 16
        for i in range(4):
            for h in range(2):
                a.valu('v_lshlrev_b32', v(B+4*i+2*h), 16, v(vB1+2*i+h)); a.valu('v_and_b32', v(B+4*i+2*h+1), '0xffff0000', v(vB1+2*i+h))
        a.valu('v_lshlrev_b32', v(vT0), 4, v(vL))
        a.salu('s_mul_i32', s(t2), s(sR), 294912); a.salu('s_mul_i32', s(t3), s(sC), 7); a.salu('s_add_u32', s(t3), s(t3), s(sPB))
        a.salu('s_lshl_b32', s(t3), s(t3), 12); a.salu('s_add_u32', s(t2), s(t2), s(t3)); a.salu('s_lshl_b32', s(t3), s(sTH), 11); a.salu('s_add_u32', s(t2), s(t2), s(t3))
        a.salu('s_add_u32', s(t3), s(t2), 4096)
        for pp in range(2):
            for tb in range(2):
                vals = [ACC0 + ((2*pp+e)*2+tb)*4 + r for e in range(2) for r in range(4)]
                bs = [B + 4*(2*pp+e) + r for e in range(2) for r in range(4)]
                rbf_pairs(a, vals, [T+i for i in range(4)])
                for x, b in zip(vals, bs): a.valu('v_add_f32', v(x), v(x), v(b))
                rbf_pairs(a, vals, [T+i for i in range(4)])
                for x in vals: a.valu('v_max_f32', v(x), 0, v(x))
                for x in vals: a.valu('v_mul_f32', v(x), v(x), v(x))
                O = vals[0]
                a.valu('v_cvt_pk_bf16_f32', v(O), v(vals[0]), v(vals[1])); a.valu('v_cvt_pk_bf16_f32', v(O+1), v(vals[2]), v(vals[3]))
                a.valu('v_cvt_pk_bf16_f32', v(O+2), v(vals[4]), v(vals[5])); a.valu('v_cvt_pk_bf16_f32', v(O+3), v(vals[6]), v(vals[7]))
                a.bstore('buffer_store_dwordx4', v(O, 4), v(vT0), s(S_WS, 4), s(t2 + pp), offset=tb*1024, flags=COH); vm.add('hst')
    def allred(op, rs, tmp):
        for sw in ('v_permlane16_swap_b32', 'v_permlane32_swap_b32'):
            for r, t in zip(rs, tmp): a.valu('v_mov_b32', v(t), v(r))
            for r, t in zip(rs, tmp): a.valu(sw, v(r), v(t))
            for r, t in zip(rs, tmp): a.valu(op, v(r), v(r), v(t))
    PQ = TMP + 4
    def q_epilogue():
        QB = TMP; P = PQ; T = TMP + 12; M = WF; E = WF + 8; E2 = WF + 16; TT = WF + 24
        for tb in range(2):
            for h in range(2): a.valu('v_cvt_pk_bf16_f32', v(QB+2*tb+h), v(ACCQ+tb*4+2*h), v(ACCQ+tb*4+2*h+1))
        for tb in range(2): a.mfma(v(P+4*tb, 4), v(vWP, 2), v(QB+2*tb, 2), 0, op='v_mfma_f32_16x16x16_bf16')
        rbf_pairs(a, [P+i for i in range(8)], [T+i for i in range(4)])
        for tb in range(2):
            p = P + 4*tb
            a.valu('v_max3_f32', v(M+tb), v(p), v(p+1), v(p+2)); a.valu('v_max_f32', v(M+tb), v(M+tb), v(p+3))
            a.valu('v_min3_f32', v(M+2+tb), v(p), v(p+1), v(p+2)); a.valu('v_min_f32', v(M+2+tb), v(M+2+tb), v(p+3))
        allred('v_max_f32', [M, M+1], [TT, TT+1]); allred('v_min_f32', [M+2, M+3], [TT+2, TT+3])
        for i in range(8): a.valu('v_sub_f32', v(E+i), v(P+i), v(M+i//4))
        for i in range(8): a.valu('v_sub_f32', v(E2+i), v(M+2+i//4), v(P+i))
        for i in range(8): a.valu('v_mul_f32', v(E+i), hex(L2E), v(E+i))
        for i in range(8): a.valu('v_mul_f32', v(E2+i), hex(L2E), v(E2+i))
        for i in range(8): a.valu('v_exp_f32', v(E+i), v(E+i))
        for i in range(8): a.valu('v_exp_f32', v(E2+i), v(E2+i))
        for tb in range(2):
            for k, e in enumerate((E, E2)):
                d = M + 2*k + tb
                a.valu('v_add_f32', v(d), v(e+4*tb), v(e+4*tb+1)); a.valu('v_add_f32', v(TT), v(e+4*tb+2), v(e+4*tb+3)); a.valu('v_add_f32', v(d), v(d), v(TT))
        allred('v_add_f32', [M, M+1, M+2, M+3], [TT, TT+1, TT+2, TT+3])
        for i in range(4): a.valu('v_rcp_f32', v(M+i), v(M+i))
        for i in range(8): a.valu('v_mul_f32', v(E+i), v(E+i), v(M+i//4))
        for i in range(8): a.valu('v_mul_f32', v(E2+i), v(E2+i), v(M+2+i//4))
        for tb in range(2):
            o = P + 4*tb
            a.valu('v_cvt_pk_bf16_f32', v(o), v(E+4*tb), v(E+4*tb+1)); a.valu('v_cvt_pk_bf16_f32', v(o+1), v(E+4*tb+2), v(E+4*tb+3))
            a.valu('v_cvt_pk_bf16_f32', v(o+2), v(E2+4*tb), v(E2+4*tb+1)); a.valu('v_cvt_pk_bf16_f32', v(o+3), v(E2+4*tb+2), v(E2+4*tb+3))
    def kf_off():
        a.salu('s_lshl_b32', s(t0), s(sC), 2); a.salu('s_and_b32', s(t1), s(sCQ), 2); a.salu('s_add_u32', s(t0), s(t0), s(t1)); a.salu('s_lshl_b32', s(t0), s(t0), 7)
        a.salu('s_add_u32', s(t0), s(t0), hex(F_KF))
    def hf_off(base):
        def f():
            a.salu('s_lshl_b32', s(t0), s(sR), 8); a.salu('s_lshl_b32', s(t1), s(sW), 5); a.salu('s_add_u32', s(t0), s(t0), s(t1)); a.salu('s_add_u32', s(t0), s(t0), hex(base))
        return f
    def hf_own(base):
        def f():
            a.salu('s_lshl_b32', s(t0), s(sR), 8); a.salu('s_lshl_b32', s(t1), s(sC), 5); a.salu('s_add_u32', s(t0), s(t0), s(t1))
            a.salu('s_lshl_b32', s(t1), s(sW), 2); a.salu('s_add_u32', s(t0), s(t0), s(t1)); a.salu('s_add_u32', s(t0), s(t0), hex(base))
        return f
    vL4 = aK
    vL8 = aV
    KVD = ACC0
    for j in range(NST):
        a.waitcnt(vm=vm.need(('st', j)), lgkm=0); a.barrier()
        d = []
        if j == 0: d = dma_ops(3) + dma_ops(4)
        elif j in (1, 2): d = dma_ops(j + 4)
        elif j >= 4: d = dma_ops(j + 3)
        if j == 0:
            a.waitcnt(vm=vm.need('small'))
            a.valu('v_lshl_or_b32', v(vWP), v(vFLAG), 16, v(vWP)); a.valu('v_lshl_or_b32', v(vWP+1), v(vCUR+3), 16, v(vWP+1))
        if j == 1:
            a.salu('s_or_b32', s(t0), s(sR), s(sW)); a.scmp('s_cmp_lg_u32', s(t0), 0); a.other("s_cbranch_scc1 L_nozf")
            flag_store(zf_off)
            a.label("L_nozf")
            a.valu('v_lshrrev_b32', v(vT0), 4, v(vL)); a.valu('v_lshlrev_b32', v(vT1), 1, v(vT0)); a.valu('v_and_b32', v(vT2), 7, v(vL))
            a.valu('v_xor_b32', v(vT1), v(vT1), v(vT2)); a.valu('v_lshlrev_b32', v(vT1), 4, v(vT1)); a.valu('v_lshrrev_b32', v(vT2), 3, v(vL))
            a.valu('v_lshl_add_u32', v(vT1), v(vT2), 10, v(vT1)); a.salu('s_lshl_b32', s(t0), s(sC), 7); a.valu('v_add_u32', v(vDW), s(t0), v(vT1))
        if j == 3:
            zf_off(); a.valu('v_mov_b32', v(vT1), 0)
            a.bload('buffer_load_dword', v(vFLAG), v(vT1), s(S_WS, 4), s(t0), flags=COH); vm.add('zf')
        if j == 5: kv_publish()
        if j == 8: kv_flag()
        r = read_ops(2*j)
        interleave(mfma_ops(2*j - 1), r + d[:4], lead=2 if j else 8)
        if j == 4: stamp(); kv_epilogue(); stamp()
        if j == 12:
            stamp(); h_epilogue()
            a.valu('v_lshlrev_b32', v(vL4), 2, v(vL)); a.valu('v_and_b32', v(vL8), 7, v(vL)); a.valu('v_lshlrev_b32', v(vL8), 2, v(vL8))
            kf_off(); a.bload('buffer_load_dword', v(vFLAG), v(vL4), s(S_WS, 4), s(t0), flags=COH); vm.add('kf')
        if j == 13:
            a.waitcnt(vm=vm.need('kf'))
            flag_store(hf_own(F_HF)); vm.add('fl')
            spin(vFLAG, vL4, kf_off, "kf")
            a.valu('v_lshrrev_b32', v(vT0), 4, v(vL)); a.valu('v_lshlrev_b32', v(vT0), 4, v(vT0))
            a.salu('s_lshl_b32', s(t0), s(sC), 2); a.salu('s_and_b32', s(t1), s(sCQ), 2); a.salu('s_add_u32', s(t0), s(t0), s(t1)); a.salu('s_lshl_b32', s(t0), s(t0), 12)
            a.salu('s_add_u32', s(t0), s(t0), hex(ACC))
            for e in range(2):
                if e: a.salu('s_add_u32', s(t0), s(t0), 4096)
                for i in range(8): a.bload('buffer_load_dword', v(KVD+16*e+i), v(vL4), s(S_WS, 4), s(t0), offset=256*i, flags=COH)
                a.bload('buffer_load_dwordx4', v(KVD+16*e+8, 4), v(vT0), s(S_WS, 4), s(t0), offset=2048, flags=COH)
                a.bload('buffer_load_dwordx4', v(KVD+16*e+12, 4), v(vT0), s(S_WS, 4), s(t0), offset=2048+64, flags=COH)
                vm.add('kvd', 10)
        a.waitcnt(lgkm=0)
        r = read_ops(2*j + 1)
        interleave(mfma_ops(2*j), r + d[4:], lead=2)
    a.waitcnt(lgkm=0)
    for op in mfma_ops(27): op()
    stamp()
    q_epilogue()
    a.valu('v_lshlrev_b32', v(vT0), 4, v(vL)); a.salu('s_add_u32', s(t0), s(sWK), hex(MISC)); a.valu('v_add_u32', v(vT1), s(t0), v(vT0))
    a.valu('v_xor_b32', v(vT2), 1024, v(vT1))
    PH0, PH1 = WF, WF + 4
    a.salu('s_and_b32', s(t0), s(sCQ), 1); a.scmp('s_cmp_eq_u32', s(t0), 0); a.other("s_cbranch_scc1 L_x_even")
    a.ds_write('ds_write_b128', v(vT1), v(PQ, 4))
    for i in range(4): a.valu('v_mov_b32', v(PH1+i), v(PQ+4+i))
    a.waitcnt(lgkm=0); a.barrier()
    a.ds_read('ds_read_b128', v(PH0, 4), v(vT2))
    a.other("s_branch L_x_done")
    a.label("L_x_even")
    a.ds_write('ds_write_b128', v(vT1), v(PQ+4, 4))
    for i in range(4): a.valu('v_mov_b32', v(PH0+i), v(PQ+i))
    a.waitcnt(lgkm=0); a.barrier()
    a.ds_read('ds_read_b128', v(PH1, 4), v(vT2))
    a.label("L_x_done")
    stamp()
    hf_off(F_HF)(); a.bload('buffer_load_dword', v(vFLAG), v(vL8), s(S_WS, 4), s(t0), flags=COH); vm.add('hf')
    for op in dma_ops(17): op()
    a.waitcnt(vm=vm.need('kvd'), lgkm=0)
    O = WF + 8
    for e in range(2):
        KV = KVD + 16*e; Z = KV + 8; KA = TMP + 8*e; ZA = KA + 4; PH = WF + 4*e; T = TMP + 16
        for i in range(4): a.valu('v_cvt_pk_bf16_f32', v(KA+i), v(KV+2*i), v(KV+2*i+1))
        for i in range(4): a.valu('v_cvt_pk_bf16_f32', v(ZA+i), v(Z+2*i), v(Z+2*i+1))
        a.mfma(v(KV, 4), v(KA, 4), v(PH, 4), 0); a.mfma(v(Z, 4), v(ZA, 4), v(PH, 4), 0)
    for e in range(2):
        KV = KVD + 16*e; Z = KV + 8; T = TMP + 16
        rbf_pairs(a, [KV+i for i in range(4)], [T, T+1])
        a.valu('v_cvt_pk_bf16_f32', v(Z), v(Z), v(Z)); a.valu('v_lshlrev_b32', v(Z), 16, v(Z))
        a.valu('v_add_f32', v(Z), '0x358637bd', v(Z))
        a.valu('v_cvt_pk_bf16_f32', v(Z), v(Z), v(Z)); a.valu('v_lshlrev_b32', v(Z), 16, v(Z))
        a.valu('v_rcp_f32', v(Z+1), v(Z))
        a.valu('v_fma_f32', v(Z+2), '-' + v(Z), v(Z+1), 1.0); a.valu('v_fma_f32', v(Z+1), v(Z+2), v(Z+1), v(Z+1))
        for i in range(4): a.valu('v_mul_f32', v(KV+i), v(KV+i), v(Z+1))
        a.valu('v_cvt_pk_bf16_f32', v(O+2*e), v(KV), v(KV+1)); a.valu('v_cvt_pk_bf16_f32', v(O+2*e+1), v(KV+2), v(KV+3))
    a.salu('s_mul_i32', s(t2), s(sR), 294912); a.valu('v_lshlrev_b32', v(vT0), 4, v(vL)); a.valu('v_add_u32', v(vAO), s(t2), v(vT0))
    a.salu('s_lshl_b32', s(t0), s(sC), 1); a.salu('s_lshr_b32', s(t1), s(sCQ), 1); a.salu('s_add_u32', s(t0), s(t0), s(t1)); a.salu('s_add_u32', s(t0), s(t0), 56)
    a.salu('s_lshl_b32', s(t0), s(t0), 12); a.salu('s_lshl_b32', s(t1), s(sTH), 11); a.salu('s_add_u32', s(t0), s(t0), s(t1))
    a.salu('s_and_b32', s(t1), s(sCQ), 1); a.salu('s_lshl_b32', s(t1), s(t1), 10); a.salu('s_add_u32', s(t0), s(t0), s(t1))
    a.bstore('buffer_store_dwordx4', v(O, 4), v(vAO), s(S_WS, 4), s(t0), flags=COH); vm.add('ost')
    A2 = 32; WF2 = 96; AF = 128; aW = aF
    afslot = lambda p: p if p < 8 else 0
    def ldA(p):
        if p < 7: a.salu('s_lshl_b32', s(t1), s(KS+p), 12)
        else:
            a.salu('s_lshl_b32', s(t1), s(sW), 13); a.salu('s_add_u32', s(t1), s(t1), (56 + p - 7) * 4096)
        for tb in range(4):
            a.bload('buffer_load_dwordx4', v(AF + (afslot(p)*4+tb)*4, 4), v(vAO), s(S_WS, 4), s(t1), offset=tb*1024, flags=COH); vm.add(('A', p))
    a.waitcnt(vm=vm.need('hf'))
    spin(vFLAG, vL8, hf_off(F_HF), "hf")
    stamp()
    for p in range(7): ldA(p)
    a.valu('v_lshrrev_b32', v(vT0), 4, v(vL))
    a.valu('v_and_b32', v(vT1), 15, v(vL)); a.valu('v_lshrrev_b32', v(vT2), 2, v(vT1)); a.valu('v_lshl_add_u32', v(vCUR), v(vT0), 2, v(vT2))
    a.valu('v_lshrrev_b32', v(vT2), 1, v(vT2)); a.valu('v_and_b32', v(aW), 1, v(vT0)); a.valu('v_lshl_or_b32', v(vT2), v(aW), 1, v(vT2))
    a.valu('v_and_b32', v(vT1), 3, v(vT1)); a.valu('v_lshlrev_b32', v(vT1), 3, v(vT1)); a.valu('v_lshl_add_u32', v(vT1), v(vT2), 5, v(vT1))
    a.valu('v_lshl_add_u32', v(vT1), v(vCUR), 7, v(vT1)); a.salu('s_lshl_b32', s(t1), s(sWK), 2); a.valu('v_add_u32', v(aW), s(t1), v(vT1))
    for nb in range(1, 4): a.valu('v_xor_b32', v(aW+nb), nb << 5, v(aW))
    for nb in range(4): a.valu('v_add_u32', v(vCUR+nb), '0x10000', v(aW+nb))
    a.waitcnt(vm=vm.need('ost'))
    flag_store(hf_own(F_OF)); vm.add('fl')
    srd(a, S_B2, 20, 1024); srd(a, S_OUT, 22, 2097152)
    def reads2(p):
        sb = REG(14 + p); hi = sb >= 65536; lo = sb - (65536 if hi else 0)
        ops = []
        for nb in range(4):
            r0 = WF2 + (p & 1) * 16 + nb * 4; b = (vCUR if hi else aW) + nb
            ops.append(lambda r0=r0, b=b: a.ds_read('ds_read_b64_tr_b16', v(r0, 2), v(b), offset=lo))
            ops.append(lambda r0=r0, b=b: a.ds_read('ds_read_b64_tr_b16', v(r0+2, 2), v(b), offset=lo + 2048))
        return ops
    def mfmas2(p):
        ops = []
        for nb in range(4):
            for tb in range(4):
                d = v(A2 + (nb*4+tb)*4, 4)
                ops.append(lambda d=d, nb=nb, tb=tb: a.mfma(d, v(WF2 + (p & 1)*16 + nb*4, 4), v(AF + (afslot(p)*4+tb)*4, 4), d if p else 0))
        return ops
    vXX, vBB, vOO = AF + 16, AF + 20, vF
    for p in range(10):
        fill = []
        if p < 9:
            a.waitcnt(vm=vm.need(('st', 14 + p)), lgkm=0)
            fill = reads2(p)
            if p >= 1 and p + 3 <= 8: fill += dma_ops(14 + p + 3)
        else: a.waitcnt(lgkm=0)
        if p >= 1:
            for f in fill[:4]: f()
            fill = fill[4:]
            a.waitcnt(vm=vm.need(('A', p-1)))
            interleave(mfmas2(p - 1), fill, lead=0, per=1)
        else:
            for f in fill: f()
        if p == 3:
            hf_off(F_OF)(); a.bload('buffer_load_dword', v(vFLAG), v(vL8), s(S_WS, 4), s(t0), flags=COH); vm.add('of')
            a.valu('v_lshrrev_b32', v(vT0), 3, v(vL)); a.valu('v_lshlrev_b32', v(vT1), 2, v(vL8))
            a.salu('s_lshl_b32', s(t0), s(sR), 6); a.salu('s_lshl_b32', s(t1), s(sW), 3); a.salu('s_add_u32', s(t0), s(t0), s(t1))
            a.valu('v_add_u32', v(vT0), s(t0), v(vT0)); a.valu('v_lshl_add_u32', v(vOO), v(vT0), 10, v(vT1))
            a.salu('s_lshl_b32', s(t3), s(sC), 7)
            a.bload('buffer_load_dwordx4', v(vXX, 4), v(vOO), s(S_X, 4), s(t3)); a.bload('buffer_load_dwordx4', v(vBB, 4), v(vT1), s(S_B2, 4), s(t3)); vm.add('xb', 2)
        if p == 5:
            a.waitcnt(vm=vm.need('of'))
            spin(vFLAG, vL8, hf_off(F_OF), "of")
            ldA(7); ldA(8)
    stamp()
    a.barrier()
    a.valu('v_lshrrev_b32', v(vT0), 4, v(vL)); a.valu('v_and_b32', v(vT1), 15, v(vL)); a.valu('v_xor_b32', v(vT0), v(vT0), v(vT1))
    a.valu('v_lshlrev_b32', v(vT0), 4, v(vT0)); a.valu('v_lshl_add_u32', v(vT0), v(vT1), 8, v(vT0)); a.salu('s_lshl_b32', s(t1), s(sWK), 4); a.valu('v_add_u32', v(aW), s(t1), v(vT0))
    for nb in range(1, 4): a.valu('v_xor_b32', v(aW+nb), nb << 6, v(aW))
    for nb in range(4):
        for tb in range(4): a.ds_write('ds_write_b128', v(aW+nb), v(A2 + (nb*4+tb)*4, 4), offset=tb*4096)
    a.valu('v_lshrrev_b32', v(vT0), 3, v(vL)); a.salu('s_lshl_b32', s(t1), s(sW), 3); a.valu('v_add_u32', v(vT0), s(t1), v(vT0))
    a.valu('v_lshrrev_b32', v(vT1), 1, v(vL8)); a.valu('v_and_b32', v(vT2), 15, v(vT0)); a.valu('v_xor_b32', v(vT1), v(vT1), v(vT2))
    a.valu('v_lshlrev_b32', v(vT1), 4, v(vT1))
    RA = vCUR
    a.valu('v_lshl_add_u32', v(RA), v(vT0), 8, v(vT1)); a.valu('v_xor_b32', v(RA+1), 16, v(RA))
    for e in range(2): a.valu('v_add_u32', v(RA+2+e), '0x10000', v(RA+e))
    a.waitcnt(lgkm=0); a.barrier()
    R = AF + 32
    for p in range(8):
        for e in range(2): a.ds_read('ds_read_b128', v(R + (p*2+e)*4, 4), v(RA + 2*(p//4) + e), offset=(p % 4) * 16384)
    U = WF2
    for i in range(4):
        a.valu('v_lshlrev_b32', v(U+2*i), 16, v(vBB+i)); a.valu('v_and_b32', v(U+2*i+1), '0xffff0000', v(vBB+i))
        a.valu('v_lshlrev_b32', v(U+8+2*i), 16, v(vXX+i)); a.valu('v_and_b32', v(U+8+2*i+1), '0xffff0000', v(vXX+i))
    for i in range(8): a.valu('v_add_f32', v(U+i), v(U+i), v(U+8+i))
    a.waitcnt(lgkm=0)
    for p in range(1, 8):
        for i in range(8): a.valu('v_add_f32', v(R+i), v(R+i), v(R+p*8+i))
    for i in range(8): a.valu('v_add_f32', v(R+i), v(R+i), v(U+i))
    for i in range(4): a.valu('v_cvt_pk_bf16_f32', v(U+i), v(R+2*i), v(R+2*i+1))
    a.bstore('buffer_store_dwordx4', v(U, 4), v(vOO), s(S_OUT, 4), s(t3))
    a.salu('s_or_b32', s(t0), 's2', s(sW)); a.scmp('s_cmp_lg_u32', s(t0), 0); a.other("s_cbranch_scc1 L_noep")
    flag_store(lambda: a.salu('s_mov_b32', s(t0), hex(F_EPOCH)))
    a.label("L_noep")
    stamp()
    if STAMPS:
        d = S_WQ; vt = TMP
        a.waitcnt(lgkm=0)
        a.salu('s_add_u32', s(d), s(S_WS), hex(STAMP_OFF)); a.salu('s_addc_u32', s(d+1), s(S_WS+1), 0)
        a.salu('s_mov_b32', s(d+2), '0x100000'); a.salu('s_mov_b32', s(d+3), '0x00020000')
        a.salu('s_lshl_b32', 's3', s(sW), 15); a.salu('s_lshl_b32', 's0', 's2', 7); a.salu('s_add_u32', 's3', 's3', 's0')
        a.valu('v_mov_b32', v(vt+2), 0); a.salu('s_mov_b64', 'exec', 1)
        for i in range(nst[0]):
            a.valu('v_mov_b32', v(vt), s(stamp_pairs[i])); a.valu('v_mov_b32', v(vt+1), s(stamp_pairs[i]+1))
            a.bstore('buffer_store_dwordx2', v(vt, 2), v(vt+2), s(d, 4), 's3', offset=i * 8); a.waitcnt(vm=0)
    a.label("L_end"); a.other("s_endpgm")
    a.label("L_code_end")
    return a.text(), kernel_desc(kn, 256), 163840

k, d, l = gen()
hdr = open("cdna_kernels/" + NAME + ".s.ref").read().split("; Override")[0]
out = hdr + f"; @launch grid=(256,1,1) block=(512,1,1) lds={l}\n"
out += f'.amdgcn_target "amdgcn-amd-amdhsa--gfx950"\n.text\n.set CODE_BYTES, L_code_end - {NAME}_kernel - 128\n' + k
out += '.section .rodata,"a"\n.p2align 6\n' + d
sys.stdout.write(out)
```

```python
import sys
from asmlib import *
STAMPS = '--stamps' in sys.argv
EXP = [x[2:] for x in sys.argv[1:] if x.startswith('--')]
def opt(name, default):
    for x in EXP:
        if x.startswith(name + '='): return int(x.split('=')[1])
    return default
NAME = "parallel_sum__linear_kernel_hedgehog__dense_activation_squared_relu__prompt"
AWS = 0; PART = 0x1000000; RED = 0x1800000; FL = 0x1A00000; WS_BYTES = 0x2000000; STAMP_OFF = 0x8000000
F_EPOCH = FL; F_HA = FL + 0x4000; F_HB = FL + 0x8000; F_OF = FL + 0xC000
L2E = 0x3fb8aa3b
DPPM = "row_mask:0xf bank_mask:0xf"
COH = "sc0 sc1"
BGRATE = opt('bg', 8)

class VM:
    def __init__(self): self.q = [[], []]
    def add(self, tag, n=1, cls=None):
        for c in (0, 1):
            if cls is None or cls == c: self.q[c] += [tag] * n
    def need1(self, c, tags):
        last = -1
        for i, t in enumerate(self.q[c]):
            if t in tags: last = i
        if last < 0: return None
        return min(63, len(self.q[c]) - 1 - last)

class Rec:
    def __init__(self, a): self.a = a; self.items = []
    def __getattr__(self, name):
        f = getattr(self.a, name)
        def rec(*args, **kw): self.items.append(lambda: f(*args, **kw))
        return rec
    def block(self, fn): self.items.append(fn)
    def gate(self, cond): self.items.append(('gate', cond))

def srd(a, d, base, nbytes):
    a.salu('s_mov_b32', s(d), s(base)); a.salu('s_and_b32', s(d+1), s(base+1), 0xffff)
    a.salu('s_mov_b32', s(d+2), hex(nbytes)); a.salu('s_mov_b32', s(d+3), '0x00020000')

def rbf_pairs(a, vals, tmp):
    for i in range(0, len(vals), 2):
        a.valu('v_cvt_pk_bf16_f32', v(tmp[i//2]), v(vals[i]), v(vals[i+1]))
    for i in range(0, len(vals), 2):
        a.valu('v_lshlrev_b32', v(vals[i]), 16, v(tmp[i//2]))
        a.valu('v_and_b32', v(vals[i+1]), '0xffff0000', v(tmp[i//2]))

def allred(a, op, rs, tmp):
    for sw in ('v_permlane16_swap_b32', 'v_permlane32_swap_b32'):
        for r, t in zip(rs, tmp): a.valu('v_mov_b32', v(t), v(r))
        for r, t in zip(rs, tmp): a.valu(sw, v(r), v(t))
        for r, t in zip(rs, tmp): a.valu(op, v(r), v(r), v(t))

def gen():
    a = Asm(); vm = VM()
    kn = NAME + "_kernel"
    a.raw(kernel_header(kn))
    S_X, S_WQ, S_W1, S_WP, S_B1, S_WS, S_W2, S_WO, S_B2, S_OUT = 24, 28, 32, 36, 40, 44, 48, 52, 36, 40
    sR, sC, sW, sROT, sWK, sTH, sCQ, sK0, sTAG = 56, 57, 58, 59, 60, 61, 62, 63, 64
    t0, t1, t2, t3 = 65, 66, 67, 68
    b0, b1_ = 22, 23
    T1 = 70; KS = 86
    sSPIN = 93; sRED = 69; sSL = 3
    u0, u1 = 0, 1
    stamp_pairs = [94, 96, 98, 100, 4, 6, 8, 10, 12, 14, 16, 18]
    nst = [0]
    def stamp(kind='n'):
        if STAMPS and ((kind == 'it') == ('iters' in EXP) or nst[0] == 0) and nst[0] < len(stamp_pairs):
            a.other(f"{'s_memtime' if 'clk' in EXP else 's_memrealtime'} {s(stamp_pairs[nst[0]],2)}"); nst[0] += 1
    wl = [0]
    def vwait(*tags, lgkm=None):
        n0, n1 = vm.need1(0, tags), vm.need1(1, tags)
        if n0 == n1: a.waitcnt(vm=n0, lgkm=lgkm); return
        wl[0] += 1; L = f"L_w{wl[0]}"
        a.scmp('s_cmp_eq_u32', s(sTH), 0); a.other(f"s_cbranch_scc1 {L}_0")
        if n1 is not None: a.waitcnt(vm=n1)
        a.other(f"s_branch {L}_e")
        a.label(f"{L}_0")
        if n0 is not None: a.waitcnt(vm=n0)
        a.label(f"{L}_e")
        if lgkm is not None: a.waitcnt(lgkm=lgkm)
    a.scmp('s_cmp_ge_u32', 's2', 256); a.other("s_cbranch_scc1 L_end")
    stamp()
    for d, off in ((4, 0), (14, 88), (6, 8), (8, 16), (10, 40), (12, 48), (16, 56), (18, 24), (20, 64), (22, 72)):
        a.other(f"s_load_dwordx2 {s(d,2)}, s[0:1], {off}")
    vL, vKV, vF, vQ, aK, aV, aF, aQ, vWP, vB1 = 1, 2, 3, 4, 5, 6, 7, 11, 12, 14
    vCUR = 22; vFLAG = 28; vT0, vT1, vT2 = 29, 30, 31
    vU0, vU1 = 9, 10
    ACCA = 32; ACCB = 48; ACCQ = 64; WF = 72; TMP = 104; XF = 128
    vEP = vCUR + 2
    a.valu('v_lshrrev_b32', v(vT0), 6, 'v0'); a.valu('v_and_b32', v(vL), 63, 'v0')
    a.valu('v_readfirstlane_b32', s(sW), v(vT0))
    a.salu('s_and_b32', s(t0), 's2', 7); a.salu('s_lshr_b32', s(t1), 's2', 3)
    if 'nopf' not in EXP:
        a.other(f"s_getpc_b64 {s(S_W2,2)}")
        a.salu('s_and_b32', s(S_W2+1), s(S_W2+1), 0xffff); a.salu('s_mov_b32', s(S_W2+2), 'CODE_BYTES'); a.salu('s_mov_b32', s(S_W2+3), '0x00020000')
        a.salu('s_and_b32', s(t2), s(t1), 3); a.salu('s_lshl_b32', s(t2), s(t2), 13)
        a.valu('v_lshlrev_b32', v(vT1), 7, v(vL))
        a.scmp('s_cmp_lg_u32', s(sW), 7); a.other("s_cbranch_scc1 L_nopf")
        a.bload('buffer_load_dword', v(vEP), v(vT1), s(S_W2, 4), s(t2))
        a.label("L_nopf")
    a.salu('s_lshr_b32', s(t2), s(t0), 1); a.salu('s_lshl_b32', s(t2), s(t2), 3); a.salu('s_lshr_b32', s(t3), s(t1), 2)
    a.salu('s_add_u32', s(sR), s(t2), s(t3))
    a.salu('s_and_b32', s(t2), s(t0), 1); a.salu('s_lshl_b32', s(t2), s(t2), 2); a.salu('s_and_b32', s(sC), s(t1), 3)
    a.salu('s_add_u32', s(sC), s(sC), s(t2))
    if 'norot' in EXP: a.salu('s_mov_b32', s(t3), 0)
    a.valu('v_lshrrev_b32', v(vT0), 3, v(vL)); a.valu('v_and_b32', v(vT1), 7, v(vL))
    a.salu('s_lshl_b32', s(t0), s(sR), 6); a.salu('s_lshl_b32', s(t1), s(sW), 3); a.salu('s_add_u32', s(t0), s(t0), s(t1))
    a.valu('v_add_u32', v(vT2), s(t0), v(vT0)); a.valu('v_lshlrev_b32', v(vT2), 10, v(vT2)); a.valu('v_lshl_add_u32', v(vT2), v(vT1), 4, v(vT2))
    a.waitcnt(lgkm=0)
    srd(a, S_X, 4, 2097152)
    X = 32; F = 64
    for j in range(8):
        a.salu('s_add_u32', s(t2), s(t3), j); a.salu('s_and_b32', s(t2), s(t2), 7); a.salu('s_lshl_b32', s(t2), s(t2), 7)
        a.bload('buffer_load_dwordx4', v(X+4*j, 4), v(vT2), s(S_X, 4), s(t2)); vm.add('x')
    srd(a, S_WS, 14, WS_BYTES)
    a.valu('v_mov_b32', v(TMP), 0); a.salu('s_mov_b32', s(t2), hex(F_EPOCH))
    a.bload('buffer_load_dword', v(vEP), v(TMP), s(S_WS, 4), s(t2), flags=COH); vm.add('x')
    a.salu('s_lshl_b32', s(sROT), s(t3), 1)
    a.salu('s_lshl_b32', s(sWK), s(sW), 10); a.salu('s_lshr_b32', s(sTH), s(sW), 2); a.salu('s_and_b32', s(sCQ), s(sW), 3)
    a.salu('s_mul_i32', s(sK0), s(sC), 7); a.salu('s_and_b32', s(t2), s(sC), 1); a.salu('s_sub_u32', s(sK0), s(sK0), s(t2))
    srd(a, S_WQ, 6, 1572864)
    for p in range(16):
        a.salu('s_add_u32', s(T1+p), s(sROT), p); a.salu('s_and_b32', s(T1+p), s(T1+p), 15)
    vXW = vCUR + 4
    a.valu('v_add_u32', v(vT0), s(t1), v(vT0))
    a.valu('v_and_b32', v(vT2), 15, v(vT0)); a.valu('v_xor_b32', v(vT2), v(vT2), v(vT1)); a.valu('v_lshlrev_b32', v(vT2), 4, v(vT2))
    a.valu('v_lshl_add_u32', v(vXW), v(vT0), 10, v(vT2))
    vG, vI = TMP + 4, TMP + 5
    a.valu('v_lshrrev_b32', v(vG), 4, v(vL)); a.valu('v_and_b32', v(vI), 15, v(vL))
    vCH, vRW = TMP + 10, TMP + 11
    a.salu('s_lshr_b32', s(t0), s(sW), 1); a.salu('s_and_b32', s(t0), s(t0), 1); a.salu('s_lshl_b32', s(t0), s(t0), 3)
    a.valu('v_lshlrev_b32', v(vT0), 1, v(vG)); a.valu('v_or_b32', v(vT0), s(t0), v(vT0)); a.valu('v_xor_b32', v(vCH), v(vT0), v(vI))
    a.valu('v_lshrrev_b32', v(vT1), 3, v(vCH)); a.valu('v_lshlrev_b32', v(vT1), 10, v(vT1))
    a.valu('v_and_b32', v(vT0), 7, v(vCH)); a.valu('v_lshl_add_u32', v(vT1), v(vT0), 4, v(vT1))
    a.salu('s_lshl_b32', s(t0), s(sW), 2); a.valu('v_add_u32', v(vRW), s(t0), v(vG))
    a.valu('v_mul_u32_u24', v(vT0), 3072, v(vRW)); a.valu('v_add_u32', v(vT1), v(vT1), v(vT0))
    a.salu('s_lshl_b32', s(t0), s(sC), 7); a.salu('s_add_u32', s(t0), s(t0), 1024)
    a.valu('v_add_u32', v(vKV), s(t0), v(vT1))
    NST = 14
    REG = lambda i: {0: 2, 1: 3, 2: 4}.get(i, (i - 3) % 4) * 32768
    MISC = 4 * 32768
    vDW, vAO = vKV, vQ
    def dma_ops(i):
        ops = []
        for q in range(4):
            def op(q=q):
                if i < 14: a.salu('s_add_u32', 'm0', s(sWK), hex(REG(i) + q * 8192))
                if i < 4:
                    a.salu('s_mul_i32', s(t0), s(T1 + 4*i + q), 98304); a.bload_lds(v(vKV), s(S_WQ, 4), s(t0))
                elif 12 <= i < 14:
                    a.salu('s_add_u32', s(t0), s(sTH), s(T1 + 8*(i-12) + 2*q)); a.salu('s_and_b32', s(t0), s(t0), 15)
                    a.salu('s_mul_i32', s(t0), s(t0), 98304); a.bload_lds(v(vQ), s(S_WQ, 4), s(t0))
                elif i < 14:
                    hf = (i - 4) >> 2; jj = (i - 4) & 3
                    a.salu('s_mul_i32', s(t0), s(T1 + 4*jj + q), 114688)
                    if hf: a.salu('s_add_u32', s(t0), s(t0), 256)
                    a.bload_lds(v(vF), s(S_W1, 4), s(t0))
                else:
                    p = i - 14
                    a.salu('s_lshl_b32', s(t1), s(sWK), 2); a.salu('s_add_u32', 'm0', s(t1), hex(REG(i) + q * 1024))
                    if p < 7:
                        a.salu('s_lshl_b32', s(t0), s(KS+p), 15)
                        if q: a.salu('s_add_u32', s(t0), s(t0), q * 8192)
                        a.bload_lds(v(vDW), s(S_W2, 4), s(t0))
                    else:
                        a.salu('s_lshl_b32', s(t0), s(sW), 16); a.salu('s_add_u32', s(t0), s(t0), (p - 7) * 32768 + q * 8192)
                        a.bload_lds(v(vDW), s(S_WO, 4), s(t0))
                vm.add(('st', i))
            ops.append(op)
        return ops
    srd(a, S_WP, 8, 16384); srd(a, S_B1, 12, 3584)
    a.salu('s_lshl_b32', s(t0), s(sC), 2); a.salu('s_add_u32', s(t0), s(t0), s(sCQ)); a.salu('s_lshl_b32', s(t0), s(t0), 9)
    a.valu('v_lshlrev_b32', v(vT0), 7, v(vG)); a.valu('v_lshl_add_u32', v(vT0), v(vI), 1, v(vT0))
    a.barrier()
    a.bload('buffer_load_ushort', v(vWP), v(vT0), s(S_WP, 4), s(t0), offset=0)
    a.bload('buffer_load_ushort', v(vFLAG), v(vT0), s(S_WP, 4), s(t0), offset=32)
    a.bload('buffer_load_ushort', v(vWP+1), v(vT0), s(S_WP, 4), s(t0), offset=64)
    a.bload('buffer_load_ushort', v(vCUR+3), v(vT0), s(S_WP, 4), s(t0), offset=96); vm.add('small', 4)
    for i in range(3):
        for op in dma_ops(i): op()
    a.salu('s_add_u32', s(t0), s(sK0), s(sCQ)); a.salu('s_lshl_b32', s(t0), s(t0), 6)
    a.valu('v_lshlrev_b32', v(vT0), 3, v(vG))
    for hf in range(2):
        for e in range(2):
            a.bload('buffer_load_dwordx2', v(vB1+4*hf+2*e, 2), v(vT0), s(S_B1, 4), s(t0), offset=256*hf+32*e); vm.add('b1')
    srd(a, S_W1, 10, 1835008); srd(a, S_W2, 16, 1835008); srd(a, S_WO, 18, 524288)
    if 'notouch' not in EXP:
        a.salu('s_lshl_b32', s(t0), s(sROT), 5); a.salu('s_lshl_b32', s(t1), s(sW), 3); a.salu('s_add_u32', s(t0), s(t0), s(t1))
        a.valu('v_and_b32', v(vT0), 7, v(vL)); a.valu('v_add_u32', v(vT0), s(t0), v(vT0))
        a.valu('v_mul_u32_u24', v(vT1), 3584, v(vT0)); a.valu('v_lshrrev_b32', v(vT2), 3, v(vL)); a.valu('v_and_b32', v(vT2), 3, v(vT2)); a.valu('v_lshl_add_u32', v(vT1), v(vT2), 7, v(vT1))
        a.salu('s_lshl_b32', s(t1), s(sK0), 6)
        a.bload('buffer_load_dword', 'v0', v(vT1), s(S_W1, 4), s(t1))
        a.valu('v_mul_u32_u24', v(vT1), 3072, v(vT0)); a.salu('s_lshl_b32', s(t1), s(sC), 7)
        a.bload('buffer_load_dword', 'v0', v(vT1), s(S_WQ, 4), s(t1))
        a.valu('v_lshlrev_b32', v(vT1), 10, v(vT0))
        a.bload('buffer_load_dword', 'v0', v(vT1), s(S_WO, 4), s(t1))
        a.salu('s_lshl_b32', s(t0), s(sROT), 2); a.salu('s_add_u32', s(t0), s(t0), s(sW)); a.salu('s_mul_i32', s(t0), s(t0), 28)
        a.valu('v_min_u32', v(vT0), 27, v(vL)); a.valu('v_add_u32', v(vT0), s(t0), v(vT0)); a.valu('v_lshlrev_b32', v(vT1), 10, v(vT0))
        a.bload('buffer_load_dword', 'v0', v(vT1), s(S_W2, 4), s(t1))
        vm.add('touch', 4)
    a.valu('v_mul_u32_u24', v(vT0), 3584, v(vRW)); a.valu('v_lshl_add_u32', v(vT0), v(vCH), 4, v(vT0))
    a.salu('s_lshl_b32', s(t0), s(sK0), 6); a.valu('v_add_u32', v(vF), s(t0), v(vT0))
    a.valu('v_and_b32', v(vT0), 1, v(vG)); a.salu('s_and_b32', s(t0), s(sW), 1); a.salu('s_lshl_b32', s(t0), s(t0), 1)
    a.valu('v_or_b32', v(vT0), s(t0), v(vT0)); a.valu('v_lshlrev_b32', v(vT0), 1, v(vT0))
    a.valu('v_and_b32', v(vT1), 7, v(vL)); a.valu('v_xor_b32', v(vT1), v(vT1), v(vT0)); a.valu('v_lshlrev_b32', v(vT1), 4, v(vT1))
    a.valu('v_lshrrev_b32', v(vT0), 3, v(vL)); a.salu('s_lshl_b32', s(t0), s(sCQ), 3); a.valu('v_add_u32', v(vT0), s(t0), v(vT0))
    a.valu('v_mul_u32_u24', v(vT0), 3072, v(vT0)); a.valu('v_add_u32', v(vT1), v(vT1), v(vT0))
    a.salu('s_lshl_b32', s(t0), s(sC), 7); a.valu('v_add_u32', v(vQ), s(t0), v(vT1))
    vRR, vROW, vFS, vC8 = TMP + 6, TMP + 7, TMP + 8, TMP + 9
    a.valu('v_lshrrev_b32', v(vRR), 2, v(vI)); a.valu('v_lshl_add_u32', v(vROW), v(vG), 3, v(vRR))
    a.valu('v_and_b32', v(vT0), 1, v(vG)); a.valu('v_lshl_or_b32', v(vFS), v(vT0), 2, v(vRR))
    a.valu('v_and_b32', v(vC8), 3, v(vI)); a.valu('v_lshlrev_b32', v(vC8), 3, v(vC8))
    a.valu('v_xor_b32', v(vT1), s(sCQ), v(vFS)); a.valu('v_lshl_add_u32', v(vT1), v(vT1), 5, v(vC8)); a.valu('v_lshl_add_u32', v(aK), v(vROW), 8, v(vT1))
    a.valu('v_xor_b32', v(aV), 128, v(aK))
    a.salu('s_lshl_b32', s(t0), s(sCQ), 1)
    a.valu('v_xor_b32', v(vT1), s(t0), v(vFS)); a.valu('v_lshl_add_u32', v(vT1), v(vT1), 5, v(vC8)); a.valu('v_lshl_add_u32', v(aF), v(vROW), 8, v(vT1))
    a.valu('v_xor_b32', v(aF+1), 32, v(aF))
    a.valu('v_lshrrev_b32', v(vT1), 1, v(vRR)); a.valu('v_lshl_or_b32', v(vT1), v(vT0), 1, v(vT1)); a.valu('v_xor_b32', v(vT1), s(sCQ), v(vT1))
    a.valu('v_lshl_add_u32', v(vT1), v(vT1), 5, v(vC8)); a.valu('v_lshl_add_u32', v(aQ), v(vROW), 7, v(vT1))
    vXR = vCUR + 5
    a.valu('v_xor_b32', v(vT1), v(vG), v(vI)); a.valu('v_lshlrev_b32', v(vT1), 4, v(vT1)); a.valu('v_lshl_add_u32', v(vT1), v(vI), 10, v(vT1))
    a.salu('s_lshl_b32', s(t0), s(sTH), 15); a.valu('v_add_u32', v(vXR), s(t0), v(vT1))
    a.salu('s_lshr_b32', s(t0), s(sROT), 1); a.salu('s_mul_i32', s(t1), s(sW), 7)
    a.salu('s_mul_i32', s(t2), s(t0), 11); a.salu('s_lshr_b32', s(t2), s(t2), 5); a.salu('s_mul_i32', s(t2), s(t2), 3); a.salu('s_sub_u32', s(t2), s(t0), s(t2))
    for p in range(3):
        a.salu('s_add_u32', s(t3), s(t2), p); a.salu('s_sub_u32', s(KS+p), s(t3), 3); a.scmp('s_cmp_ge_u32', s(t3), 3)
        a.salu('s_cselect_b32', s(KS+p), s(KS+p), s(t3)); a.salu('s_add_u32', s(KS+p), s(KS+p), s(t1))
    for p in range(4):
        a.salu('s_add_u32', s(t3), s(t0), p); a.salu('s_and_b32', s(t3), s(t3), 3); a.salu('s_add_u32', s(t3), s(t3), s(t1)); a.salu('s_add_u32', s(KS+3+p), s(t3), 3)
    vwait('x')
    stamp()
    a.valu('v_readfirstlane_b32', s(sTAG), v(vEP))
    for j in range(32):
        a.valu('v_lshlrev_b32', v(F+2*j), 16, v(X+j)); a.valu('v_and_b32', v(F+2*j+1), '0xffff0000', v(X+j))
    a.salu('s_add_u32', s(sTAG), s(sTAG), 1)
    S0 = X
    for k in range(4): a.valu('v_add_f32', v(S0+k), v(F+k), v(F+4+k))
    for j in range(8, 64): a.valu('v_add_f32', v(S0+j%4), v(S0+j%4), v(F+j))
    a.valu('v_add_f32', v(S0), v(S0), v(S0+1)); a.valu('v_add_f32', v(S0+2), v(S0+2), v(S0+3)); a.valu('v_add_f32', v(S0), v(S0), v(S0+2))
    def red8(r):
        a.valu('v_add_f32_dpp', v(r), v(r), v(r), mod="quad_perm:[1,0,3,2] " + DPPM)
        a.valu('v_add_f32_dpp', v(r), v(r), v(r), mod="quad_perm:[2,3,0,1] " + DPPM)
        a.valu('v_add_f32_dpp', v(r), v(r), v(r), mod="row_half_mirror " + DPPM)
    red8(S0)
    vMEAN, vMB = S0 + 4, S0 + 5
    a.valu('v_mul_f32', v(vMEAN), '0x3b000000', v(S0))
    a.valu('v_cvt_pk_bf16_f32', v(vMB), v(vMEAN), v(vMEAN)); a.valu('v_lshlrev_b32', v(vMB), 16, v(vMB))
    for j in range(64): a.valu('v_sub_f32', v(F+j), v(F+j), v(vMB))
    for k in range(4): a.valu('v_mul_f32', v(S0+k), v(F+k), v(F+k))
    for j in range(4, 64): a.valu('v_fmac_f32', v(S0+j%4), v(F+j), v(F+j))
    a.valu('v_add_f32', v(S0), v(S0), v(S0+1)); a.valu('v_add_f32', v(S0+2), v(S0+2), v(S0+3)); a.valu('v_add_f32', v(S0), v(S0), v(S0+2))
    red8(S0)
    a.valu('v_sub_f32', v(vMEAN), v(vMEAN), v(vMB))
    a.valu('v_mul_f32', v(S0), '0x3b000000', v(S0))
    a.valu('v_fma_f32', v(S0), '-' + v(vMEAN), v(vMEAN), v(S0)); a.valu('v_max_f32', v(S0), 0, v(S0))
    a.valu('v_cvt_pk_bf16_f32', v(S0), v(S0), v(S0)); a.valu('v_lshlrev_b32', v(S0), 16, v(S0))
    a.valu('v_add_f32', v(S0), '0x3727c5ac', v(S0))
    a.valu('v_cvt_pk_bf16_f32', v(S0), v(S0), v(S0)); a.valu('v_lshlrev_b32', v(S0), 16, v(S0))
    a.valu('v_sqrt_f32', v(S0), v(S0))
    a.valu('v_cvt_pk_bf16_f32', v(S0), v(S0), v(S0)); a.valu('v_lshlrev_b32', v(S0), 16, v(S0))
    vRI = vT0
    a.valu('v_rcp_f32', v(vRI), v(S0))
    a.valu('v_fma_f32', v(vT1), '-' + v(S0), v(vRI), 1.0); a.valu('v_fma_f32', v(vRI), v(vT1), v(vRI), v(vRI))
    a.valu('v_xor_b32', v(vT1), 128, v(vXW))
    for j in range(8):
        fs = [F + 8*j + i for i in range(8)]
        rbf_pairs(a, fs, [X + 4*j + i for i in range(4)])
        for f in fs: a.valu('v_mul_f32', v(f), v(f), v(vRI))
        for i in range(4): a.valu('v_cvt_pk_bf16_f32', v(X+4*j+i), v(fs[2*i]), v(fs[2*i+1]))
        a.ds_write('ds_write_b128', v(vXW if j % 2 == 0 else vT1), v(X+4*j, 4), offset=(j >> 1) * 256)
    vwait('small')
    a.valu('v_lshl_or_b32', v(vWP), v(vFLAG), 16, v(vWP)); a.valu('v_lshl_or_b32', v(vWP+1), v(vCUR+3), 16, v(vWP+1))
    for q4 in range(1, 4): a.valu('v_xor_b32', v(vCUR+q4-1), q4 << 6, v(vXR))
    a.waitcnt(lgkm=0); a.barrier()
    stamp()
    for ks in range(16):
        for tb in range(2):
            base = vXR if ks % 4 == 0 else vCUR + ks % 4 - 1
            a.ds_read('ds_read_b128', v(XF + (tb*16+ks)*4, 4), v(base), offset=(ks >> 2) * 256 + tb * 16384)
    vID = vCUR + 2
    a.valu('v_lshrrev_b32', v(vT0), 4, v(vL)); a.valu('v_lshlrev_b32', v(vT0), 2, v(vT0)); a.valu('v_and_b32', v(vT1), 15, v(vL)); a.valu('v_sub_u32', v(vT0), v(vT1), v(vT0))
    a.valu('v_mov_b32', v(vT1), '0x3f80'); a.valu('v_mov_b32', v(vT2), '0x3f800000')
    for h in range(2):
        a.valu('v_cmp_eq_u32', 'vcc', 2*h, v(vT0)); a.valu('v_cndmask_b32', v(vID+h), 0, v(vT1), 'vcc')
        a.valu('v_cmp_eq_u32', 'vcc', 2*h+1, v(vT0)); a.valu('v_cndmask_b32', v(vID+h), v(vID+h), v(vT2), 'vcc')
    xf = lambda tb, ks: v(XF + (tb*16+ks)*4, 4)
    wf = lambda buf, i: v(WF + buf*16 + i*4, 4)
    started = set()
    curbase = {}
    def read_ops(hs):
        j = hs >> 1; sb = REG(j) + (hs & 1) * 16384; buf = hs & 1
        if j < 4: bases = [aK, aV]
        elif j >= 12: bases = [aQ]
        else: bases = [aF, aF+1]
        if len(bases) == 2: lst = [(bases[0], 0, 1024), (bases[1], 0, 1024), (bases[0], 8192, 1024), (bases[1], 8192, 1024)]
        else: lst = [(aQ, i*4096, 512) for i in range(4)]
        hi = (sb // 65536) * 65536; lo = sb - hi
        cur = {}
        for n, b in enumerate(bases):
            if hi:
                if curbase.get(n) != (b, hi):
                    a.valu('v_add_u32', v(vCUR+n), hex(hi), v(b)); curbase[n] = (b, hi)
                cur[b] = vCUR + n
            else: cur[b] = b
        ops = []
        for i, (b, off, d2) in enumerate(lst):
            r0 = WF + buf*16 + i*4
            ops.append(lambda r0=r0, b=b, off=off: a.ds_read('ds_read_b64_tr_b16', v(r0, 2), v(cur[b]), offset=lo + off))
            ops.append(lambda r0=r0, b=b, off=off, d2=d2: a.ds_read('ds_read_b64_tr_b16', v(r0+2, 2), v(cur[b]), offset=lo + off + d2))
        return ops
    def mfma_ops(hs):
        if hs < 0: return []
        buf = hs & 1; L = []; j = hs >> 1
        if j < 4:
            for h in range(2):
                for tb in range(2): L.append((v(ACCA + tb*4, 4), wf(buf, 2*h), xf(tb, 2*hs+h), 'kv'))
                for tb in range(2): L.append((v(ACCA + 8 + tb*4, 4), xf(tb, 2*hs+h), wf(buf, 2*h+1), 'kv'))
        elif j >= 12:
            for i in range(4):
                for tb in range(2): L.append((v(ACCQ + tb*4, 4), wf(buf, i), xf(tb, 4*(hs-24)+i), 'q'))
        else:
            hf = (hs - 8) >> 3; k0 = 2 * ((hs - 8) & 7); A0 = ACCB if hf else ACCA
            for h in range(2):
                for e in range(2):
                    for tb in range(2): L.append((v(A0 + (e*2+tb)*4, 4), wf(buf, 2*h+e), xf(tb, k0+h), 'f'))
        ops = []
        for d, A, B, ph in L:
            def op(d=d, A=A, B=B, ph=ph):
                c = d if ((d, ph) in started or ph == 'f') else 0
                started.add((d, ph)); a.mfma(d, A, B, c)
            ops.append(op)
        return ops
    def flag_store(setup, ts=t0, tv=(vT0, vT1)):
        setup()
        a.valu('v_mov_b32', v(tv[0]), 0); a.valu('v_mov_b32', v(tv[1]), s(sTAG))
        a.salu('s_mov_b64', 'exec', 1)
        a.bstore('buffer_store_dword', v(tv[1]), v(tv[0]), s(S_WS, 4), s(ts), flags=COH)
        a.salu('s_mov_b64', 'exec', -1)
    def tagcheck(regs_, label, reload, tv=(vT0, vT1)):
        a.salu('s_mov_b32', s(sSPIN), 0)
        a.label(f"L_{label}_chk")
        a.valu('v_xor_b32', v(tv[0]), s(sTAG), v(regs_[0]))
        for r_ in regs_[1:]:
            a.valu('v_xor_b32', v(tv[1]), s(sTAG), v(r_)); a.valu('v_or_b32', v(tv[0]), v(tv[0]), v(tv[1]))
        a.valu('v_cmp_ne_u32', 'vcc', 0, v(tv[0]))
        a.nop(1); a.scmp('s_cmp_eq_u64', 'vcc', 0); a.other(f"s_cbranch_scc1 L_{label}_ok")
        a.salu('s_add_u32', s(sSPIN), s(sSPIN), 1); a.scmp('s_cmp_ge_u32', s(sSPIN), 200000); a.other(f"s_cbranch_scc1 L_{label}_ok")
        a.other("s_sleep 2")
        reload(); a.waitcnt(vm=0)
        a.other(f"s_branch L_{label}_chk")
        a.label(f"L_{label}_ok")
    def head_s(dst):
        a.salu('s_lshl_b32', s(dst), s(sC), 2); a.salu('s_add_u32', s(dst), s(dst), s(sCQ))
    st = {'j': 0, 'nbar': 0, 'hs_done': -1, 'marks': {}}
    bg = Rec(a)
    def after_barrier(name):
        def mark(): st['marks'][name] = st['nbar']
        bg.block(mark)
        bg.gate(lambda: st['nbar'] > st['marks'][name])
    def mark_j(name): bg.block(lambda: st['marks'].__setitem__(name, st['nbar']))
    def wait_j(name, d): bg.gate(lambda: st['nbar'] >= st['marks'][name] + d or st['j'] >= NST)
    b = bg
    def red4(r, op, M, T, mid):
        r.valu('v_permlane32_swap_b32', v(M), v(M+1)); r.valu('v_permlane32_swap_b32', v(M+2), v(M+3))
        r.valu(op, v(M), v(M), v(M+1)); r.valu(op, v(M+2), v(M+2), v(M+3))
        r.valu('v_mov_b32', v(T), 0)
        r.valu('v_permlane16_swap_b32', v(M), v(M+2))
        r.valu(op, v(M), v(M), v(M+2))
        mid(M)
        r.valu('v_mov_b32', v(M+2), v(M)); r.valu('v_mov_b32', v(T), 0)
        r.valu('v_permlane16_swap_b32', v(M), v(M+2))
        r.valu('v_mov_b32', v(M+1), v(M)); r.valu('v_mov_b32', v(M+3), v(M+2)); r.valu('v_mov_b32', v(T), 0)
        r.valu('v_permlane32_swap_b32', v(M), v(M+1)); r.valu('v_permlane32_swap_b32', v(M+2), v(M+3))
    def softmax2(r, QBr, Pp, M, E, EE, TT):
        for tb in range(2): r.mfma(v(Pp+4*tb, 4), v(vWP, 2), v(QBr+2*tb, 2), 0, op='v_mfma_f32_16x16x16_bf16')
        r.valu('v_mov_b32', v(vU1), hex(L2E))
        for i in range(3): r.valu('v_mov_b32', v(E+i), 0)
        rbf_pairs(r, [Pp+i for i in range(8)], [E+i for i in range(4)])
        for tb in range(2):
            p = Pp + 4*tb
            r.valu('v_max3_f32', v(M+tb), v(p), v(p+1), v(p+2)); r.valu('v_max3_f32', v(M+2+tb), '-'+v(p), '-'+v(p+1), '-'+v(p+2))
            r.valu('v_max_f32', v(M+tb), v(M+tb), v(p+3)); r.valu('v_max_f32_e64', v(M+2+tb), v(M+2+tb), '-'+v(p+3))
        red4(r, 'v_max_f32', M, TT, lambda x: r.valu('v_mul_f32', v(x), hex(L2E), v(x)))
        for i in range(8): r.valu('v_fma_f32', v(E+i), v(Pp+i), v(vU1), '-'+v(M+i//4))
        for i in range(8): r.valu('v_fma_f32', v(EE+i), '-'+v(Pp+i), v(vU1), '-'+v(M+2+i//4))
        for i in range(8): r.valu('v_exp_f32', v(E+i), v(E+i))
        for i in range(8): r.valu('v_exp_f32', v(EE+i), v(EE+i))
        for tb in range(2):
            for k, e in enumerate((E, EE)):
                d = M + 2*k + tb
                r.valu('v_add_f32', v(d), v(e+4*tb), v(e+4*tb+1)); r.valu('v_add_f32', v(TT), v(e+4*tb+2), v(e+4*tb+3)); r.valu('v_add_f32', v(d), v(d), v(TT))
        red4(r, 'v_add_f32', M, TT, lambda x: r.valu('v_rcp_f32', v(x), v(x)))
        for i in range(8): r.valu('v_mul_f32', v(E+i), v(E+i), v(M+i//4))
        for i in range(8): r.valu('v_mul_f32', v(EE+i), v(EE+i), v(M+2+i//4))
        for tb in range(2):
            o = Pp + 4*tb
            r.valu('v_cvt_pk_bf16_f32', v(o), v(E+4*tb), v(E+4*tb+1)); r.valu('v_cvt_pk_bf16_f32', v(o+1), v(E+4*tb+2), v(E+4*tb+3))
            r.valu('v_cvt_pk_bf16_f32', v(o+2), v(EE+4*tb), v(EE+4*tb+1)); r.valu('v_cvt_pk_bf16_f32', v(o+3), v(EE+4*tb+2), v(EE+4*tb+3))
    KA = TMP; M = TMP + 4; E = TMP + 8; EE = TMP + 16; P = ACCB; VB = ACCB + 8; ONE = ACCB + 12
    KVP = E; ZP = EE
    def kv_convert():
        for tb in range(2):
            for h in range(2): a.valu('v_cvt_pk_bf16_f32', v(KA+2*tb+h), v(ACCA+tb*4+2*h), v(ACCA+tb*4+2*h+1))
        for tb in range(2):
            for h in range(2): a.valu('v_cvt_pk_bf16_f32', v(VB+2*tb+h), v(ACCA+8+tb*4+2*h), v(ACCA+8+tb*4+2*h+1))
        st['kvconv'] = True
    b.gate(lambda: st.get('kvconv'))
    softmax2(b, KA, P, M, E, EE, KA)
    for i in range(4): b.valu('v_mov_b32', v(ONE+i), '0x3f803f80')
    for sg, dst in enumerate((E, EE)):
        for tb in range(2): b.mfma(v(dst+4*tb, 4), v(P+4*tb+2*sg, 2), v(vID, 2), 0, op='v_mfma_f32_16x16x16_bf16')
    b.valu('v_lshlrev_b32', v(vU0), 4, v(vL)); b.salu('s_lshl_b32', s(u0), s(sCQ), 12); b.salu('s_add_u32', s(u0), s(u0), hex(MISC))
    b.valu('v_add_u32', v(vT2), s(u0), v(vU0))
    PHP = KA; PHM = M
    for i in range(4): b.valu('v_cvt_pk_bf16_f32', v(PHP+i), v(E+2*i), v(E+2*i+1))
    for i in range(4): b.valu('v_cvt_pk_bf16_f32', v(PHM+i), v(EE+2*i), v(EE+2*i+1))
    b.mfma(v(KVP, 4), v(PHP, 4), v(VB, 4), 0); b.mfma(v(KVP+4, 4), v(PHM, 4), v(VB, 4), 0)
    b.mfma(v(ZP, 4), v(PHP, 4), v(ONE, 4), 0); b.mfma(v(ZP+4, 4), v(PHM, 4), v(ONE, 4), 0)
    for i in range(3): b.valu('v_mov_b32', v(P+4*i+3), s(sTAG))
    def park():
        a.scmp('s_cmp_eq_u32', s(sTH), 0); a.other("s_cbranch_scc1 L_nopark")
        a.ds_write('ds_write_b128', v(vT2), v(KVP, 4)); a.ds_write('ds_write_b128', v(vT2), v(KVP+4, 4), offset=1024)
        a.ds_write('ds_write_b128', v(vT2), v(ZP, 4), offset=2048); a.ds_write('ds_write_b128', v(vT2), v(ZP+4, 4), offset=3072)
        a.label("L_nopark")
    b.block(park)
    after_barrier('park')
    def kv_publish():
        a.scmp('s_cmp_lg_u32', s(sTH), 0); a.other("s_cbranch_scc1 L_nopub")
        Q = TMP; G = ACCB
        head_s(u0); a.salu('s_lshl_b32', s(u0), s(u0), 5); a.salu('s_add_u32', s(u0), s(u0), s(sR)); a.salu('s_mul_i32', s(u0), s(u0), 3456)
        a.salu('s_add_u32', s(u0), s(u0), hex(PART))
        for k, src in enumerate((KVP, ZP)):
            a.ds_read('ds_read_b128', v(Q, 4), v(vT2), offset=2048*k); a.ds_read('ds_read_b128', v(Q+4, 4), v(vT2), offset=2048*k+1024)
            if k == 1: a.valu('v_and_b32', v(vU0), 48, v(vL)); a.valu('v_add_u32', v(vU0), 1024, v(vU0))
            a.waitcnt(lgkm=0)
            for i in range(8): a.valu('v_add_f32', v(G + 4*(i//3) + i%3), v(src+i), v(Q+i))
            if k == 1:
                a.salu('s_mov_b32', 'exec_lo', '0x00010001'); a.salu('s_mov_b32', 'exec_hi', '0x00010001')
            for i in range(3): a.bstore('buffer_store_dwordx4', v(G+4*i, 4), v(vU0), s(S_WS, 4), s(u0), offset=1152*i, flags=COH)
            if k == 1: a.salu('s_mov_b64', 'exec', -1)
            a.nop(2)
        a.label("L_nopub")
        vm.add('pst', 6, cls=0)
        st['pub'] = True
        stamp()
    b.block(kv_publish); mark_j('pub')
    QB = TMP; PQ = ACCQ
    def q_softmax(r):
        for tb in range(2):
            for h in range(2): r.valu('v_cvt_pk_bf16_f32', v(QB+2*tb+h), v(ACCQ+tb*4+2*h), v(ACCQ+tb*4+2*h+1))
        r.valu('v_lshlrev_b32', v(vU0), 4, v(vL)); r.salu('s_add_u32', s(u0), s(sWK), hex(MISC + 16384)); r.valu('v_add_u32', v(vT2), s(u0), v(vU0))
        softmax2(r, QB, PQ, M, E, EE, QB)
    def q_exchange():
        a.salu('s_and_b32', s(u0), s(sCQ), 1); a.scmp('s_cmp_eq_u32', s(u0), 0); a.other("s_cbranch_scc1 L_xw_e")
        a.ds_write('ds_write_b128', v(vT2), v(PQ, 4)); a.other("s_branch L_xw_d")
        a.label("L_xw_e"); a.ds_write('ds_write_b128', v(vT2), v(PQ+4, 4)); a.label("L_xw_d")
        a.valu('v_xor_b32', v(vT2), 1024, v(vT2))
        a.waitcnt(lgkm=0); a.barrier()
        a.salu('s_and_b32', s(u0), s(sCQ), 1); a.scmp('s_cmp_eq_u32', s(u0), 0); a.other("s_cbranch_scc1 L_xr_e")
        a.ds_read('ds_read_b128', v(PQ, 4), v(vT2)); a.other("s_branch L_xr_d")
        a.label("L_xr_e"); a.ds_read('ds_read_b128', v(PQ+4, 4), v(vT2)); a.label("L_xr_d")
    RD = TMP; vRO = aK
    def red_loads():
        for pg in range(2):
            for i in range(3):
                a.bload('buffer_load_dwordx4', v(RD + (pg*3+i)*4, 4), v(vRO + pg), s(S_WS, 4), s(sRED), offset=1152*i, flags=COH)
    def red_issue():
        a.salu('s_mov_b32', s(sRED), -1)
        a.scmp('s_cmp_eq_u32', s(sTH), 0); a.other("s_cbranch_scc1 L_nored1")
        a.salu('s_lshr_b32', s(u1), s(sR), 1)
        a.salu('s_xor_b32', s(u0), s(sR), s(sCQ)); a.scmp('s_cmp_eq_u32', s(u0), 1); a.salu('s_cselect_b32', s(u1), 16, s(u1))
        a.salu('s_cselect_b32', s(u0), 0, s(u0)); a.salu('s_and_b32', s(u0), s(u0), 1); a.scmp('s_cmp_lg_u32', s(u0), 0); a.other("s_cbranch_scc1 L_nored1")
        a.salu('s_lshl_b32', s(sSL), s(u1), 6)
        head_s(u0); a.salu('s_mul_i32', s(u0), s(u0), 32*3456); a.salu('s_add_u32', s(u0), s(u0), s(sSL)); a.salu('s_add_u32', s(sRED), s(u0), hex(PART))
        a.valu('v_lshrrev_b32', v(vU0), 2, v(vL)); a.valu('v_mul_u32_u24', v(vU0), 3456, v(vU0)); a.valu('v_and_b32', v(vU1), 3, v(vL))
        a.valu('v_lshl_add_u32', v(vRO), v(vU1), 4, v(vU0)); a.valu('v_add_u32', v(vRO+1), hex(16*3456), v(vRO))
        red_loads()
        a.label("L_nored1")
        vm.mark = len(vm.q[1])
    def red_finish():
        a.scmp('s_cmp_eq_u32', s(sRED), -1); a.other("s_cbranch_scc1 L_nored2")
        a.waitcnt(vm=len(vm.q[1]) - vm.mark)
        tagcheck([RD + 4*k + 3 for k in range(6)], "red", red_loads, tv=(vU0, vU1))
        V = [RD + 4*(i//3) + i%3 for i in range(8)]; T = [RD + 12 + i for i in range(8)]
        for x in V: a.valu('v_add_f32', v(x), v(x), v(x+12))
        for sh in (8, 4):
            for x in V: a.valu('v_add_f32_dpp', v(x), v(x), v(x), mod=f"row_ror:{sh} " + DPPM)
        allred(a, 'v_add_f32', V, T)
        G = RD + 12
        for i in range(3): a.valu('v_cvt_pk_bf16_f32', v(G+i), v(V[2*i]), v(V[2*i+1]))
        a.valu('v_cvt_pk_bf16_f32', v(G+4), v(V[6]), v(V[7]))
        a.valu('v_mov_b32', v(G+3), s(sTAG)); a.valu('v_mov_b32', v(G+7), s(sTAG))
        head_s(u0); a.salu('s_mul_i32', s(u0), s(u0), 2304); a.salu('s_add_u32', s(u0), s(u0), s(sSL)); a.salu('s_add_u32', s(u0), s(u0), hex(RED))
        a.valu('v_lshlrev_b32', v(vU0), 4, v(vL))
        a.salu('s_mov_b64', 'exec', 15)
        a.bstore('buffer_store_dwordx4', v(G, 4), v(vU0), s(S_WS, 4), s(u0), flags=COH)
        a.bstore('buffer_store_dwordx4', v(G+4, 4), v(vU0), s(S_WS, 4), s(u0), offset=1152, flags=COH)
        a.salu('s_mov_b64', 'exec', -1)
        a.nop(2)
        a.label("L_nored2")
        stamp()
    wait_j('pub', opt('rd1', 2)); b.block(red_issue); mark_j('red')
    def b1_init(hf):
        A0 = ACCB if hf else ACCA
        for e in range(2):
            for tb in range(2):
                for h in range(2):
                    d = A0 + (e*2+tb)*4 + 2*h
                    a.valu('v_lshlrev_b32', v(d), 16, v(vB1+4*hf+2*e+h)); a.valu('v_and_b32', v(d+1), '0xffff0000', v(vB1+4*hf+2*e+h))
    def h_epilogue(r, hf, us):
        A0 = ACCB if hf else ACCA
        r.valu('v_lshlrev_b32', v(vU0), 4, v(vL))
        r.salu('s_mul_i32', s(us[0]), s(sR), 72); r.salu('s_add_u32', s(us[0]), s(us[0]), s(sK0)); r.salu('s_add_u32', s(us[0]), s(us[0]), s(sCQ))
        r.salu('s_lshl_b32', s(us[0]), s(us[0]), 12); r.salu('s_lshl_b32', s(us[1]), s(sTH), 11); r.salu('s_add_u32', s(us[0]), s(us[0]), s(us[1]))
        if hf: r.salu('s_add_u32', s(us[0]), s(us[0]), 4*4096)
        for tb in range(2):
            vals = [A0 + (e*2+tb)*4 + k for e in range(2) for k in range(4)]
            for x in vals: r.valu('v_max_f32', v(x), 0, v(x))
            for x in vals: r.valu('v_mul_f32', v(x), v(x), v(x))
            O = vals[0]
            r.valu('v_cvt_pk_bf16_f32', v(O), v(vals[0]), v(vals[1])); r.valu('v_cvt_pk_bf16_f32', v(O+1), v(vals[2]), v(vals[3]))
            r.valu('v_cvt_pk_bf16_f32', v(O+2), v(vals[4]), v(vals[5])); r.valu('v_cvt_pk_bf16_f32', v(O+3), v(vals[6]), v(vals[7]))
            def stv(O=O, tb=tb):
                a.bstore('buffer_store_dwordx4', v(O, 4), v(vU0), s(S_WS, 4), s(us[0]), offset=tb*1024, flags=COH); vm.add(('hst', hf))
            if r is a: stv()
            else: r.block(stv)
    def hf_off(base, ts=(t0, t1)):
        def f():
            a.salu('s_lshl_b32', s(ts[0]), s(sR), 8); a.salu('s_lshl_b32', s(ts[1]), s(sW), 5); a.salu('s_add_u32', s(ts[0]), s(ts[0]), s(ts[1])); a.salu('s_add_u32', s(ts[0]), s(ts[0]), hex(base))
        return f
    def hf_own(base, ts=(t0, t1)):
        def f():
            a.salu('s_lshl_b32', s(ts[0]), s(sR), 8); a.salu('s_lshl_b32', s(ts[1]), s(sC), 5); a.salu('s_add_u32', s(ts[0]), s(ts[0]), s(ts[1]))
            a.salu('s_lshl_b32', s(ts[1]), s(sW), 2); a.salu('s_add_u32', s(ts[0]), s(ts[0]), s(ts[1])); a.salu('s_add_u32', s(ts[0]), s(ts[0]), hex(base))
        return f
    def h_flag(hf):
        def f():
            vwait(('hst', hf)); flag_store(hf_own(F_HB if hf else F_HA, (u0, u1)), ts=u0, tv=(vU0, vU1)); vm.add('fl')
        return f
    b.gate(lambda: st['hs_done'] >= 15)
    h_epilogue(b, 0, (u0, u1)); mark_j('ha')
    wait_j('red', opt('rd2', 2)); b.block(red_finish); mark_j('redf')
    wait_j('ha', 3); b.block(h_flag(0))
    b.gate(lambda: st['hs_done'] >= 23)
    h_epilogue(b, 1, (u0, u1)); mark_j('hb')
    vL4, vL8, vZO, vPOLL = aF, aF + 1, aK, aV
    KVD = ACCA
    def kv_loads():
        a.salu('s_lshl_b32', s(t0), s(sC), 2); a.salu('s_and_b32', s(t1), s(sCQ), 2); a.salu('s_add_u32', s(t0), s(t0), s(t1)); a.salu('s_mul_i32', s(t0), s(t0), 2304)
        a.salu('s_add_u32', s(t0), s(t0), hex(RED))
        for e in range(2):
            for k, vo in enumerate((vL4, vZO)):
                for i in range(2):
                    a.bload('buffer_load_dwordx4', v(KVD + 16*e + 8*k + 4*i, 4), v(vo), s(S_WS, 4), s(t0), offset=2304*e + 1152*i, flags=COH)
    def poll(base):
        def f():
            hf_off(base)(); a.bload('buffer_load_dword', v(vPOLL), v(vL8), s(S_WS, 4), s(t0), flags=COH)
        return f
    b.valu('v_lshlrev_b32', v(vL4), 4, v(vL)); b.valu('v_and_b32', v(vZO), 48, v(vL)); b.valu('v_add_u32', v(vZO), 1024, v(vZO))
    b.valu('v_and_b32', v(vL8), 7, v(vL)); b.valu('v_lshlrev_b32', v(vL8), 2, v(vL8))
    def pha(): poll(F_HA)(); vm.add('ha')
    b.gate(lambda: st['hs_done'] >= 25)
    b.block(pha)
    def bg_take(n):
        k = 0
        while k < n and bg.items:
            it = bg.items[0]
            if isinstance(it, tuple):
                if not it[1](): return
                bg.items.pop(0); continue
            bg.items.pop(0); it(); k += 1
    def interleave(ms, fs, lead=2, per=2, done=None):
        fs = list(fs)
        for _ in range(min(lead, len(fs))): fs.pop(0)()
        for m in ms:
            m()
            for _ in range(min(per, len(fs))): fs.pop(0)()
            bg_take(BGRATE)
        for f in fs: f()
        if done is not None: st['hs_done'] = done
    for j in range(NST):
        st['j'] = j
        vwait(('st', j), lgkm=0); a.barrier(); st['nbar'] += 1
        if j >= 3: stamp('it')
        d = []
        if j == 0: d = dma_ops(3) + dma_ops(4)
        elif j in (1, 2): d = dma_ops(j + 4)
        elif j >= 4: d = dma_ops(j + 3)
        if j == 1:
            a.valu('v_lshrrev_b32', v(vT0), 2, v(vL)); a.valu('v_and_b32', v(vT1), 4, v(vT0)); a.valu('v_and_b32', v(vT2), 7, v(vL))
            a.valu('v_xor_b32', v(vT1), v(vT1), v(vT2)); a.valu('v_lshlrev_b32', v(vT1), 4, v(vT1)); a.valu('v_lshrrev_b32', v(vT2), 3, v(vL))
            a.valu('v_lshl_add_u32', v(vT1), v(vT2), 10, v(vT1)); a.salu('s_lshl_b32', s(t0), s(sC), 7); a.valu('v_add_u32', v(vDW), s(t0), v(vT1))
        r = read_ops(2*j)
        if j == 0: interleave([], d[:4] + r)
        else: interleave(mfma_ops(2*j - 1), r + d[:4], done=2*j - 1)
        if j == 4: stamp()
        a.waitcnt(lgkm=0)
        r = read_ops(2*j + 1)
        if j == 4:
            kv_convert(); vwait('b1'); b1_init(0)
        if j == 8:
            assert st.get('pub'); b1_init(1)
        interleave(mfma_ops(2*j), r + d[4:], done=2*j)
    st['j'] = NST
    a.waitcnt(lgkm=0); a.barrier(); st['nbar'] += 1
    interleave(mfma_ops(27), dma_ops(17), lead=0, per=1, done=27)
    st['nbar'] += 100
    bg_take(10000)
    assert not bg.items
    stamp()
    AF = 128
    afslot = lambda p: p if p < 8 else 0
    vA2 = vF
    a.salu('s_mul_i32', s(t2), s(sR), 294912); a.valu('v_add_u32', v(vAO), s(t2), v(vL4))
    a.valu('v_and_b32', v(vT0), 15, v(vL)); a.valu('v_lshrrev_b32', v(vT1), 5, v(vL)); a.valu('v_lshl_add_u32', v(vT0), v(vT1), 4, v(vT0))
    a.valu('v_and_b32', v(vT1), 16, v(vL)); a.valu('v_lshlrev_b32', v(vT1), 6, v(vT1)); a.valu('v_lshl_add_u32', v(vT0), v(vT0), 4, v(vT1))
    a.valu('v_add_u32', v(vA2), s(t2), v(vT0))
    def ldA_ops(p):
        ops = []
        for tg in range(2):
            for m in range(2):
                def op(tg=tg, m=m):
                    if p < 7: a.salu('s_lshl_b32', s(t1), s(KS+p), 12)
                    else:
                        a.salu('s_lshl_b32', s(t1), s(sW), 13); a.salu('s_add_u32', s(t1), s(t1), (56 + p - 7) * 4096)
                    a.bload('buffer_load_dwordx4', v(AF + (afslot(p)*4+tg*2+m)*4, 4), v(vA2), s(S_WS, 4), s(t1), offset=tg*2048 + m*512, flags=COH); vm.add(('A', p))
                ops.append(op)
        return ops
    def kv_load_ops():
        ops = []
        for e in range(2):
            for k, vo in enumerate((vL4, vZO)):
                for i in range(2):
                    def op(e=e, k=k, vo=vo, i=i):
                        a.bload('buffer_load_dwordx4', v(KVD + 16*e + 8*k + 4*i, 4), v(vo), s(S_WS, 4), s(t3), offset=2304*e + 1152*i, flags=COH); vm.add('kvd')
                    ops.append(op)
        return ops
    def merge(cs, vs, every):
        vs = list(vs)
        for n, c in enumerate(cs):
            c()
            if n % every == every - 1 and vs: vs.pop(0)()
        for x in vs: x()
    vwait('ha'); tagcheck([vPOLL], "ha", poll(F_HA))
    a.salu('s_lshl_b32', s(t3), s(sC), 2); a.salu('s_and_b32', s(t1), s(sCQ), 2); a.salu('s_add_u32', s(t3), s(t3), s(t1)); a.salu('s_mul_i32', s(t3), s(t3), 2304)
    a.salu('s_add_u32', s(t3), s(t3), hex(RED))
    def hbf():
        vwait(('hst', 1)); flag_store(hf_own(F_HB)); vm.add('fl')
    qs = Rec(a); q_softmax(qs)
    merge(qs.items, [hbf] + ldA_ops(0) + ldA_ops(1) + kv_load_ops() + ldA_ops(2), opt('qe', 6))
    stamp()
    q_exchange()
    poll(F_HB)(); vm.add('hb')
    stamp()
    vwait('kvd', lgkm=0)
    tagcheck([KVD + 4*k + 3 for k in range(8)], "kvd", kv_loads)
    stamp()
    O = TMP + 20
    for k in range(4): a.valu('v_mov_b32', v(KVD + 8*k + 3), v(KVD + 8*k + 4))
    for e in range(2):
        KAo = KVD + 16*e; ZAo = KAo + 8; PH = PQ + 4*e
        a.mfma(v(TMP + 8*e, 4), v(KAo, 4), v(PH, 4), 0); a.mfma(v(TMP + 8*e + 4, 4), v(ZAo, 4), v(PH, 4), 0)
    A2 = 32; WF2 = 96; aW = vB1; aH = vB1 + 2
    a.valu('v_and_b32', v(vT1), 15, v(vL)); a.valu('v_lshrrev_b32', v(vT2), 2, v(vT1)); a.valu('v_lshrrev_b32', v(vT0), 5, v(vL)); a.valu('v_lshl_add_u32', v(vCUR), v(vT0), 2, v(vT2))
    a.valu('v_and_b32', v(vT2), 2, v(vT2)); a.valu('v_lshrrev_b32', v(vT0), 4, v(vL)); a.valu('v_and_b32', v(vT0), 1, v(vT0)); a.valu('v_or_b32', v(vT2), v(vT2), v(vT0))
    a.valu('v_and_b32', v(vT1), 3, v(vT1)); a.valu('v_lshlrev_b32', v(vT1), 3, v(vT1)); a.valu('v_lshl_add_u32', v(vT1), v(vT2), 5, v(vT1))
    a.valu('v_lshl_add_u32', v(vT1), v(vCUR), 7, v(vT1)); a.salu('s_lshl_b32', s(t1), s(sWK), 2); a.valu('v_add_u32', v(aW), s(t1), v(vT1))
    a.valu('v_xor_b32', v(aW+1), 64, v(aW))
    for nb in range(2): a.valu('v_add_u32', v(aH+nb), '0x10000', v(aW+nb))
    for e in range(2):
        KV = TMP + 8*e; Z = KV + 4; T = TMP + 16
        rbf_pairs(a, [KV+i for i in range(4)], [T, T+1])
        a.valu('v_cvt_pk_bf16_f32', v(Z), v(Z), v(Z)); a.valu('v_lshlrev_b32', v(Z), 16, v(Z))
        a.valu('v_add_f32', v(Z), '0x358637bd', v(Z))
        a.valu('v_cvt_pk_bf16_f32', v(Z), v(Z), v(Z)); a.valu('v_lshlrev_b32', v(Z), 16, v(Z))
        a.valu('v_rcp_f32', v(Z+1), v(Z))
        a.valu('v_fma_f32', v(Z+2), '-' + v(Z), v(Z+1), 1.0); a.valu('v_fma_f32', v(Z+1), v(Z+2), v(Z+1), v(Z+1))
        for i in range(4): a.valu('v_mul_f32', v(KV+i), v(KV+i), v(Z+1))
        a.valu('v_cvt_pk_bf16_f32', v(O+2*e), v(KV), v(KV+1)); a.valu('v_cvt_pk_bf16_f32', v(O+2*e+1), v(KV+2), v(KV+3))
    a.salu('s_lshl_b32', s(t0), s(sC), 1); a.salu('s_lshr_b32', s(t1), s(sCQ), 1); a.salu('s_add_u32', s(t0), s(t0), s(t1)); a.salu('s_add_u32', s(t0), s(t0), 56)
    a.salu('s_lshl_b32', s(t0), s(t0), 12); a.salu('s_lshl_b32', s(t1), s(sTH), 11); a.salu('s_add_u32', s(t0), s(t0), s(t1))
    a.salu('s_and_b32', s(t1), s(sCQ), 1); a.salu('s_lshl_b32', s(t1), s(t1), 10); a.salu('s_add_u32', s(t0), s(t0), s(t1))
    a.bstore('buffer_store_dwordx4', v(O, 4), v(vAO), s(S_WS, 4), s(t0), flags=COH); vm.add('ost')
    srd(a, S_B2, 20, 1024); srd(a, S_OUT, 22, 2097152)
    stamp()
    def reads2(p):
        sb = REG(14 + p); hi = sb >= 65536; lo = sb - (65536 if hi else 0)
        ops = []
        for m in range(2):
            for nb in range(2):
                r0 = WF2 + (p & 1) * 16 + (m*2+nb) * 4; bb = (aH if hi else aW) + nb
                ops.append(lambda r0=r0, bb=bb, m=m: a.ds_read('ds_read_b64_tr_b16', v(r0, 2), v(bb), offset=lo + m*1024))
                ops.append(lambda r0=r0, bb=bb, m=m: a.ds_read('ds_read_b64_tr_b16', v(r0+2, 2), v(bb), offset=lo + m*1024 + 2048))
        return ops
    def mfmas2(p):
        ops = []
        for m in range(2):
            for nb in range(2):
                for tg in range(2):
                    d = v(A2 + (nb*2+tg)*16, 16)
                    ops.append(lambda d=d, nb=nb, tg=tg, m=m: a.mfma(d, v(WF2 + (p & 1)*16 + (m*2+nb)*4, 4), v(AF + (afslot(p)*4+tg*2+m)*4, 4), d if (p or m) else 0, op='v_mfma_f32_32x32x16_bf16'))
        return ops
    vXX, vBB, vOO = AF + 16, AF + 20, vAO
    def xb_ops():
        def f():
            a.valu('v_lshrrev_b32', v(vT0), 3, v(vL)); a.valu('v_lshlrev_b32', v(vT1), 2, v(vL8))
            a.salu('s_lshl_b32', s(t0), s(sR), 6); a.salu('s_lshl_b32', s(t1), s(sW), 3); a.salu('s_add_u32', s(t0), s(t0), s(t1))
            a.valu('v_add_u32', v(vT0), s(t0), v(vT0)); a.valu('v_lshl_add_u32', v(vOO), v(vT0), 10, v(vT1))
            a.salu('s_lshl_b32', s(t3), s(sC), 7)
            a.bload('buffer_load_dwordx4', v(vXX, 4), v(vOO), s(S_X, 4), s(t3)); a.bload('buffer_load_dwordx4', v(vBB, 4), v(vT1), s(S_B2, 4), s(t3)); vm.add('xb', 2)
        return [f]
    def off_(): vwait('ost'); flag_store(hf_own(F_OF)); vm.add('fl')
    def pof(): poll(F_OF)(); vm.add('of')
    HBP = opt('hbp', 2); OFP = opt('ofp', 6)
    pend = []
    for p in range(10):
        fill = []
        if p < 9:
            vwait(('st', 14 + p), lgkm=0)
            fill = reads2(p)
        else: a.waitcnt(lgkm=0)
        vs = []
        if p == HBP:
            vwait('hb'); tagcheck([vPOLL], "hb", poll(F_HB))
            pend += ldA_ops(3) + ldA_ops(4) + ldA_ops(5) + ldA_ops(6)
            vs.append(off_)
        if p == OFP - 2: vs.append(pof)
        if p == OFP:
            vwait('of'); tagcheck([vPOLL], "of", poll(F_OF))
            pend += ldA_ops(7) + ldA_ops(8)
        if p == 3: vs += xb_ops()
        vs += pend[:8]; pend = pend[8:]
        if 1 <= p and p + 3 <= 8: vs += dma_ops(14 + p + 3)
        if p >= 1:
            for f in fill[:4]: f()
            fill = fill[4:]
            vwait(('A', p-1))
            interleave(mfmas2(p - 1), fill + vs, lead=0, per=2)
        else:
            for f in fill + vs: f()
    assert not pend
    stamp()
    a.barrier()
    a.valu('v_lshrrev_b32', v(vT0), 5, v(vL)); a.valu('v_and_b32', v(vT1), 15, v(vL)); a.valu('v_xor_b32', v(vT0), v(vT0), v(vT1))
    a.valu('v_lshlrev_b32', v(vT0), 4, v(vT0)); a.valu('v_and_b32', v(vT1), 31, v(vL)); a.valu('v_lshl_add_u32', v(vT0), v(vT1), 8, v(vT0)); a.salu('s_lshl_b32', s(t1), s(sWK), 4)
    WA = WF2
    a.valu('v_add_u32', v(WA), s(t1), v(vT0))
    for u in range(1, 8): a.valu('v_xor_b32', v(WA+u), u << 5, v(WA))
    for nb in range(2):
        for tg in range(2):
            for q in range(4): a.ds_write('ds_write_b128', v(WA + nb*4 + q), v(A2 + (nb*2+tg)*16 + 4*q, 4), offset=tg*8192)
    a.valu('v_lshrrev_b32', v(vT0), 3, v(vL)); a.salu('s_lshl_b32', s(t1), s(sW), 3); a.valu('v_add_u32', v(vT0), s(t1), v(vT0))
    a.valu('v_lshrrev_b32', v(vT1), 1, v(vL8)); a.valu('v_and_b32', v(vT2), 15, v(vT0)); a.valu('v_xor_b32', v(vT1), v(vT1), v(vT2))
    a.valu('v_lshlrev_b32', v(vT1), 4, v(vT1))
    RA = vCUR
    a.valu('v_lshl_add_u32', v(RA), v(vT0), 8, v(vT1)); a.valu('v_xor_b32', v(RA+1), 16, v(RA))
    for e in range(2): a.valu('v_add_u32', v(RA+2+e), '0x10000', v(RA+e))
    U = WF2 + 8
    for i in range(4):
        a.valu('v_lshlrev_b32', v(U+2*i), 16, v(vBB+i)); a.valu('v_and_b32', v(U+2*i+1), '0xffff0000', v(vBB+i))
        a.valu('v_lshlrev_b32', v(U+8+2*i), 16, v(vXX+i)); a.valu('v_and_b32', v(U+8+2*i+1), '0xffff0000', v(vXX+i))
    for i in range(8): a.valu('v_add_f32', v(U+i), v(U+i), v(U+8+i))
    a.waitcnt(lgkm=0); a.barrier()
    R = AF + 32
    for p in range(8):
        for e in range(2): a.ds_read('ds_read_b128', v(R + (p*2+e)*4, 4), v(RA + 2*(p//4) + e), offset=(p % 4) * 16384)
    for p in range(8):
        a.waitcnt(lgkm=14 - 2*p)
        for i in range(8): a.valu('v_add_f32', v(U+i), v(U+i), v(R+p*8+i))
    for i in range(4): a.valu('v_cvt_pk_bf16_f32', v(R+i), v(U+2*i), v(U+2*i+1))
    a.bstore('buffer_store_dwordx4', v(R, 4), v(vOO), s(S_OUT, 4), s(t3))
    a.salu('s_or_b32', s(t0), 's2', s(sW)); a.scmp('s_cmp_lg_u32', s(t0), 0); a.other("s_cbranch_scc1 L_noep")
    flag_store(lambda: a.salu('s_mov_b32', s(t0), hex(F_EPOCH)))
    a.label("L_noep")
    if STAMPS:
        d = S_WQ; vt = TMP
        a.other(f"{'s_memtime' if 'clk' in EXP else 's_memrealtime'} {s(S_W1,2)}")
        a.waitcnt(lgkm=0)
        a.salu('s_add_u32', s(d), s(S_WS), hex(STAMP_OFF)); a.salu('s_addc_u32', s(d+1), s(S_WS+1), 0)
        a.salu('s_mov_b32', s(d+2), '0x100000'); a.salu('s_mov_b32', s(d+3), '0x00020000')
        a.salu('s_lshl_b32', 's3', s(sW), 15); a.salu('s_lshl_b32', s(t0), 's2', 7); a.salu('s_add_u32', 's3', 's3', s(t0))
        a.valu('v_mov_b32', v(vt+2), 0); a.salu('s_mov_b64', 'exec', 1)
        for i, pr in enumerate(stamp_pairs[:nst[0]] + [S_W1]):
            a.valu('v_mov_b32', v(vt), s(pr)); a.valu('v_mov_b32', v(vt+1), s(pr+1))
            a.bstore('buffer_store_dwordx2', v(vt, 2), v(vt+2), s(d, 4), 's3', offset=i * 8); a.waitcnt(vm=0)
    a.label("L_end"); a.other("s_endpgm")
    a.label("L_code_end")
    sys.stderr.write(f"marks {st['marks']} nins {a.nins}\n")
    return a.text(), kernel_desc(kn, 256), 163840

k, d, l = gen()
hdr = open("cdna_kernels/" + NAME + ".s.ref").read().split("; Override")[0]
out = hdr + f"; @launch grid=(256,1,1) block=(512,1,1) lds={l}\n"
out += f'.amdgcn_target "amdgcn-amd-amdhsa--gfx950"\n.text\n.set CODE_BYTES, L_code_end - {NAME}_kernel - 128\n' + k
out += '.section .rodata,"a"\n.p2align 6\n' + d
sys.stdout.write(out)
```

```python
import sys
from asmlib import *
STAMPS = '--stamps' in sys.argv
EXP = [x[2:] for x in sys.argv[1:] if x.startswith('--')]
def opt(name, default):
    for x in EXP:
        if x.startswith(name + '='): return int(x.split('=')[1])
    return default
NAME = "parallel_sum__linear_kernel_hedgehog__dense_activation_squared_relu__prompt"
AWS = 0; PART = 0x1000000; RED = 0x1800000; FL = 0x1A00000; WS_BYTES = 0x2000000; STAMP_OFF = 0x8000000
F_EPOCH = FL; F_HA = FL + 0x4000; F_HB = FL + 0x8000; F_OF = FL + 0xC000
L2E = 0x3fb8aa3b
DPPM = "row_mask:0xf bank_mask:0xf"
COH = "sc0 sc1"
BGRATE = opt('bg', 8)

class VM:
    def __init__(self): self.q = [[], []]
    def add(self, tag, n=1, cls=None):
        for c in (0, 1):
            if cls is None or cls == c: self.q[c] += [tag] * n
    def need1(self, c, tags):
        last = -1
        for i, t in enumerate(self.q[c]):
            if t in tags: last = i
        if last < 0: return None
        return min(63, len(self.q[c]) - 1 - last)

class Rec:
    def __init__(self, a): self.a = a; self.items = []
    def __getattr__(self, name):
        f = getattr(self.a, name)
        def rec(*args, **kw): self.items.append(lambda: f(*args, **kw))
        return rec
    def block(self, fn): self.items.append(fn)
    def gate(self, cond): self.items.append(('gate', cond))

def srd(a, d, base, nbytes):
    a.salu('s_mov_b32', s(d), s(base)); a.salu('s_and_b32', s(d+1), s(base+1), 0xffff)
    a.salu('s_mov_b32', s(d+2), hex(nbytes)); a.salu('s_mov_b32', s(d+3), '0x00020000')

def rbf_pairs(a, vals, tmp):
    for i in range(0, len(vals), 2):
        a.valu('v_cvt_pk_bf16_f32', v(tmp[i//2]), v(vals[i]), v(vals[i+1]))
    for i in range(0, len(vals), 2):
        a.valu('v_lshlrev_b32', v(vals[i]), 16, v(tmp[i//2]))
        a.valu('v_and_b32', v(vals[i+1]), '0xffff0000', v(tmp[i//2]))

def allred(a, op, rs, tmp):
    for sw in ('v_permlane16_swap_b32', 'v_permlane32_swap_b32'):
        for r, t in zip(rs, tmp): a.valu('v_mov_b32', v(t), v(r))
        for r, t in zip(rs, tmp): a.valu(sw, v(r), v(t))
        for r, t in zip(rs, tmp): a.valu(op, v(r), v(r), v(t))

def gen():
    a = Asm(); vm = VM()
    kn = NAME + "_kernel"
    a.raw(kernel_header(kn))
    S_X, S_WQ, S_W1, S_WP, S_B1, S_WS, S_W2, S_WO, S_B2, S_OUT = 24, 28, 32, 36, 40, 44, 48, 52, 36, 40
    sR, sC, sW, sROT, sWK, sTH, sCQ, sK0, sTAG = 56, 57, 58, 59, 60, 61, 62, 63, 64
    t0, t1, t2, t3 = 65, 66, 67, 68
    b0, b1_ = 22, 23
    T1 = 70; KS = 86
    sSPIN = 93; sRED = 69; sSL = 3; sPAR = 59
    u0, u1 = 0, 1
    stamp_pairs = [94, 96, 98, 100, 4, 6, 8, 10, 12, 14, 16, 18]
    nst = [0]
    def stamp(kind='n'):
        mode = 'it' if 'iters' in EXP else ('p2' if 'p2' in EXP else ('e' if 'early' in EXP else 'n'))
        if STAMPS and (kind == mode or nst[0] == 0) and nst[0] < len(stamp_pairs):
            a.other(f"{'s_memtime' if 'clk' in EXP else 's_memrealtime'} {s(stamp_pairs[nst[0]],2)}"); nst[0] += 1
    wl = [0]
    def vwait(*tags, lgkm=None):
        n0, n1 = vm.need1(0, tags), vm.need1(1, tags)
        if n0 == n1: a.waitcnt(vm=n0, lgkm=lgkm); return
        wl[0] += 1; L = f"L_w{wl[0]}"
        a.scmp('s_cmp_eq_u32', s(sTH), 0); a.other(f"s_cbranch_scc1 {L}_0")
        if n1 is not None: a.waitcnt(vm=n1)
        a.other(f"s_branch {L}_e")
        a.label(f"{L}_0")
        if n0 is not None: a.waitcnt(vm=n0)
        a.label(f"{L}_e")
        if lgkm is not None: a.waitcnt(lgkm=lgkm)
    a.scmp('s_cmp_ge_u32', 's2', 256); a.other("s_cbranch_scc1 L_end")
    stamp()
    for d, off in ((4, 0), (14, 88), (6, 8), (8, 16), (10, 40), (12, 48), (16, 56), (18, 24), (20, 64), (22, 72)):
        a.other(f"s_load_dwordx2 {s(d,2)}, s[0:1], {off}")
    vL, vKV, vF, vQ, aK, aV, aF, aQ, vWP, vB1 = 1, 2, 3, 4, 5, 6, 7, 11, 12, 14
    vCUR = 22; vFLAG = 28; vT0, vT1, vT2 = 29, 30, 31
    vU0, vU1 = 9, 10
    ACCA = 32; ACCB = 48; ACCQ = 64; WF = 72; TMP = 104; XF = 128
    vEP = vCUR + 2
    a.valu('v_lshrrev_b32', v(vT0), 6, 'v0'); a.valu('v_and_b32', v(vL), 63, 'v0')
    a.valu('v_readfirstlane_b32', s(sW), v(vT0))
    a.salu('s_and_b32', s(t0), 's2', 7); a.salu('s_lshr_b32', s(t1), 's2', 3)
    if 'nopf' not in EXP:
        a.other(f"s_getpc_b64 {s(S_W2,2)}")
        a.salu('s_and_b32', s(S_W2+1), s(S_W2+1), 0xffff); a.salu('s_mov_b32', s(S_W2+2), 'CODE_BYTES'); a.salu('s_mov_b32', s(S_W2+3), '0x00020000')
        a.salu('s_and_b32', s(t2), s(t1), 3); a.salu('s_lshl_b32', s(t2), s(t2), 13)
        a.valu('v_lshlrev_b32', v(vT1), 7, v(vL))
        a.scmp('s_cmp_lg_u32', s(sW), 7); a.other("s_cbranch_scc1 L_nopf")
        a.bload('buffer_load_dword', v(vEP), v(vT1), s(S_W2, 4), s(t2))
        a.label("L_nopf")
    a.salu('s_lshr_b32', s(t2), s(t0), 1); a.salu('s_lshl_b32', s(t2), s(t2), 3); a.salu('s_lshr_b32', s(t3), s(t1), 2)
    a.salu('s_add_u32', s(sR), s(t2), s(t3))
    a.salu('s_and_b32', s(t2), s(t0), 1); a.salu('s_lshl_b32', s(t2), s(t2), 2); a.salu('s_and_b32', s(sC), s(t1), 3)
    a.salu('s_add_u32', s(sC), s(sC), s(t2))
    if opt('cx', 0): a.salu('s_xor_b32', s(sC), s(sC), opt('cx', 0))
    if 'norot' in EXP: a.salu('s_mov_b32', s(t3), 0)
    a.valu('v_lshrrev_b32', v(vT0), 3, v(vL)); a.valu('v_and_b32', v(vT1), 7, v(vL))
    a.salu('s_lshl_b32', s(t0), s(sR), 6); a.salu('s_lshl_b32', s(t1), s(sW), 3); a.salu('s_add_u32', s(t0), s(t0), s(t1))
    a.valu('v_add_u32', v(vT2), s(t0), v(vT0)); a.valu('v_lshlrev_b32', v(vT2), 10, v(vT2)); a.valu('v_lshl_add_u32', v(vT2), v(vT1), 4, v(vT2))
    a.waitcnt(lgkm=0)
    stamp('e')
    srd(a, S_X, 4, 2097152)
    X = 32; F = 64
    for j in range(8):
        a.salu('s_add_u32', s(t2), s(t3), j); a.salu('s_and_b32', s(t2), s(t2), 7); a.salu('s_lshl_b32', s(t2), s(t2), 7)
        a.bload('buffer_load_dwordx4', v(X+4*j, 4), v(vT2), s(S_X, 4), s(t2)); vm.add('x')
    srd(a, S_WS, 14, WS_BYTES)
    a.valu('v_mov_b32', v(TMP), 0); a.salu('s_mov_b32', s(t2), hex(F_EPOCH))
    a.bload('buffer_load_dword', v(vEP), v(TMP), s(S_WS, 4), s(t2), flags=COH); vm.add('x')
    if 'gt' in EXP:
        G0 = S_W2
        a.scmp('s_cmp_ge_u32', s(sW), 4); a.other("s_cbranch_scc1 L_nogt")
        a.scmp('s_cmp_eq_u32', s(sW), 0); a.salu('s_cselect_b32', s(G0), s(6), s(10)); a.salu('s_cselect_b32', s(G0+1), s(7), s(11)); a.salu('s_cselect_b32', s(t2), 48, 56)
        a.scmp('s_cmp_eq_u32', s(sW), 2); a.salu('s_cselect_b32', s(G0), s(16), s(G0)); a.salu('s_cselect_b32', s(G0+1), s(17), s(G0+1))
        a.scmp('s_cmp_eq_u32', s(sW), 3); a.salu('s_cselect_b32', s(G0), s(18), s(G0)); a.salu('s_cselect_b32', s(G0+1), s(19), s(G0+1)); a.salu('s_cselect_b32', s(t2), 16, s(t2))
        a.salu('s_and_b32', s(G0+1), s(G0+1), 0xffff); a.salu('s_lshl_b32', s(G0+2), s(t2), 15); a.salu('s_mov_b32', s(G0+3), '0x00020000')
        a.salu('s_sub_u32', s(t0), s(t2), 1); a.valu('v_min_u32', v(TMP+1), s(t0), v(vL)); a.valu('v_lshlrev_b32', v(TMP+1), 7, v(TMP+1))
        a.salu('s_mul_i32', s(t2), s(t2), 's2'); a.salu('s_lshl_b32', s(t2), s(t2), 7)
        a.bload('buffer_load_dword', 'v0', v(TMP+1), s(G0, 4), s(t2))
        a.label("L_nogt")
        vm.add('gt', 1, cls=0)
    a.salu('s_lshl_b32', s(sROT), s(t3), 1)
    a.salu('s_lshl_b32', s(sWK), s(sW), 10); a.salu('s_lshr_b32', s(sTH), s(sW), 2); a.salu('s_and_b32', s(sCQ), s(sW), 3)
    a.salu('s_mul_i32', s(sK0), s(sC), 7); a.salu('s_and_b32', s(t2), s(sC), 1); a.salu('s_sub_u32', s(sK0), s(sK0), s(t2))
    srd(a, S_WQ, 6, 1572864)
    for p in range(16):
        a.salu('s_add_u32', s(T1+p), s(sROT), p); a.salu('s_and_b32', s(T1+p), s(T1+p), 15)
    vXW = vCUR + 4
    a.valu('v_add_u32', v(vT0), s(t1), v(vT0))
    a.valu('v_and_b32', v(vT2), 15, v(vT0)); a.valu('v_xor_b32', v(vT2), v(vT2), v(vT1)); a.valu('v_lshlrev_b32', v(vT2), 4, v(vT2))
    a.valu('v_lshl_add_u32', v(vXW), v(vT0), 10, v(vT2))
    vG, vI = TMP + 4, TMP + 5
    a.valu('v_lshrrev_b32', v(vG), 4, v(vL)); a.valu('v_and_b32', v(vI), 15, v(vL))
    vCH, vRW = TMP + 10, TMP + 11
    a.salu('s_lshr_b32', s(t0), s(sW), 1); a.salu('s_and_b32', s(t0), s(t0), 1); a.salu('s_lshl_b32', s(t0), s(t0), 3)
    a.valu('v_lshlrev_b32', v(vT0), 1, v(vG)); a.valu('v_or_b32', v(vT0), s(t0), v(vT0)); a.valu('v_xor_b32', v(vCH), v(vT0), v(vI))
    a.valu('v_lshrrev_b32', v(vT1), 3, v(vCH)); a.valu('v_lshlrev_b32', v(vT1), 10, v(vT1))
    a.valu('v_and_b32', v(vT0), 7, v(vCH)); a.valu('v_lshl_add_u32', v(vT1), v(vT0), 4, v(vT1))
    a.salu('s_lshl_b32', s(t0), s(sW), 2); a.valu('v_add_u32', v(vRW), s(t0), v(vG))
    a.valu('v_mul_u32_u24', v(vT0), 3072, v(vRW)); a.valu('v_add_u32', v(vT1), v(vT1), v(vT0))
    a.salu('s_lshl_b32', s(t0), s(sC), 7); a.salu('s_add_u32', s(t0), s(t0), 1024)
    a.valu('v_add_u32', v(vKV), s(t0), v(vT1))
    NST = 14
    REG = lambda i: {0: 2, 1: 3, 2: 4}.get(i, (i - 3) % 4) * 32768
    MISC = 4 * 32768
    vDW, vAO = vKV, vQ
    def dma_ops(i):
        ops = []
        for q in range(4):
            def op(q=q):
                if i < 14: a.salu('s_add_u32', 'm0', s(sWK), hex(REG(i) + q * 8192))
                if i < 4:
                    a.salu('s_mul_i32', s(t0), s(T1 + 4*i + q), 98304); a.bload_lds(v(vKV), s(S_WQ, 4), s(t0))
                elif 12 <= i < 14:
                    a.salu('s_add_u32', s(t0), s(sTH), s(T1 + 8*(i-12) + 2*q)); a.salu('s_and_b32', s(t0), s(t0), 15)
                    a.salu('s_mul_i32', s(t0), s(t0), 98304); a.bload_lds(v(vQ), s(S_WQ, 4), s(t0))
                elif i < 14:
                    hf = (i - 4) >> 2; jj = (i - 4) & 3
                    a.salu('s_mul_i32', s(t0), s(T1 + 4*jj + q), 114688)
                    if hf: a.salu('s_add_u32', s(t0), s(t0), 256)
                    a.bload_lds(v(vF), s(S_W1, 4), s(t0))
                else:
                    p = i - 14
                    a.salu('s_lshl_b32', s(t1), s(sWK), 2); a.salu('s_add_u32', 'm0', s(t1), hex(REG(i) + q * 1024))
                    if p < 7:
                        a.salu('s_lshl_b32', s(t0), s(KS+p), 15)
                        if q: a.salu('s_add_u32', s(t0), s(t0), q * 8192)
                        a.bload_lds(v(vDW), s(S_W2, 4), s(t0))
                    else:
                        a.salu('s_lshl_b32', s(t0), s(sW), 16); a.salu('s_add_u32', s(t0), s(t0), (p - 7) * 32768 + q * 8192)
                        a.bload_lds(v(vDW), s(S_WO, 4), s(t0))
                vm.add(('st', i))
            ops.append(op)
        return ops
    srd(a, S_WP, 8, 16384); srd(a, S_B1, 12, 3584)
    a.salu('s_lshl_b32', s(t0), s(sC), 2); a.salu('s_add_u32', s(t0), s(t0), s(sCQ)); a.salu('s_lshl_b32', s(t0), s(t0), 9)
    a.valu('v_lshlrev_b32', v(vT0), 7, v(vG)); a.valu('v_lshl_add_u32', v(vT0), v(vI), 1, v(vT0))
    stamp('e')
    a.barrier()
    stamp('e')
    a.bload('buffer_load_ushort', v(vWP), v(vT0), s(S_WP, 4), s(t0), offset=0)
    a.bload('buffer_load_ushort', v(vFLAG), v(vT0), s(S_WP, 4), s(t0), offset=32)
    a.bload('buffer_load_ushort', v(vWP+1), v(vT0), s(S_WP, 4), s(t0), offset=64)
    a.bload('buffer_load_ushort', v(vCUR+3), v(vT0), s(S_WP, 4), s(t0), offset=96); vm.add('small', 4)
    NPRE = opt('npre', 4)
    early = dma_ops(0) + dma_ops(1) + dma_ops(2)
    for op in early[:NPRE]: op()
    early = early[NPRE:]
    vTA = XF
    a.salu('s_add_u32', s(t0), s(sK0), s(sCQ)); a.salu('s_lshl_b32', s(t0), s(t0), 6)
    a.valu('v_lshlrev_b32', v(vT0), 3, v(vG)); a.valu('v_add_u32', v(vTA), s(t0), v(vT0))
    for hf in range(2):
        for e in range(2):
            def op(hf=hf, e=e):
                a.bload('buffer_load_dwordx2', v(vB1+4*hf+2*e, 2), v(vTA), s(S_B1, 4), 0, offset=256*hf+32*e); vm.add('b1')
            early.append(op)
    srd(a, S_W1, 10, 1835008); srd(a, S_W2, 16, 1835008); srd(a, S_WO, 18, 524288)
    if 'notouch' not in EXP:
        a.salu('s_lshr_b32', s(t0), 's2', 3); a.salu('s_lshl_b32', s(t0), s(t0), 3); a.salu('s_add_u32', s(t0), s(t0), s(sW))
        a.salu('s_lshr_b32', s(t2), s(sC), 2)
        a.valu('v_lshrrev_b32', v(vT0), 4, v(vL)); a.valu('v_and_b32', v(vT0), 1, v(vT0)); a.salu('s_lshl_b32', s(t1), s(t0), 1); a.valu('v_add_u32', v(vT0), s(t1), v(vT0))
        a.valu('v_mul_u32_u24', v(vT1), 3584, v(vT0)); a.valu('v_min_u32', v(vT2), 13, v(vI)); a.valu('v_lshl_add_u32', v(vT1), v(vT2), 7, v(vT1))
        a.salu('s_mul_i32', s(t1), s(t2), 1792); a.valu('v_add_u32', v(vTA+1), s(t1), v(vT1))
        a.valu('v_and_b32', v(vT2), 3, v(vL)); a.valu('v_lshlrev_b32', v(vT2), 7, v(vT2)); a.salu('s_lshl_b32', s(t1), s(t2), 9); a.valu('v_add_u32', v(vT2), s(t1), v(vT2))
        a.valu('v_mul_u32_u24', v(vT1), 3072, v(vT0)); a.valu('v_add_u32', v(vTA+2), v(vT1), v(vT2))
        a.valu('v_lshl_add_u32', v(vTA+3), v(vT0), 10, v(vT2))
        a.salu('s_mul_i32', s(t0), s(t0), 7); a.valu('v_lshrrev_b32', v(vT0), 2, v(vL)); a.valu('v_min_u32', v(vT0), 6, v(vT0)); a.valu('v_add_u32', v(vT0), s(t0), v(vT0))
        a.valu('v_lshl_add_u32', v(vTA+4), v(vT0), 10, v(vT2))
        W2J = opt('w2j', 3)
        if W2J >= 0:
            a.valu('v_mov_b32', v(vU0), v(vTA+3)); a.valu('v_mov_b32', v(vU1), v(vTA+4))
        for k, sd in enumerate((S_W1, S_WQ, S_WO, S_W2)):
            if k >= 2 and W2J >= 0: continue
            def op(k=k, sd=sd):
                a.bload('buffer_load_dword', 'v0', v(vTA+1+k), s(sd, 4), 0); vm.add('touch')
            early.append(op)
    a.valu('v_mul_u32_u24', v(vT0), 3584, v(vRW)); a.valu('v_lshl_add_u32', v(vT0), v(vCH), 4, v(vT0))
    a.salu('s_lshl_b32', s(t0), s(sK0), 6); a.valu('v_add_u32', v(vF), s(t0), v(vT0))
    a.valu('v_and_b32', v(vT0), 1, v(vG)); a.salu('s_and_b32', s(t0), s(sW), 1); a.salu('s_lshl_b32', s(t0), s(t0), 1)
    a.valu('v_or_b32', v(vT0), s(t0), v(vT0)); a.valu('v_lshlrev_b32', v(vT0), 1, v(vT0))
    a.valu('v_and_b32', v(vT1), 7, v(vL)); a.valu('v_xor_b32', v(vT1), v(vT1), v(vT0)); a.valu('v_lshlrev_b32', v(vT1), 4, v(vT1))
    a.valu('v_lshrrev_b32', v(vT0), 3, v(vL)); a.salu('s_lshl_b32', s(t0), s(sCQ), 3); a.valu('v_add_u32', v(vT0), s(t0), v(vT0))
    a.valu('v_mul_u32_u24', v(vT0), 3072, v(vT0)); a.valu('v_add_u32', v(vT1), v(vT1), v(vT0))
    a.salu('s_lshl_b32', s(t0), s(sC), 7); a.valu('v_add_u32', v(vQ), s(t0), v(vT1))
    vRR, vROW, vFS, vC8 = TMP + 6, TMP + 7, TMP + 8, TMP + 9
    a.valu('v_lshrrev_b32', v(vRR), 2, v(vI)); a.valu('v_lshl_add_u32', v(vROW), v(vG), 3, v(vRR))
    a.valu('v_and_b32', v(vT0), 1, v(vG)); a.valu('v_lshl_or_b32', v(vFS), v(vT0), 2, v(vRR))
    a.valu('v_and_b32', v(vC8), 3, v(vI)); a.valu('v_lshlrev_b32', v(vC8), 3, v(vC8))
    a.valu('v_xor_b32', v(vT1), s(sCQ), v(vFS)); a.valu('v_lshl_add_u32', v(vT1), v(vT1), 5, v(vC8)); a.valu('v_lshl_add_u32', v(aK), v(vROW), 8, v(vT1))
    a.valu('v_xor_b32', v(aV), 128, v(aK))
    a.salu('s_lshl_b32', s(t0), s(sCQ), 1)
    a.valu('v_xor_b32', v(vT1), s(t0), v(vFS)); a.valu('v_lshl_add_u32', v(vT1), v(vT1), 5, v(vC8)); a.valu('v_lshl_add_u32', v(aF), v(vROW), 8, v(vT1))
    a.valu('v_xor_b32', v(aF+1), 32, v(aF))
    a.valu('v_lshrrev_b32', v(vT1), 1, v(vRR)); a.valu('v_lshl_or_b32', v(vT1), v(vT0), 1, v(vT1)); a.valu('v_xor_b32', v(vT1), s(sCQ), v(vT1))
    a.valu('v_lshl_add_u32', v(vT1), v(vT1), 5, v(vC8)); a.valu('v_lshl_add_u32', v(aQ), v(vROW), 7, v(vT1))
    vXR = vCUR + 5
    a.valu('v_xor_b32', v(vT1), v(vG), v(vI)); a.valu('v_lshlrev_b32', v(vT1), 4, v(vT1)); a.valu('v_lshl_add_u32', v(vT1), v(vI), 10, v(vT1))
    a.salu('s_lshl_b32', s(t0), s(sTH), 15); a.valu('v_add_u32', v(vXR), s(t0), v(vT1))
    if 'rotr' in EXP: a.salu('s_lshr_b32', s(t0), s(sROT), 1)
    else: a.salu('s_and_b32', s(t0), s(sC), 3)
    a.salu('s_mul_i32', s(t1), s(sW), 7)
    a.salu('s_mul_i32', s(t2), s(t0), 11); a.salu('s_lshr_b32', s(t2), s(t2), 5); a.salu('s_mul_i32', s(t2), s(t2), 3); a.salu('s_sub_u32', s(t2), s(t0), s(t2))
    for p in range(3):
        a.salu('s_add_u32', s(t3), s(t2), p); a.salu('s_sub_u32', s(KS+p), s(t3), 3); a.scmp('s_cmp_ge_u32', s(t3), 3)
        a.salu('s_cselect_b32', s(KS+p), s(KS+p), s(t3)); a.salu('s_add_u32', s(KS+p), s(KS+p), s(t1))
    for p in range(4):
        a.salu('s_add_u32', s(t3), s(t0), p); a.salu('s_and_b32', s(t3), s(t3), 3); a.salu('s_add_u32', s(t3), s(t3), s(t1)); a.salu('s_add_u32', s(KS+3+p), s(t3), 3)
    vwait('x')
    stamp(); stamp('e')
    a_real = a; a = Rec(a_real)
    a.valu('v_readfirstlane_b32', s(sTAG), v(vEP))
    for j in range(32):
        a.valu('v_lshlrev_b32', v(F+2*j), 16, v(X+j)); a.valu('v_and_b32', v(F+2*j+1), '0xffff0000', v(X+j))
    a.salu('s_add_u32', s(sTAG), s(sTAG), 1)
    S0 = X
    for k in range(4): a.valu('v_add_f32', v(S0+k), v(F+k), v(F+4+k))
    for j in range(8, 64): a.valu('v_add_f32', v(S0+j%4), v(S0+j%4), v(F+j))
    a.valu('v_add_f32', v(S0), v(S0), v(S0+1)); a.valu('v_add_f32', v(S0+2), v(S0+2), v(S0+3)); a.valu('v_add_f32', v(S0), v(S0), v(S0+2))
    def red8(r):
        a.valu('v_add_f32_dpp', v(r), v(r), v(r), mod="quad_perm:[1,0,3,2] " + DPPM)
        a.valu('v_add_f32_dpp', v(r), v(r), v(r), mod="quad_perm:[2,3,0,1] " + DPPM)
        a.valu('v_add_f32_dpp', v(r), v(r), v(r), mod="row_half_mirror " + DPPM)
    red8(S0)
    vMEAN, vMB = S0 + 4, S0 + 5
    a.valu('v_mul_f32', v(vMEAN), '0x3b000000', v(S0))
    a.valu('v_cvt_pk_bf16_f32', v(vMB), v(vMEAN), v(vMEAN)); a.valu('v_lshlrev_b32', v(vMB), 16, v(vMB))
    for j in range(64): a.valu('v_sub_f32', v(F+j), v(F+j), v(vMB))
    for k in range(4): a.valu('v_mul_f32', v(S0+k), v(F+k), v(F+k))
    for j in range(4, 64): a.valu('v_fmac_f32', v(S0+j%4), v(F+j), v(F+j))
    a.valu('v_add_f32', v(S0), v(S0), v(S0+1)); a.valu('v_add_f32', v(S0+2), v(S0+2), v(S0+3)); a.valu('v_add_f32', v(S0), v(S0), v(S0+2))
    red8(S0)
    a.valu('v_sub_f32', v(vMEAN), v(vMEAN), v(vMB))
    a.valu('v_mul_f32', v(S0), '0x3b000000', v(S0))
    a.valu('v_fma_f32', v(S0), '-' + v(vMEAN), v(vMEAN), v(S0)); a.valu('v_max_f32', v(S0), 0, v(S0))
    a.valu('v_cvt_pk_bf16_f32', v(S0), v(S0), v(S0)); a.valu('v_lshlrev_b32', v(S0), 16, v(S0))
    a.valu('v_add_f32', v(S0), '0x3727c5ac', v(S0))
    a.valu('v_cvt_pk_bf16_f32', v(S0), v(S0), v(S0)); a.valu('v_lshlrev_b32', v(S0), 16, v(S0))
    a.valu('v_sqrt_f32', v(S0), v(S0))
    a.valu('v_cvt_pk_bf16_f32', v(S0), v(S0), v(S0)); a.valu('v_lshlrev_b32', v(S0), 16, v(S0))
    vRI = vT0
    a.valu('v_rcp_f32', v(vRI), v(S0))
    a.valu('v_fma_f32', v(vT1), '-' + v(S0), v(vRI), 1.0); a.valu('v_fma_f32', v(vRI), v(vT1), v(vRI), v(vRI))
    a.valu('v_xor_b32', v(vT1), 128, v(vXW))
    for j in range(8):
        fs = [F + 8*j + i for i in range(8)]
        rbf_pairs(a, fs, [X + 4*j + i for i in range(4)])
        for f in fs: a.valu('v_mul_f32', v(f), v(f), v(vRI))
        for i in range(4): a.valu('v_cvt_pk_bf16_f32', v(X+4*j+i), v(fs[2*i]), v(fs[2*i+1]))
        a.ds_write('ds_write_b128', v(vXW if j % 2 == 0 else vT1), v(X+4*j, 4), offset=(j >> 1) * 256)
    lnitems = a.items; a = a_real
    LNP = max(1, (len(lnitems) - 20) // max(1, len(early)))
    for n_, it in enumerate(lnitems):
        it()
        if n_ % LNP == LNP - 1 and early: early.pop(0)()
    for op in early: op()
    vwait('small')
    a.valu('v_lshl_or_b32', v(vWP), v(vFLAG), 16, v(vWP)); a.valu('v_lshl_or_b32', v(vWP+1), v(vCUR+3), 16, v(vWP+1))
    a.salu('s_and_b32', s(sPAR), s(sCQ), 1); a.salu('s_lshl_b32', s(t0), s(sPAR), 14); a.valu('v_add_u32', v(vXR), s(t0), v(vXR))
    for sl in range(2):
        for q4 in range(4): a.valu('v_xor_b32', v(TMP+sl*4+q4), (q4 << 6) | (sl << 14), v(vXR))
    stamp('e')
    a.waitcnt(lgkm=0); a.barrier()
    stamp(); stamp('e')
    for ks in range(16):
        for tb in range(2):
            a.ds_read('ds_read_b128', v(XF + (tb*16+ks)*4, 4), v(TMP + tb*4 + ks % 4), offset=(ks >> 2) * 256)
    if opt('w2j', 3) >= 0:
        a.valu('v_mov_b32', v(vCUR+4), v(vU0)); a.valu('v_mov_b32', v(vCUR+5), v(vU1))
    vID = vCUR + 2
    a.valu('v_lshrrev_b32', v(vT0), 4, v(vL)); a.valu('v_lshlrev_b32', v(vT0), 2, v(vT0)); a.valu('v_and_b32', v(vT1), 15, v(vL)); a.valu('v_sub_u32', v(vT0), v(vT1), v(vT0))
    a.valu('v_mov_b32', v(vT1), '0x3f80'); a.valu('v_mov_b32', v(vT2), '0x3f800000')
    for h in range(2):
        a.valu('v_cmp_eq_u32', 'vcc', 2*h, v(vT0)); a.valu('v_cndmask_b32', v(vID+h), 0, v(vT1), 'vcc')
        a.valu('v_cmp_eq_u32', 'vcc', 2*h+1, v(vT0)); a.valu('v_cndmask_b32', v(vID+h), v(vID+h), v(vT2), 'vcc')
    xf = lambda tb, ks: v(XF + (tb*16+ks)*4, 4)
    wf = lambda buf, i: v(WF + buf*16 + i*4, 4)
    started = set()
    curbase = {}
    def unit_info(u):
        if u < 24: return u >> 1, (u & 1) * 16384
        return 12 + ((u - 24) >> 2), ((u - 24) & 3) * 8192
    def read_ops(hs):
        j, so = unit_info(hs); sb = REG(j) + so; buf = hs & 1
        if j < 4: bases = [aK, aV]; d1, d2 = 8192, 1024
        elif j >= 12: bases = [aQ, aQ2]; d1, d2 = 4096, 512
        else: bases = [aF, aF+1]; d1, d2 = 8192, 1024
        lst = [(bases[0], 0, d2), (bases[1], 0, d2), (bases[0], d1, d2), (bases[1], d1, d2)]
        hi = (sb // 65536) * 65536; lo = sb - hi
        cur = {}
        for n, b in enumerate(bases):
            if hi:
                if curbase.get(n) != (b, hi):
                    a.valu('v_add_u32', v(vCUR+n), hex(hi), v(b)); curbase[n] = (b, hi)
                cur[b] = vCUR + n
            else: cur[b] = b
        ops = []
        for i, (b, off, dd) in enumerate(lst):
            r0 = WF + buf*16 + i*4
            ops.append(lambda r0=r0, b=b, off=off: a.ds_read('ds_read_b64_tr_b16', v(r0, 2), v(cur[b]), offset=lo + off))
            ops.append(lambda r0=r0, b=b, off=off, dd=dd: a.ds_read('ds_read_b64_tr_b16', v(r0+2, 2), v(cur[b]), offset=lo + off + dd))
        return ops
    aQ2 = vFLAG
    def mfma_ops(hs):
        if hs < 0: return []
        buf = hs & 1; L = []
        if hs < 8:
            for h in range(2):
                for tb in range(2): L.append((v(ACCA + tb*4, 4), wf(buf, 2*h), xf(tb, 2*hs+h), 'kv'))
                for tb in range(2): L.append((v(ACCA + 8 + tb*4, 4), xf(tb, 2*hs+h), wf(buf, 2*h+1), 'kv'))
        elif hs >= 24:
            for h in range(2):
                for e in range(2): L.append((v(ACCQ + e*4, 4), wf(buf, 2*h+e), xf(0, 2*(hs-24)+h), 'q'))
        else:
            hf = (hs - 8) >> 3; k0 = 2 * ((hs - 8) & 7); A0 = ACCB if hf else ACCA
            for h in range(2):
                for e in range(2):
                    for tb in range(2): L.append((v(A0 + (e*2+tb)*4, 4), wf(buf, 2*h+e), xf(tb, k0+h), 'f'))
        ops = []
        for d, A, B, ph in L:
            def op(d=d, A=A, B=B, ph=ph):
                c = d if ((d, ph) in started or ph == 'f') else 0
                started.add((d, ph)); a.mfma(d, A, B, c)
            ops.append(op)
        return ops
    def flag_store(setup, ts=t0, tv=(vT0, vT1)):
        setup()
        a.valu('v_mov_b32', v(tv[0]), 0); a.valu('v_mov_b32', v(tv[1]), s(sTAG))
        a.salu('s_mov_b64', 'exec', 1)
        a.bstore('buffer_store_dword', v(tv[1]), v(tv[0]), s(S_WS, 4), s(ts), flags=COH)
        a.salu('s_mov_b64', 'exec', -1)
    def tagcheck(regs_, label, reload, tv=(vT0, vT1)):
        a.salu('s_mov_b32', s(sSPIN), 0)
        a.label(f"L_{label}_chk")
        a.valu('v_xor_b32', v(tv[0]), s(sTAG), v(regs_[0]))
        for r_ in regs_[1:]:
            a.valu('v_xor_b32', v(tv[1]), s(sTAG), v(r_)); a.valu('v_or_b32', v(tv[0]), v(tv[0]), v(tv[1]))
        a.valu('v_cmp_ne_u32', 'vcc', 0, v(tv[0]))
        a.nop(1); a.scmp('s_cmp_eq_u64', 'vcc', 0); a.other(f"s_cbranch_scc1 L_{label}_ok")
        a.salu('s_add_u32', s(sSPIN), s(sSPIN), 1); a.scmp('s_cmp_ge_u32', s(sSPIN), 200000); a.other(f"s_cbranch_scc1 L_{label}_ok")
        a.other("s_sleep 2")
        reload(); a.waitcnt(vm=0)
        a.other(f"s_branch L_{label}_chk")
        a.label(f"L_{label}_ok")
    def head_s(dst):
        a.salu('s_lshl_b32', s(dst), s(sC), 2); a.salu('s_add_u32', s(dst), s(dst), s(sCQ))
    st = {'j': 0, 'nbar': 0, 'hs_done': -1, 'marks': {}}
    bg = Rec(a)
    def after_barrier(name):
        def mark(): st['marks'][name] = st['nbar']
        bg.block(mark)
        bg.gate(lambda: st['nbar'] > st['marks'][name])
    def mark_j(name): bg.block(lambda: st['marks'].__setitem__(name, st['nbar']))
    def wait_j(name, d): bg.gate(lambda: st['nbar'] >= st['marks'][name] + d or st['j'] >= NST)
    b = bg
    def red4(r, op, M, T, mid):
        r.valu('v_permlane32_swap_b32', v(M), v(M+1)); r.valu('v_permlane32_swap_b32', v(M+2), v(M+3))
        r.valu(op, v(M), v(M), v(M+1)); r.valu(op, v(M+2), v(M+2), v(M+3))
        r.valu('v_mov_b32', v(T), 0)
        r.valu('v_permlane16_swap_b32', v(M), v(M+2))
        r.valu(op, v(M), v(M), v(M+2))
        mid(M)
        r.valu('v_mov_b32', v(M+2), v(M)); r.valu('v_mov_b32', v(T), 0)
        r.valu('v_permlane16_swap_b32', v(M), v(M+2))
        r.valu('v_mov_b32', v(M+1), v(M)); r.valu('v_mov_b32', v(M+3), v(M+2)); r.valu('v_mov_b32', v(T), 0)
        r.valu('v_permlane32_swap_b32', v(M), v(M+1)); r.valu('v_permlane32_swap_b32', v(M+2), v(M+3))
    def softmax2(r, QBr, Pp, M, E, EE, TT, WPs=None):
        WPs = WPs or (vWP, vWP)
        for tb in range(2): r.mfma(v(Pp+4*tb, 4), v(WPs[tb], 2), v(QBr+2*tb, 2), 0, op='v_mfma_f32_16x16x16_bf16')
        r.valu('v_mov_b32', v(vU1), hex(L2E))
        for i in range(3): r.valu('v_mov_b32', v(E+i), 0)
        rbf_pairs(r, [Pp+i for i in range(8)], [E+i for i in range(4)])
        for tb in range(2):
            p = Pp + 4*tb
            r.valu('v_max3_f32', v(M+tb), v(p), v(p+1), v(p+2)); r.valu('v_max3_f32', v(M+2+tb), '-'+v(p), '-'+v(p+1), '-'+v(p+2))
            r.valu('v_max_f32', v(M+tb), v(M+tb), v(p+3)); r.valu('v_max_f32_e64', v(M+2+tb), v(M+2+tb), '-'+v(p+3))
        red4(r, 'v_max_f32', M, TT, lambda x: r.valu('v_mul_f32', v(x), hex(L2E), v(x)))
        for i in range(8): r.valu('v_fma_f32', v(E+i), v(Pp+i), v(vU1), '-'+v(M+i//4))
        for i in range(8): r.valu('v_fma_f32', v(EE+i), '-'+v(Pp+i), v(vU1), '-'+v(M+2+i//4))
        for i in range(8): r.valu('v_exp_f32', v(E+i), v(E+i))
        for i in range(8): r.valu('v_exp_f32', v(EE+i), v(EE+i))
        for tb in range(2):
            for k, e in enumerate((E, EE)):
                d = M + 2*k + tb
                r.valu('v_add_f32', v(d), v(e+4*tb), v(e+4*tb+1)); r.valu('v_add_f32', v(TT), v(e+4*tb+2), v(e+4*tb+3)); r.valu('v_add_f32', v(d), v(d), v(TT))
        red4(r, 'v_add_f32', M, TT, lambda x: r.valu('v_rcp_f32', v(x), v(x)))
        for i in range(8): r.valu('v_mul_f32', v(E+i), v(E+i), v(M+i//4))
        for i in range(8): r.valu('v_mul_f32', v(EE+i), v(EE+i), v(M+2+i//4))
        for tb in range(2):
            o = Pp + 4*tb
            r.valu('v_cvt_pk_bf16_f32', v(o), v(E+4*tb), v(E+4*tb+1)); r.valu('v_cvt_pk_bf16_f32', v(o+1), v(E+4*tb+2), v(E+4*tb+3))
            r.valu('v_cvt_pk_bf16_f32', v(o+2), v(EE+4*tb), v(EE+4*tb+1)); r.valu('v_cvt_pk_bf16_f32', v(o+3), v(EE+4*tb+2), v(EE+4*tb+3))
    KA = TMP; M = TMP + 4; E = TMP + 8; EE = TMP + 16; P = ACCB; VB = ACCB + 8; ONE = ACCB + 12
    KVP = E; ZP = EE
    def kv_convert():
        for tb in range(2):
            for h in range(2): a.valu('v_cvt_pk_bf16_f32', v(KA+2*tb+h), v(ACCA+tb*4+2*h), v(ACCA+tb*4+2*h+1))
        for tb in range(2):
            for h in range(2): a.valu('v_cvt_pk_bf16_f32', v(VB+2*tb+h), v(ACCA+8+tb*4+2*h), v(ACCA+8+tb*4+2*h+1))
        st['kvconv'] = True
    b.gate(lambda: st.get('kvconv'))
    softmax2(b, KA, P, M, E, EE, KA)
    for i in range(4): b.valu('v_mov_b32', v(ONE+i), '0x3f803f80')
    for sg, dst in enumerate((E, EE)):
        for tb in range(2): b.mfma(v(dst+4*tb, 4), v(P+4*tb+2*sg, 2), v(vID, 2), 0, op='v_mfma_f32_16x16x16_bf16')
    b.valu('v_lshlrev_b32', v(vU0), 4, v(vL)); b.salu('s_lshl_b32', s(u0), s(sCQ), 12); b.salu('s_add_u32', s(u0), s(u0), hex(MISC))
    b.valu('v_add_u32', v(vT2), s(u0), v(vU0))
    PHP = KA; PHM = M
    for i in range(4): b.valu('v_cvt_pk_bf16_f32', v(PHP+i), v(E+2*i), v(E+2*i+1))
    for i in range(4): b.valu('v_cvt_pk_bf16_f32', v(PHM+i), v(EE+2*i), v(EE+2*i+1))
    b.mfma(v(KVP, 4), v(PHP, 4), v(VB, 4), 0); b.mfma(v(KVP+4, 4), v(PHM, 4), v(VB, 4), 0)
    b.mfma(v(ZP, 4), v(PHP, 4), v(ONE, 4), 0); b.mfma(v(ZP+4, 4), v(PHM, 4), v(ONE, 4), 0)
    for i in range(3): b.valu('v_mov_b32', v(P+4*i+3), s(sTAG))
    def park():
        a.scmp('s_cmp_eq_u32', s(sTH), 0); a.other("s_cbranch_scc1 L_nopark")
        a.ds_write('ds_write_b128', v(vT2), v(KVP, 4)); a.ds_write('ds_write_b128', v(vT2), v(KVP+4, 4), offset=1024)
        a.ds_write('ds_write_b128', v(vT2), v(ZP, 4), offset=2048); a.ds_write('ds_write_b128', v(vT2), v(ZP+4, 4), offset=3072)
        a.label("L_nopark")
    b.block(park)
    after_barrier('park')
    def kv_publish():
        a.scmp('s_cmp_lg_u32', s(sTH), 0); a.other("s_cbranch_scc1 L_nopub")
        Q = TMP; G = ACCB
        head_s(u0); a.salu('s_lshl_b32', s(u0), s(u0), 5); a.salu('s_add_u32', s(u0), s(u0), s(sR)); a.salu('s_mul_i32', s(u0), s(u0), 3456)
        a.salu('s_add_u32', s(u0), s(u0), hex(PART))
        for k, src in enumerate((KVP, ZP)):
            a.ds_read('ds_read_b128', v(Q, 4), v(vT2), offset=2048*k); a.ds_read('ds_read_b128', v(Q+4, 4), v(vT2), offset=2048*k+1024)
            if k == 1: a.valu('v_and_b32', v(vU0), 48, v(vL)); a.valu('v_add_u32', v(vU0), 1024, v(vU0))
            a.waitcnt(lgkm=0)
            for i in range(8): a.valu('v_add_f32', v(G + 4*(i//3) + i%3), v(src+i), v(Q+i))
            if k == 1:
                a.salu('s_mov_b32', 'exec_lo', '0x00010001'); a.salu('s_mov_b32', 'exec_hi', '0x00010001')
            for i in range(3): a.bstore('buffer_store_dwordx4', v(G+4*i, 4), v(vU0), s(S_WS, 4), s(u0), offset=1152*i, flags=COH)
            if k == 1: a.salu('s_mov_b64', 'exec', -1)
            a.nop(2)
        a.label("L_nopub")
        vm.add('pst', 6, cls=0)
        st['pub'] = True
        stamp()
    b.block(kv_publish); mark_j('pub')
    vWP2 = vCUR + 2
    def wp2():
        a.salu('s_xor_b32', s(u1), s(sCQ), 1); a.salu('s_lshl_b32', s(u0), s(sC), 2); a.salu('s_add_u32', s(u0), s(u0), s(u1)); a.salu('s_lshl_b32', s(u0), s(u0), 9)
        a.valu('v_lshrrev_b32', v(vU0), 4, v(vL)); a.valu('v_lshlrev_b32', v(vU0), 7, v(vU0)); a.valu('v_and_b32', v(vU1), 15, v(vL)); a.valu('v_lshl_add_u32', v(vU0), v(vU1), 1, v(vU0))
        for k, d in enumerate((vWP2, vWP2+2, vWP2+1, vWP2+3)):
            a.bload('buffer_load_ushort', v(d), v(vU0), s(S_WP, 4), s(u0), offset=32*k)
        vm.add('wp2', 4)
        a.valu('v_xor_b32', v(aQ2), 32, v(aQ))
    b.block(wp2)
    QB = TMP; PQ = ACCQ
    def q_softmax(r):
        for tb in range(2):
            for h in range(2): r.valu('v_cvt_pk_bf16_f32', v(QB+2*tb+h), v(ACCQ+tb*4+2*h), v(ACCQ+tb*4+2*h+1))
        r.valu('v_lshlrev_b32', v(vU0), 4, v(vL)); r.salu('s_add_u32', s(u0), s(sWK), hex(MISC + 16384)); r.valu('v_add_u32', v(vT2), s(u0), v(vU0))
        softmax2(r, QB, PQ, M, E, EE, QB)
    def q_exchange():
        a.salu('s_and_b32', s(u0), s(sCQ), 1); a.scmp('s_cmp_eq_u32', s(u0), 0); a.other("s_cbranch_scc1 L_xw_e")
        a.ds_write('ds_write_b128', v(vT2), v(PQ, 4)); a.other("s_branch L_xw_d")
        a.label("L_xw_e"); a.ds_write('ds_write_b128', v(vT2), v(PQ+4, 4)); a.label("L_xw_d")
        a.valu('v_xor_b32', v(vT2), 1024, v(vT2))
        a.waitcnt(lgkm=0); a.barrier()
        a.salu('s_and_b32', s(u0), s(sCQ), 1); a.scmp('s_cmp_eq_u32', s(u0), 0); a.other("s_cbranch_scc1 L_xr_e")
        a.ds_read('ds_read_b128', v(PQ, 4), v(vT2)); a.other("s_branch L_xr_d")
        a.label("L_xr_e"); a.ds_read('ds_read_b128', v(PQ+4, 4), v(vT2)); a.label("L_xr_d")
    RD = TMP; vRO = aK
    def red_loads():
        for pg in range(2):
            for i in range(3):
                a.bload('buffer_load_dwordx4', v(RD + (pg*3+i)*4, 4), v(vRO + pg), s(S_WS, 4), s(sRED), offset=1152*i, flags=COH)
    def red_issue():
        a.salu('s_mov_b32', s(sRED), -1)
        a.scmp('s_cmp_eq_u32', s(sTH), 0); a.other("s_cbranch_scc1 L_nored1")
        a.salu('s_lshr_b32', s(u1), s(sR), 1)
        a.salu('s_xor_b32', s(u0), s(sR), s(sCQ)); a.scmp('s_cmp_eq_u32', s(u0), 1); a.salu('s_cselect_b32', s(u1), 16, s(u1))
        a.salu('s_cselect_b32', s(u0), 0, s(u0)); a.salu('s_and_b32', s(u0), s(u0), 1); a.scmp('s_cmp_lg_u32', s(u0), 0); a.other("s_cbranch_scc1 L_nored1")
        a.salu('s_lshl_b32', s(sSL), s(u1), 6)
        head_s(u0); a.salu('s_mul_i32', s(u0), s(u0), 32*3456); a.salu('s_add_u32', s(u0), s(u0), s(sSL)); a.salu('s_add_u32', s(sRED), s(u0), hex(PART))
        a.valu('v_lshrrev_b32', v(vU0), 2, v(vL)); a.valu('v_mul_u32_u24', v(vU0), 3456, v(vU0)); a.valu('v_and_b32', v(vU1), 3, v(vL))
        a.valu('v_lshl_add_u32', v(vRO), v(vU1), 4, v(vU0)); a.valu('v_add_u32', v(vRO+1), hex(16*3456), v(vRO))
        red_loads()
        a.label("L_nored1")
        vm.mark = len(vm.q[1])
    def red_finish():
        a.scmp('s_cmp_eq_u32', s(sRED), -1); a.other("s_cbranch_scc1 L_nored2")
        a.waitcnt(vm=len(vm.q[1]) - vm.mark)
        tagcheck([RD + 4*k + 3 for k in range(6)], "red", red_loads, tv=(vU0, vU1))
        V = [RD + 4*(i//3) + i%3 for i in range(8)]; T = [RD + 12 + i for i in range(8)]
        for x in V: a.valu('v_add_f32', v(x), v(x), v(x+12))
        for sh in (8, 4):
            for x in V: a.valu('v_add_f32_dpp', v(x), v(x), v(x), mod=f"row_ror:{sh} " + DPPM)
        allred(a, 'v_add_f32', V, T)
        G = RD + 12
        for i in range(3): a.valu('v_cvt_pk_bf16_f32', v(G+i), v(V[2*i]), v(V[2*i+1]))
        a.valu('v_cvt_pk_bf16_f32', v(G+4), v(V[6]), v(V[7]))
        a.valu('v_mov_b32', v(G+3), s(sTAG)); a.valu('v_mov_b32', v(G+7), s(sTAG))
        head_s(u0); a.salu('s_mul_i32', s(u0), s(u0), 2304); a.salu('s_add_u32', s(u0), s(u0), s(sSL)); a.salu('s_add_u32', s(u0), s(u0), hex(RED))
        a.valu('v_lshlrev_b32', v(vU0), 4, v(vL))
        a.salu('s_mov_b64', 'exec', 15)
        a.bstore('buffer_store_dwordx4', v(G, 4), v(vU0), s(S_WS, 4), s(u0), flags=COH)
        a.bstore('buffer_store_dwordx4', v(G+4, 4), v(vU0), s(S_WS, 4), s(u0), offset=1152, flags=COH)
        a.salu('s_mov_b64', 'exec', -1)
        a.nop(2)
        a.label("L_nored2")
        stamp()
    wait_j('pub', opt('rd1', 2)); b.block(red_issue); mark_j('red')
    def b1_init(hf):
        A0 = ACCB if hf else ACCA
        for e in range(2):
            for tb in range(2):
                for h in range(2):
                    d = A0 + (e*2+tb)*4 + 2*h
                    a.valu('v_lshlrev_b32', v(d), 16, v(vB1+4*hf+2*e+h)); a.valu('v_and_b32', v(d+1), '0xffff0000', v(vB1+4*hf+2*e+h))
    def h_epilogue(r, hf, us):
        A0 = ACCB if hf else ACCA
        r.valu('v_lshlrev_b32', v(vU0), 4, v(vL)); r.salu('s_lshl_b32', s(us[0]), s(sPAR), 10); r.valu('v_add_u32', v(vU0), s(us[0]), v(vU0)); r.valu('v_xor_b32', v(vU1), 1024, v(vU0))
        r.salu('s_mul_i32', s(us[0]), s(sR), 72); r.salu('s_add_u32', s(us[0]), s(us[0]), s(sK0)); r.salu('s_add_u32', s(us[0]), s(us[0]), s(sCQ))
        r.salu('s_lshl_b32', s(us[0]), s(us[0]), 12); r.salu('s_lshl_b32', s(us[1]), s(sTH), 11); r.salu('s_add_u32', s(us[0]), s(us[0]), s(us[1]))
        if hf: r.salu('s_add_u32', s(us[0]), s(us[0]), 4*4096)
        for tb in range(2):
            vals = [A0 + (e*2+tb)*4 + k for e in range(2) for k in range(4)]
            for x in vals: r.valu('v_max_f32', v(x), 0, v(x))
            for x in vals: r.valu('v_mul_f32', v(x), v(x), v(x))
            O = vals[0]
            r.valu('v_cvt_pk_bf16_f32', v(O), v(vals[0]), v(vals[1])); r.valu('v_cvt_pk_bf16_f32', v(O+1), v(vals[2]), v(vals[3]))
            r.valu('v_cvt_pk_bf16_f32', v(O+2), v(vals[4]), v(vals[5])); r.valu('v_cvt_pk_bf16_f32', v(O+3), v(vals[6]), v(vals[7]))
            def stv(O=O, tb=tb):
                a.bstore('buffer_store_dwordx4', v(O, 4), v(vU1 if tb else vU0), s(S_WS, 4), s(us[0]), flags=COH); vm.add(('hst', hf))
            if r is a: stv()
            else: r.block(stv)
    def hf_off(base, ts=(t0, t1)):
        def f():
            a.salu('s_lshl_b32', s(ts[0]), s(sR), 8); a.salu('s_lshl_b32', s(ts[1]), s(sW), 5); a.salu('s_add_u32', s(ts[0]), s(ts[0]), s(ts[1])); a.salu('s_add_u32', s(ts[0]), s(ts[0]), hex(base))
        return f
    def hf_own(base, ts=(t0, t1)):
        def f():
            a.salu('s_lshl_b32', s(ts[0]), s(sR), 8); a.salu('s_lshl_b32', s(ts[1]), s(sC), 5); a.salu('s_add_u32', s(ts[0]), s(ts[0]), s(ts[1]))
            a.salu('s_lshl_b32', s(ts[1]), s(sW), 2); a.salu('s_add_u32', s(ts[0]), s(ts[0]), s(ts[1])); a.salu('s_add_u32', s(ts[0]), s(ts[0]), hex(base))
        return f
    def h_flag(hf):
        def f():
            vwait(('hst', hf)); flag_store(hf_own(F_HB if hf else F_HA, (u0, u1)), ts=u0, tv=(vU0, vU1)); vm.add('fl')
        return f
    b.gate(lambda: st['hs_done'] >= 15)
    h_epilogue(b, 0, (u0, u1)); mark_j('ha')
    wait_j('red', opt('rd2', 2)); b.block(red_finish); mark_j('redf')
    wait_j('ha', 3); b.block(h_flag(0))
    b.gate(lambda: st['hs_done'] >= 23)
    h_epilogue(b, 1, (u0, u1)); mark_j('hb')
    vL4, vL8, vZO, vPOLL = aF, aF + 1, aK, aV
    KVD = ACCA
    def kv_loads():
        a.salu('s_lshl_b32', s(t0), s(sC), 2); a.salu('s_and_b32', s(t1), s(sCQ), 2); a.salu('s_add_u32', s(t0), s(t0), s(t1)); a.salu('s_mul_i32', s(t0), s(t0), 2304)
        a.salu('s_add_u32', s(t0), s(t0), hex(RED))
        for e in range(2):
            for k, vo in enumerate((vL4, vZO)):
                for i in range(2):
                    a.bload('buffer_load_dwordx4', v(KVD + 16*e + 8*k + 4*i, 4), v(vo), s(S_WS, 4), s(t0), offset=2304*e + 1152*i, flags=COH)
    def poll(base):
        def f():
            hf_off(base)(); a.bload('buffer_load_dword', v(vPOLL), v(vL8), s(S_WS, 4), s(t0), flags=COH)
        return f
    b.valu('v_lshlrev_b32', v(vL4), 4, v(vL)); b.valu('v_and_b32', v(vZO), 48, v(vL)); b.valu('v_add_u32', v(vZO), 1024, v(vZO))
    b.valu('v_and_b32', v(vL8), 7, v(vL)); b.valu('v_lshlrev_b32', v(vL8), 2, v(vL8))
    def pha(): poll(F_HA)(); vm.add('ha')
    b.gate(lambda: st['hs_done'] >= 27)
    b.block(pha)
    def bg_take(n):
        k = 0
        while k < n and bg.items:
            it = bg.items[0]
            if isinstance(it, tuple):
                if not it[1](): return
                bg.items.pop(0); continue
            bg.items.pop(0); it(); k += 1
    def interleave(ms, fs, lead=2, per=2, done=None):
        fs = list(fs)
        for _ in range(min(lead, len(fs))): fs.pop(0)()
        for m in ms:
            m()
            for _ in range(min(per, len(fs))): fs.pop(0)()
            bg_take(BGRATE)
        for f in fs: f()
        if done is not None: st['hs_done'] = done
    for j in range(NST):
        st['j'] = j
        vwait(('st', j), lgkm=0); a.barrier(); st['nbar'] += 1
        if j >= 3: stamp('it')
        if j <= 4: stamp('e')
        d = []
        if j == 0: d = dma_ops(3) + dma_ops(4)
        elif j in (1, 2): d = dma_ops(j + 4)
        elif j >= 4: d = dma_ops(j + 3)
        if j == 1:
            a.valu('v_lshrrev_b32', v(vT0), 2, v(vL)); a.valu('v_and_b32', v(vT1), 4, v(vT0)); a.valu('v_and_b32', v(vT2), 7, v(vL))
            a.valu('v_xor_b32', v(vT1), v(vT1), v(vT2)); a.valu('v_lshlrev_b32', v(vT1), 4, v(vT1)); a.valu('v_lshrrev_b32', v(vT2), 3, v(vL))
            a.valu('v_lshl_add_u32', v(vT1), v(vT2), 10, v(vT1)); a.salu('s_lshl_b32', s(t0), s(sC), 7); a.valu('v_add_u32', v(vDW), s(t0), v(vT1))
        if j == opt('w2j', 3):
            def tw(k, sd):
                def f(): a.bload('buffer_load_dword', 'v0', v(vCUR+4+k), s(sd, 4), 0); vm.add('touch')
                return f
            d = d + [tw(0, S_WO), tw(1, S_W2)]
        units = [2*j, 2*j+1] if j < 12 else [24 + 4*(j-12) + i for i in range(4)]
        nd = (len(d) + len(units) - 1) // len(units)
        for n_, u in enumerate(units):
            if n_: a.waitcnt(lgkm=0)
            r = read_ops(u)
            if u == 9:
                kv_convert(); vwait('b1'); b1_init(0)
            if u == 17:
                assert st.get('pub'); b1_init(1)
            dd = d[n_*nd:(n_+1)*nd]
            if u == 0: interleave([], dd + r)
            else: interleave(mfma_ops(u - 1), r + dd, done=u - 1, per=2 if u <= 24 else 3)
            if u == 8: stamp()
    st['j'] = NST
    a.waitcnt(lgkm=0); a.barrier(); st['nbar'] += 1
    interleave(mfma_ops(31), dma_ops(17), lead=0, per=1, done=31)
    st['nbar'] += 100
    bg_take(10000)
    assert not bg.items
    stamp()
    if 'noprio' not in EXP: a.other('s_setprio 3')
    AF = 128; Z0 = 192
    QB2, M2, E2_, EE2, PQ2, KVD2 = Z0, Z0 + 4, Z0 + 8, Z0 + 16, Z0 + 24, Z0 + 32
    afslot = lambda p: p if p < 8 else 0
    vA2 = vF
    A2 = 32; WF2 = 96; aW = vB1; aH = vB1 + 2
    a.salu('s_mul_i32', s(t2), s(sR), 294912)
    a.valu('v_and_b32', v(vT0), 15, v(vL)); a.valu('v_lshrrev_b32', v(vT1), 5, v(vL)); a.valu('v_lshl_add_u32', v(vT0), v(vT1), 4, v(vT0))
    a.valu('v_and_b32', v(vT1), 16, v(vL)); a.valu('v_lshlrev_b32', v(vT1), 6, v(vT1)); a.valu('v_lshl_add_u32', v(vT0), v(vT0), 4, v(vT1))
    a.valu('v_add_u32', v(vA2), s(t2), v(vT0))
    for tb in range(2):
        for h in range(2): a.valu('v_cvt_pk_bf16_f32', v(QB2+2*tb+h), v(ACCQ+tb*4+2*h), v(ACCQ+tb*4+2*h+1))
    def ldA_ops(p):
        ops = []
        for tg in range(2):
            for m in range(2):
                def op(tg=tg, m=m):
                    if p < 7: a.salu('s_lshl_b32', s(t1), s(KS+p), 12)
                    else:
                        a.salu('s_lshl_b32', s(t1), s(sW), 13); a.salu('s_add_u32', s(t1), s(t1), (56 + p - 7) * 4096)
                    if 'fakeA' in EXP:
                        a.salu('s_and_b32', s(t1), s(t1), 0x3ffff)
                        a.bload('buffer_load_dwordx4', v(AF + (afslot(p)*4+tg*2+m)*4, 4), v(vL4), s(S_W2, 4), s(t1), offset=tg*2048 + m*1024); vm.add(('A', p)); return
                    a.bload('buffer_load_dwordx4', v(AF + (afslot(p)*4+tg*2+m)*4, 4), v(vA2), s(S_WS, 4), s(t1), offset=tg*2048 + m*512, flags=('' if 'plainA' in EXP else COH)); vm.add(('A', p))
                ops.append(op)
        return ops
    def kv_loads2():
        for e in range(2):
            head_s(u0)
            if e: a.salu('s_xor_b32', s(u0), s(u0), 1)
            a.salu('s_mul_i32', s(u0), s(u0), 2304); a.salu('s_add_u32', s(u0), s(u0), hex(RED))
            for k, vo in enumerate((vL4, vZO)):
                for i in range(2):
                    a.bload('buffer_load_dwordx4', v(KVD2 + 16*e + 8*k + 4*i, 4), v(vo), s(S_WS, 4), s(u0), offset=1152*i, flags=COH)
    a.valu('v_lshl_or_b32', v(vWP2), v(vWP2+2), 16, v(vWP2)); a.valu('v_lshl_or_b32', v(vWP2+1), v(vWP2+3), 16, v(vWP2+1))
    vwait('ha'); tagcheck([vPOLL], "ha", poll(F_HA))
    for op in ldA_ops(0): op()
    b.valu('v_and_b32', v(vT1), 15, v(vL)); b.valu('v_lshrrev_b32', v(vT2), 2, v(vT1)); b.valu('v_lshrrev_b32', v(vT0), 5, v(vL)); b.valu('v_lshl_add_u32', v(vCUR), v(vT0), 2, v(vT2))
    b.valu('v_and_b32', v(vT2), 2, v(vT2)); b.valu('v_lshrrev_b32', v(vT0), 4, v(vL)); b.valu('v_and_b32', v(vT0), 1, v(vT0)); b.valu('v_or_b32', v(vT2), v(vT2), v(vT0))
    b.valu('v_and_b32', v(vT1), 3, v(vT1)); b.valu('v_lshlrev_b32', v(vT1), 3, v(vT1)); b.valu('v_lshl_add_u32', v(vT1), v(vT2), 5, v(vT1))
    b.valu('v_lshl_add_u32', v(vT1), v(vCUR), 7, v(vT1)); b.salu('s_lshl_b32', s(u0), s(sWK), 2); b.valu('v_add_u32', v(aW), s(u0), v(vT1))
    b.valu('v_xor_b32', v(aW+1), 64, v(aW))
    for nb in range(2): b.valu('v_add_u32', v(aH+nb), '0x10000', v(aW+nb))
    NSETUP = len(b.items)
    softmax2(b, QB2, PQ2, M2, E2_, EE2, QB2, WPs=(vWP, vWP2))
    def kvchk():
        vwait('kvd'); tagcheck([KVD2 + 4*k + 3 for k in range(8)], "kvd", kv_loads2, tv=(vU0, vU1)); stamp()
    b.block(kvchk)
    for k in range(4): b.valu('v_mov_b32', v(KVD2 + 8*k + 3), v(KVD2 + 8*k + 4))
    b.salu('s_mul_i32', s(u0), s(sR), 72); b.salu('s_lshl_b32', s(u1), s(sC), 1); b.salu('s_add_u32', s(u0), s(u0), s(u1))
    for e in range(2):
        b.mfma(v(E2_ + 8*e, 4), v(KVD2 + 16*e, 4), v(PQ2 + 4*e, 4), 0); b.mfma(v(E2_ + 8*e + 4, 4), v(KVD2 + 16*e + 8, 4), v(PQ2 + 4*e, 4), 0)
    b.salu('s_lshr_b32', s(u1), s(sCQ), 1); b.salu('s_add_u32', s(u0), s(u0), s(u1)); b.salu('s_add_u32', s(u0), s(u0), 56); b.salu('s_lshl_b32', s(u0), s(u0), 12)
    b.salu('s_lshl_b32', s(u1), s(sTH), 11); b.salu('s_add_u32', s(u0), s(u0), s(u1))
    b.salu('s_lshl_b32', s(u1), s(sPAR), 10); b.salu('s_add_u32', s(u0), s(u0), s(u1))
    for e in range(2):
        KV = E2_ + 8*e; Z = KV + 4; T = QB2; O = M2 + 2*e
        rbf_pairs(b, [KV+i for i in range(4)], [T, T+1])
        b.valu('v_cvt_pk_bf16_f32', v(Z), v(Z), v(Z)); b.valu('v_lshlrev_b32', v(Z), 16, v(Z))
        b.valu('v_add_f32', v(Z), '0x358637bd', v(Z))
        b.valu('v_cvt_pk_bf16_f32', v(Z), v(Z), v(Z)); b.valu('v_lshlrev_b32', v(Z), 16, v(Z))
        b.valu('v_rcp_f32', v(Z+1), v(Z))
        b.valu('v_fma_f32', v(Z+2), '-' + v(Z), v(Z+1), 1.0); b.valu('v_fma_f32', v(Z+1), v(Z+2), v(Z+1), v(Z+1))
        for i in range(4): b.valu('v_mul_f32', v(KV+i), v(KV+i), v(Z+1))
        b.valu('v_cvt_pk_bf16_f32', v(O), v(KV), v(KV+1)); b.valu('v_cvt_pk_bf16_f32', v(O+1), v(KV+2), v(KV+3))
    def ost():
        a.scmp('s_cmp_eq_u32', s(sPAR), 0); a.other("s_cbranch_scc1 L_nosw")
        a.valu('v_swap_b32', v(M2), v(M2+2), extra_w=[v(M2+2)], rmw=True); a.valu('v_swap_b32', v(M2+1), v(M2+3), extra_w=[v(M2+3)], rmw=True)
        a.label("L_nosw")
        a.bstore('buffer_store_dwordx4', v(M2, 4), v(vL4), s(S_WS, 4), s(u0), flags=COH); vm.add('ost')
    b.block(ost)
    def odone(): st['odone'] = True; stamp()
    b.block(odone)
    def hbf():
        vwait(('hst', 1)); flag_store(hf_own(F_HB), tv=(vCUR+4, vCUR+5)); vm.add('fl')
    def kvl(): kv_loads2(); vm.add('kvd', 8)
    def phb(): poll(F_HB)(); vm.add('hb')
    hbf(); kvl()
    pre = ldA_ops(1) + ldA_ops(2)
    QE = opt('qe', 16)
    bg_take(NSETUP)
    for x in pre:
        bg_take(QE); x()
    bg_take(10000)
    phb()
    srd(a, S_B2, 20, 1024); srd(a, S_OUT, 22, 2097152)
    stamp()
    def reads2(p):
        sb = REG(14 + p); hi = sb >= 65536; lo = sb - (65536 if hi else 0)
        ops = []
        for m in range(2):
            for nb in range(2):
                r0 = WF2 + (p & 1) * 16 + (m*2+nb) * 4; bb = (aH if hi else aW) + nb
                ops.append(lambda r0=r0, bb=bb, m=m: a.ds_read('ds_read_b64_tr_b16', v(r0, 2), v(bb), offset=lo + m*1024))
                ops.append(lambda r0=r0, bb=bb, m=m: a.ds_read('ds_read_b64_tr_b16', v(r0+2, 2), v(bb), offset=lo + m*1024 + 2048))
        return ops
    def mfmas2(p):
        ops = []
        for m in range(2):
            for nb in range(2):
                for tg in range(2):
                    d = v(A2 + (nb*2+tg)*16, 16)
                    ops.append(lambda d=d, nb=nb, tg=tg, m=m: a.mfma(d, v(WF2 + (p & 1)*16 + (m*2+nb)*4, 4), v(AF + (afslot(p)*4+tg*2+m)*4, 4), d if (p or m) else 0, op='v_mfma_f32_32x32x16_bf16'))
        return ops
    vXX, vBB, vOO = AF + 16, AF + 20, vAO
    def xb():
        a.valu('v_lshrrev_b32', v(vT0), 3, v(vL)); a.valu('v_lshlrev_b32', v(vT1), 2, v(vL8))
        a.salu('s_lshl_b32', s(t0), s(sR), 6); a.salu('s_lshl_b32', s(t1), s(sW), 3); a.salu('s_add_u32', s(t0), s(t0), s(t1))
        a.valu('v_add_u32', v(vT0), s(t0), v(vT0)); a.valu('v_lshl_add_u32', v(vOO), v(vT0), 10, v(vT1))
        a.salu('s_lshl_b32', s(t3), s(sC), 7)
        a.bload('buffer_load_dwordx4', v(vXX, 4), v(vOO), s(S_X, 4), s(t3)); a.bload('buffer_load_dwordx4', v(vBB, 4), v(vT1), s(S_B2, 4), s(t3)); vm.add('xb', 2)
    def off_(): vwait('ost'); flag_store(hf_own(F_OF)); vm.add('fl')
    def pof(): poll(F_OF)(); vm.add('of')
    HBP = opt('hbp', 1); OFP = opt('ofp', 6)
    pend = []; late = []
    for p in range(10):
        stamp('p2')
        fill = []
        if p < 9:
            vwait(('st', 14 + p), lgkm=0)
            fill = reads2(p)
        else: a.waitcnt(lgkm=0)
        vs = []
        if p == HBP:
            vwait('hb')
            flag_store(hf_own(F_OF)); vm.add('fl')
            if 'noprio' not in EXP: a.other('s_setprio 0')
            if 'bar2' in EXP: a.barrier()
            tagcheck([vPOLL], "hb", poll(F_HB))
            pend += ldA_ops(3) + ldA_ops(4) + ldA_ops(5) + ldA_ops(6)
        if p == OFP - 2: vs.append(pof)
        if p == OFP:
            vwait('of'); tagcheck([vPOLL], "of", poll(F_OF))
            pend += ldA_ops(7) + ldA_ops(8)
        if p == 4: vs.append(xb)
        n = opt('pace', 8)
        vs += pend[:n]; pend = pend[n:]
        if 1 <= p and p + 3 <= 8: vs += dma_ops(14 + p + 3)
        if p >= 1:
            for f in fill[:4]: f()
            fill = fill[4:]
            vwait(('A', p-1))
            interleave(mfmas2(p - 1), fill + vs, lead=0, per=2)
        else:
            for f in fill + vs: f()
    assert not pend and not late and not bg.items
    stamp(); stamp('p2')
    a.valu('v_lshrrev_b32', v(vT0), 5, v(vL)); a.valu('v_and_b32', v(vT1), 15, v(vL)); a.valu('v_xor_b32', v(vT0), v(vT0), v(vT1))
    a.valu('v_lshlrev_b32', v(vT0), 4, v(vT0)); a.valu('v_lshl_add_u32', v(vT0), v(vT1), 8, v(vT0))
    a.valu('v_and_b32', v(vT1), 16, v(vL)); a.valu('v_lshl_add_u32', v(vT0), v(vT1), 11, v(vT0)); a.salu('s_lshl_b32', s(t1), s(sWK), 2)
    WA = WF2
    a.valu('v_add_u32', v(WA), s(t1), v(vT0))
    for u in range(1, 8): a.valu('v_xor_b32', v(WA+u), u << 5, v(WA))
    for tg in range(2):
        if tg:
            for u in range(8): a.valu('v_add_u32', v(WA+u), '0x10000', v(WA+u))
        for nb in range(2):
            for q in range(4): a.ds_write('ds_write_b128', v(WA + nb*4 + q), v(A2 + (nb*2+tg)*16 + 4*q, 4))
    a.valu('v_lshrrev_b32', v(vT0), 3, v(vL)); a.salu('s_and_b32', s(t1), s(sW), 1); a.salu('s_lshl_b32', s(t1), s(t1), 3); a.valu('v_add_u32', v(vT0), s(t1), v(vT0))
    a.valu('v_lshrrev_b32', v(vT1), 1, v(vL8)); a.valu('v_xor_b32', v(vT1), v(vT1), v(vT0))
    a.valu('v_lshlrev_b32', v(vT1), 4, v(vT1))
    RA = vCUR
    a.valu('v_lshl_add_u32', v(RA), v(vT0), 8, v(vT1)); a.salu('s_lshr_b32', s(t1), s(sW), 1); a.salu('s_lshl_b32', s(t1), s(t1), 15)
    a.valu('v_add_u32', v(RA), s(t1), v(RA)); a.valu('v_xor_b32', v(RA+1), 16, v(RA))
    U = WF2 + 8
    for i in range(4):
        a.valu('v_lshlrev_b32', v(U+2*i), 16, v(vBB+i)); a.valu('v_and_b32', v(U+2*i+1), '0xffff0000', v(vBB+i))
        a.valu('v_lshlrev_b32', v(U+8+2*i), 16, v(vXX+i)); a.valu('v_and_b32', v(U+8+2*i+1), '0xffff0000', v(vXX+i))
    for i in range(8): a.valu('v_add_f32', v(U+i), v(U+i), v(U+8+i))
    a.waitcnt(lgkm=0); a.barrier()
    R = AF + 32
    for p in range(8):
        for e in range(2): a.ds_read('ds_read_b128', v(R + (p*2+e)*4, 4), v(RA + e), offset=p * 4096)
    for p in range(8):
        a.waitcnt(lgkm=14 - 2*p)
        for i in range(8): a.valu('v_add_f32', v(U+i), v(U+i), v(R+p*8+i))
    for i in range(4): a.valu('v_cvt_pk_bf16_f32', v(R+i), v(U+2*i), v(U+2*i+1))
    a.bstore('buffer_store_dwordx4', v(R, 4), v(vOO), s(S_OUT, 4), s(t3))
    a.salu('s_or_b32', s(t0), 's2', s(sW)); a.scmp('s_cmp_lg_u32', s(t0), 0); a.other("s_cbranch_scc1 L_noep")
    flag_store(lambda: a.salu('s_mov_b32', s(t0), hex(F_EPOCH)))
    a.label("L_noep")
    if STAMPS:
        d = S_WQ; vt = TMP
        a.other(f"{'s_memtime' if 'clk' in EXP else 's_memrealtime'} {s(S_W1,2)}")
        a.waitcnt(lgkm=0)
        a.salu('s_add_u32', s(d), s(S_WS), hex(STAMP_OFF)); a.salu('s_addc_u32', s(d+1), s(S_WS+1), 0)
        a.salu('s_mov_b32', s(d+2), '0x100000'); a.salu('s_mov_b32', s(d+3), '0x00020000')
        a.salu('s_lshl_b32', 's3', s(sW), 15); a.salu('s_lshl_b32', s(t0), 's2', 7); a.salu('s_add_u32', 's3', 's3', s(t0))
        a.valu('v_mov_b32', v(vt+2), 0); a.salu('s_mov_b64', 'exec', 1)
        for i, pr in enumerate(stamp_pairs[:nst[0]] + [S_W1]):
            a.valu('v_mov_b32', v(vt), s(pr)); a.valu('v_mov_b32', v(vt+1), s(pr+1))
            a.bstore('buffer_store_dwordx2', v(vt, 2), v(vt+2), s(d, 4), 's3', offset=i * 8); a.waitcnt(vm=0)
    a.label("L_end"); a.other("s_endpgm")
    a.label("L_code_end")
    sys.stderr.write(f"marks {st['marks']} nins {a.nins}\n")
    return a.text(), kernel_desc(kn, 256), 163840

k, d, l = gen()
hdr = open("cdna_kernels/" + NAME + ".s.ref").read().split("; Override")[0]
out = hdr + f"; @launch grid=(256,1,1) block=(512,1,1) lds={l}\n"
out += f'.amdgcn_target "amdgcn-amd-amdhsa--gfx950"\n.text\n.set CODE_BYTES, L_code_end - {NAME}_kernel - 128\n' + k
out += '.section .rodata,"a"\n.p2align 6\n' + d
sys.stdout.write(out)
```

```python
import sys
from asmlib import *
STAMPS = '--stamps' in sys.argv
EXP = [x[2:] for x in sys.argv[1:] if x.startswith('--')]
def opt(name, default):
    for x in EXP:
        if x.startswith(name + '='): return int(x.split('=')[1])
    return default
NAME = "parallel_sum__linear_kernel_hedgehog__dense_activation_squared_relu__prompt"
AWS = 0; PART = 0x1000000; RED = 0x1800000; FL = 0x1A00000; WS_BYTES = 0x2000000; STAMP_OFF = 0x8000000
F_EPOCH = FL; F_HA = FL + 0x4000; F_HB = FL + 0x8000; F_OF = FL + 0xC000
L2E = 0x3fb8aa3b
DPPM = "row_mask:0xf bank_mask:0xf"
COH = "sc0 sc1"
BGRATE = opt('bg', 8)

class VM:
    def __init__(self): self.q = [[], []]
    def add(self, tag, n=1, cls=None):
        for c in (0, 1):
            if cls is None or cls == c: self.q[c] += [tag] * n
    def need1(self, c, tags):
        last = -1
        for i, t in enumerate(self.q[c]):
            if t in tags: last = i
        if last < 0: return None
        return min(63, len(self.q[c]) - 1 - last)

class Rec:
    def __init__(self, a): self.a = a; self.items = []
    def __getattr__(self, name):
        f = getattr(self.a, name)
        def rec(*args, **kw): self.items.append(lambda: f(*args, **kw))
        return rec
    def block(self, fn): self.items.append(fn)
    def gate(self, cond): self.items.append(('gate', cond))

def srd(a, d, base, nbytes):
    a.salu('s_mov_b32', s(d), s(base)); a.salu('s_and_b32', s(d+1), s(base+1), 0xffff)
    a.salu('s_mov_b32', s(d+2), hex(nbytes)); a.salu('s_mov_b32', s(d+3), '0x00020000')

def rbf_pairs(a, vals, tmp):
    for i in range(0, len(vals), 2):
        a.valu('v_cvt_pk_bf16_f32', v(tmp[i//2]), v(vals[i]), v(vals[i+1]))
    for i in range(0, len(vals), 2):
        a.valu('v_lshlrev_b32', v(vals[i]), 16, v(tmp[i//2]))
        a.valu('v_and_b32', v(vals[i+1]), '0xffff0000', v(tmp[i//2]))

def allred(a, op, rs, tmp):
    for sw in ('v_permlane16_swap_b32', 'v_permlane32_swap_b32'):
        for r, t in zip(rs, tmp): a.valu('v_mov_b32', v(t), v(r))
        for r, t in zip(rs, tmp): a.valu(sw, v(r), v(t))
        for r, t in zip(rs, tmp): a.valu(op, v(r), v(r), v(t))

def gen():
    a = Asm(); vm = VM()
    kn = NAME + "_kernel"
    a.raw(kernel_header(kn))
    S_X, S_WQ, S_W1, S_WP, S_B1, S_WS, S_W2, S_WO, S_B2, S_OUT = 24, 28, 32, 36, 40, 44, 48, 52, 36, 40
    sR, sC, sW, sROT, sWK, sTH, sCQ, sK0, sTAG = 56, 57, 58, 59, 60, 61, 62, 63, 64
    t0, t1, t2, t3 = 65, 66, 67, 68
    b0, b1_ = 22, 23
    T1 = 70; KS = 86
    sSPIN = 93; sRED = 69; sSL = 3; sPAR = 59
    u0, u1 = 0, 1
    stamp_pairs = [94, 96, 98, 100, 4, 6, 8, 10, 12, 14, 16, 18]
    DBGP = 100
    if 'dbg' in EXP: stamp_pairs.remove(100)
    nst = [0]
    def stamp(kind='n'):
        mode = 'it' if 'iters' in EXP else ('p2' if 'p2' in EXP else ('e' if 'early' in EXP else 'n'))
        if STAMPS and (kind == mode or nst[0] == 0) and nst[0] < len(stamp_pairs):
            a.other(f"{'s_memtime' if 'clk' in EXP else 's_memrealtime'} {s(stamp_pairs[nst[0]],2)}"); nst[0] += 1
    wl = [0]
    def vwait(*tags, lgkm=None):
        n0, n1 = vm.need1(0, tags), vm.need1(1, tags)
        if n0 == n1: a.waitcnt(vm=n0, lgkm=lgkm); return
        wl[0] += 1; L = f"L_w{wl[0]}"
        a.scmp('s_cmp_eq_u32', s(sTH), 0); a.other(f"s_cbranch_scc1 {L}_0")
        if n1 is not None: a.waitcnt(vm=n1)
        a.other(f"s_branch {L}_e")
        a.label(f"{L}_0")
        if n0 is not None: a.waitcnt(vm=n0)
        a.label(f"{L}_e")
        if lgkm is not None: a.waitcnt(lgkm=lgkm)
    a.scmp('s_cmp_ge_u32', 's2', 256); a.other("s_cbranch_scc1 L_end")
    stamp()
    for d, off in ((4, 0), (14, 88), (6, 8), (8, 16), (10, 40), (12, 48), (16, 56), (18, 24), (20, 64), (22, 72)):
        a.other(f"s_load_dwordx2 {s(d,2)}, s[0:1], {off}")
    if 'dbg' in EXP: a.other(f's_load_dwordx2 {s(DBGP,2)}, s[0:1], 80')
    vL, vKV, vF, vQ, aK, aV, aF, aQ, vWP, vB1 = 1, 2, 3, 4, 5, 6, 7, 11, 12, 14
    vCUR = 22; vFLAG = 28; vT0, vT1, vT2 = 29, 30, 31
    vU0, vU1 = 9, 10
    ACCA = 32; ACCB = 48; ACCQ = 64; WF = 72; TMP = 104; XF = 128
    vEP = vCUR + 2
    a.valu('v_lshrrev_b32', v(vT0), 6, 'v0'); a.valu('v_and_b32', v(vL), 63, 'v0')
    a.valu('v_readfirstlane_b32', s(sW), v(vT0))
    a.salu('s_and_b32', s(t0), 's2', 7); a.salu('s_lshr_b32', s(t1), 's2', 3)
    if 'nopf' not in EXP:
        a.other(f"s_getpc_b64 {s(S_W2,2)}")
        a.salu('s_and_b32', s(S_W2+1), s(S_W2+1), 0xffff); a.salu('s_mov_b32', s(S_W2+2), 'CODE_BYTES'); a.salu('s_mov_b32', s(S_W2+3), '0x00020000')
        a.salu('s_and_b32', s(t2), s(t1), 3); a.salu('s_lshl_b32', s(t2), s(t2), 13)
        a.valu('v_lshlrev_b32', v(vT1), 7, v(vL))
        a.scmp('s_cmp_lg_u32', s(sW), 7); a.other("s_cbranch_scc1 L_nopf")
        a.bload('buffer_load_dword', v(vEP), v(vT1), s(S_W2, 4), s(t2))
        a.label("L_nopf")
    a.salu('s_lshr_b32', s(t2), s(t0), 1); a.salu('s_lshl_b32', s(t2), s(t2), 3); a.salu('s_lshr_b32', s(t3), s(t1), 2)
    a.salu('s_add_u32', s(sR), s(t2), s(t3))
    a.salu('s_and_b32', s(t2), s(t0), 1); a.salu('s_lshl_b32', s(t2), s(t2), 2); a.salu('s_and_b32', s(sC), s(t1), 3)
    a.salu('s_add_u32', s(sC), s(sC), s(t2))
    if opt('cx', 0): a.salu('s_xor_b32', s(sC), s(sC), opt('cx', 0))
    if 'norot' in EXP: a.salu('s_mov_b32', s(t3), 0)
    a.valu('v_lshrrev_b32', v(vT0), 3, v(vL)); a.valu('v_and_b32', v(vT1), 7, v(vL))
    a.salu('s_lshl_b32', s(t0), s(sR), 6); a.salu('s_lshl_b32', s(t1), s(sW), 3); a.salu('s_add_u32', s(t0), s(t0), s(t1))
    a.valu('v_add_u32', v(vT2), s(t0), v(vT0)); a.valu('v_lshlrev_b32', v(vT2), 10, v(vT2)); a.valu('v_lshl_add_u32', v(vT2), v(vT1), 4, v(vT2))
    a.waitcnt(lgkm=0)
    stamp('e')
    srd(a, S_X, 4, 2097152)
    X = 32; F = 64
    for j in range(8):
        a.salu('s_add_u32', s(t2), s(t3), j); a.salu('s_and_b32', s(t2), s(t2), 7); a.salu('s_lshl_b32', s(t2), s(t2), 7)
        a.bload('buffer_load_dwordx4', v(X+4*j, 4), v(vT2), s(S_X, 4), s(t2)); vm.add('x')
    srd(a, S_WS, 14, WS_BYTES)
    a.valu('v_mov_b32', v(TMP), 0); a.salu('s_mov_b32', s(t2), hex(F_EPOCH))
    a.bload('buffer_load_dword', v(vEP), v(TMP), s(S_WS, 4), s(t2), flags=COH); vm.add('x')
    if 'gt' in EXP:
        G0 = S_W2
        a.scmp('s_cmp_ge_u32', s(sW), 4); a.other("s_cbranch_scc1 L_nogt")
        a.scmp('s_cmp_eq_u32', s(sW), 0); a.salu('s_cselect_b32', s(G0), s(6), s(10)); a.salu('s_cselect_b32', s(G0+1), s(7), s(11)); a.salu('s_cselect_b32', s(t2), 48, 56)
        a.scmp('s_cmp_eq_u32', s(sW), 2); a.salu('s_cselect_b32', s(G0), s(16), s(G0)); a.salu('s_cselect_b32', s(G0+1), s(17), s(G0+1))
        a.scmp('s_cmp_eq_u32', s(sW), 3); a.salu('s_cselect_b32', s(G0), s(18), s(G0)); a.salu('s_cselect_b32', s(G0+1), s(19), s(G0+1)); a.salu('s_cselect_b32', s(t2), 16, s(t2))
        a.salu('s_and_b32', s(G0+1), s(G0+1), 0xffff); a.salu('s_lshl_b32', s(G0+2), s(t2), 15); a.salu('s_mov_b32', s(G0+3), '0x00020000')
        a.salu('s_sub_u32', s(t0), s(t2), 1); a.valu('v_min_u32', v(TMP+1), s(t0), v(vL)); a.valu('v_lshlrev_b32', v(TMP+1), 7, v(TMP+1))
        a.salu('s_mul_i32', s(t2), s(t2), 's2'); a.salu('s_lshl_b32', s(t2), s(t2), 7)
        a.bload('buffer_load_dword', 'v0', v(TMP+1), s(G0, 4), s(t2))
        a.label("L_nogt")
        vm.add('gt', 1, cls=0)
    a.salu('s_lshl_b32', s(sROT), s(t3), 1)
    a.salu('s_lshl_b32', s(sWK), s(sW), 10); a.salu('s_lshr_b32', s(sTH), s(sW), 2); a.salu('s_and_b32', s(sCQ), s(sW), 3)
    a.salu('s_mul_i32', s(sK0), s(sC), 7); a.salu('s_and_b32', s(t2), s(sC), 1); a.salu('s_sub_u32', s(sK0), s(sK0), s(t2))
    srd(a, S_WQ, 6, 1572864)
    for p in range(16):
        a.salu('s_add_u32', s(T1+p), s(sROT), p); a.salu('s_and_b32', s(T1+p), s(T1+p), 15)
    vXW = vCUR + 4
    a.valu('v_add_u32', v(vT0), s(t1), v(vT0))
    a.valu('v_and_b32', v(vT2), 15, v(vT0)); a.valu('v_xor_b32', v(vT2), v(vT2), v(vT1)); a.valu('v_lshlrev_b32', v(vT2), 4, v(vT2))
    a.valu('v_lshl_add_u32', v(vXW), v(vT0), 10, v(vT2))
    vG, vI = TMP + 4, TMP + 5
    a.valu('v_lshrrev_b32', v(vG), 4, v(vL)); a.valu('v_and_b32', v(vI), 15, v(vL))
    vCH, vRW = TMP + 10, TMP + 11
    a.salu('s_lshr_b32', s(t0), s(sW), 1); a.salu('s_and_b32', s(t0), s(t0), 1); a.salu('s_lshl_b32', s(t0), s(t0), 3)
    a.valu('v_lshlrev_b32', v(vT0), 1, v(vG)); a.valu('v_or_b32', v(vT0), s(t0), v(vT0)); a.valu('v_xor_b32', v(vCH), v(vT0), v(vI))
    a.valu('v_lshrrev_b32', v(vT1), 3, v(vCH)); a.valu('v_lshlrev_b32', v(vT1), 10, v(vT1))
    a.valu('v_and_b32', v(vT0), 7, v(vCH)); a.valu('v_lshl_add_u32', v(vT1), v(vT0), 4, v(vT1))
    a.salu('s_lshl_b32', s(t0), s(sW), 2); a.valu('v_add_u32', v(vRW), s(t0), v(vG))
    a.valu('v_mul_u32_u24', v(vT0), 3072, v(vRW)); a.valu('v_add_u32', v(vT1), v(vT1), v(vT0))
    a.salu('s_lshl_b32', s(t0), s(sC), 7); a.salu('s_add_u32', s(t0), s(t0), 1024)
    a.valu('v_add_u32', v(vKV), s(t0), v(vT1))
    NST = 14
    REG = lambda i: {0: 2, 1: 3, 2: 4}.get(i, (i - 3) % 4) * 32768
    MISC = 4 * 32768
    vDW, vAO = vKV, vQ
    def dma_ops(i):
        ops = []
        for q in range(4):
            def op(q=q):
                if i < 14: a.salu('s_add_u32', 'm0', s(sWK), hex(REG(i) + q * 8192))
                if i < 4:
                    a.salu('s_mul_i32', s(t0), s(T1 + 4*i + q), 98304); a.bload_lds(v(vKV), s(S_WQ, 4), s(t0))
                elif 12 <= i < 14:
                    a.salu('s_add_u32', s(t0), s(sTH), s(T1 + 8*(i-12) + 2*q)); a.salu('s_and_b32', s(t0), s(t0), 15)
                    a.salu('s_mul_i32', s(t0), s(t0), 98304); a.bload_lds(v(vQ), s(S_WQ, 4), s(t0))
                elif i < 14:
                    hf = (i - 4) >> 2; jj = (i - 4) & 3
                    a.salu('s_mul_i32', s(t0), s(T1 + 4*jj + q), 114688)
                    if hf: a.salu('s_add_u32', s(t0), s(t0), 256)
                    a.bload_lds(v(vF), s(S_W1, 4), s(t0))
                else:
                    p = i - 14
                    a.salu('s_lshl_b32', s(t1), s(sWK), 2); a.salu('s_add_u32', 'm0', s(t1), hex(REG(i) + q * 1024))
                    if p < 7:
                        a.salu('s_lshl_b32', s(t0), s(KS+p), 15)
                        if q: a.salu('s_add_u32', s(t0), s(t0), q * 8192)
                        a.bload_lds(v(vDW), s(S_W2, 4), s(t0))
                    else:
                        a.salu('s_lshl_b32', s(t0), s(sW), 16); a.salu('s_add_u32', s(t0), s(t0), (p - 7) * 32768 + q * 8192)
                        a.bload_lds(v(vDW), s(S_WO, 4), s(t0))
                vm.add(('st', i))
            ops.append(op)
        return ops
    srd(a, S_WP, 8, 16384); srd(a, S_B1, 12, 3584)
    a.salu('s_lshl_b32', s(t0), s(sC), 2); a.salu('s_add_u32', s(t0), s(t0), s(sCQ)); a.salu('s_lshl_b32', s(t0), s(t0), 9)
    a.valu('v_lshlrev_b32', v(vT0), 7, v(vG)); a.valu('v_lshl_add_u32', v(vT0), v(vI), 1, v(vT0))
    stamp('e')
    a.barrier()
    stamp('e')
    a.bload('buffer_load_ushort', v(vWP), v(vT0), s(S_WP, 4), s(t0), offset=0)
    a.bload('buffer_load_ushort', v(vFLAG), v(vT0), s(S_WP, 4), s(t0), offset=32)
    a.bload('buffer_load_ushort', v(vWP+1), v(vT0), s(S_WP, 4), s(t0), offset=64)
    a.bload('buffer_load_ushort', v(vCUR+3), v(vT0), s(S_WP, 4), s(t0), offset=96); vm.add('small', 4)
    NPRE = opt('npre', 4)
    early = dma_ops(0) + dma_ops(1) + dma_ops(2)
    for op in early[:NPRE]: op()
    early = early[NPRE:]
    vTA = XF
    a.salu('s_add_u32', s(t0), s(sK0), s(sCQ)); a.salu('s_lshl_b32', s(t0), s(t0), 6)
    a.valu('v_lshlrev_b32', v(vT0), 3, v(vG)); a.valu('v_add_u32', v(vTA), s(t0), v(vT0))
    for hf in range(2):
        for e in range(2):
            def op(hf=hf, e=e):
                a.bload('buffer_load_dwordx2', v(vB1+4*hf+2*e, 2), v(vTA), s(S_B1, 4), 0, offset=256*hf+32*e); vm.add('b1')
            early.append(op)
    srd(a, S_W1, 10, 1835008); srd(a, S_W2, 16, 1835008); srd(a, S_WO, 18, 524288)
    if 'notouch' not in EXP:
        a.salu('s_lshr_b32', s(t0), 's2', 3); a.salu('s_lshl_b32', s(t0), s(t0), 3); a.salu('s_add_u32', s(t0), s(t0), s(sW))
        a.salu('s_lshr_b32', s(t2), s(sC), 2)
        a.valu('v_lshrrev_b32', v(vT0), 4, v(vL)); a.valu('v_and_b32', v(vT0), 1, v(vT0)); a.salu('s_lshl_b32', s(t1), s(t0), 1); a.valu('v_add_u32', v(vT0), s(t1), v(vT0))
        a.valu('v_mul_u32_u24', v(vT1), 3584, v(vT0)); a.valu('v_min_u32', v(vT2), 13, v(vI)); a.valu('v_lshl_add_u32', v(vT1), v(vT2), 7, v(vT1))
        a.salu('s_mul_i32', s(t1), s(t2), 1792); a.valu('v_add_u32', v(vTA+1), s(t1), v(vT1))
        a.valu('v_and_b32', v(vT2), 3, v(vL)); a.valu('v_lshlrev_b32', v(vT2), 7, v(vT2)); a.salu('s_lshl_b32', s(t1), s(t2), 9); a.valu('v_add_u32', v(vT2), s(t1), v(vT2))
        a.valu('v_mul_u32_u24', v(vT1), 3072, v(vT0)); a.valu('v_add_u32', v(vTA+2), v(vT1), v(vT2))
        a.valu('v_lshl_add_u32', v(vTA+3), v(vT0), 10, v(vT2))
        a.salu('s_mul_i32', s(t0), s(t0), 7); a.valu('v_lshrrev_b32', v(vT0), 2, v(vL)); a.valu('v_min_u32', v(vT0), 6, v(vT0)); a.valu('v_add_u32', v(vT0), s(t0), v(vT0))
        a.valu('v_lshl_add_u32', v(vTA+4), v(vT0), 10, v(vT2))
        W2J = opt('w2j', 3)
        if W2J >= 0:
            a.valu('v_mov_b32', v(vU0), v(vTA+3)); a.valu('v_mov_b32', v(vU1), v(vTA+4))
        for k, sd in enumerate((S_W1, S_WQ, S_WO, S_W2)):
            if k >= 2 and W2J >= 0: continue
            def op(k=k, sd=sd):
                a.bload('buffer_load_dword', 'v0', v(vTA+1+k), s(sd, 4), 0); vm.add('touch')
            early.append(op)
    a.valu('v_mul_u32_u24', v(vT0), 3584, v(vRW)); a.valu('v_lshl_add_u32', v(vT0), v(vCH), 4, v(vT0))
    a.salu('s_lshl_b32', s(t0), s(sK0), 6); a.valu('v_add_u32', v(vF), s(t0), v(vT0))
    a.valu('v_and_b32', v(vT0), 1, v(vG)); a.salu('s_and_b32', s(t0), s(sW), 1); a.salu('s_lshl_b32', s(t0), s(t0), 1)
    a.valu('v_or_b32', v(vT0), s(t0), v(vT0)); a.valu('v_lshlrev_b32', v(vT0), 1, v(vT0))
    a.valu('v_and_b32', v(vT1), 7, v(vL)); a.valu('v_xor_b32', v(vT1), v(vT1), v(vT0)); a.valu('v_lshlrev_b32', v(vT1), 4, v(vT1))
    a.valu('v_lshrrev_b32', v(vT0), 3, v(vL)); a.salu('s_lshl_b32', s(t0), s(sCQ), 3); a.valu('v_add_u32', v(vT0), s(t0), v(vT0))
    a.valu('v_mul_u32_u24', v(vT0), 3072, v(vT0)); a.valu('v_add_u32', v(vT1), v(vT1), v(vT0))
    a.salu('s_lshl_b32', s(t0), s(sC), 7); a.valu('v_add_u32', v(vQ), s(t0), v(vT1))
    vRR, vROW, vFS, vC8 = TMP + 6, TMP + 7, TMP + 8, TMP + 9
    a.valu('v_lshrrev_b32', v(vRR), 2, v(vI)); a.valu('v_lshl_add_u32', v(vROW), v(vG), 3, v(vRR))
    a.valu('v_and_b32', v(vT0), 1, v(vG)); a.valu('v_lshl_or_b32', v(vFS), v(vT0), 2, v(vRR))
    a.valu('v_and_b32', v(vC8), 3, v(vI)); a.valu('v_lshlrev_b32', v(vC8), 3, v(vC8))
    a.valu('v_xor_b32', v(vT1), s(sCQ), v(vFS)); a.valu('v_lshl_add_u32', v(vT1), v(vT1), 5, v(vC8)); a.valu('v_lshl_add_u32', v(aK), v(vROW), 8, v(vT1))
    a.valu('v_xor_b32', v(aV), 128, v(aK))
    a.salu('s_lshl_b32', s(t0), s(sCQ), 1)
    a.valu('v_xor_b32', v(vT1), s(t0), v(vFS)); a.valu('v_lshl_add_u32', v(vT1), v(vT1), 5, v(vC8)); a.valu('v_lshl_add_u32', v(aF), v(vROW), 8, v(vT1))
    a.valu('v_xor_b32', v(aF+1), 32, v(aF))
    a.valu('v_lshrrev_b32', v(vT1), 1, v(vRR)); a.valu('v_lshl_or_b32', v(vT1), v(vT0), 1, v(vT1)); a.valu('v_xor_b32', v(vT1), s(sCQ), v(vT1))
    a.valu('v_lshl_add_u32', v(vT1), v(vT1), 5, v(vC8)); a.valu('v_lshl_add_u32', v(aQ), v(vROW), 7, v(vT1))
    vXR = vCUR + 5
    a.valu('v_xor_b32', v(vT1), v(vG), v(vI)); a.valu('v_lshlrev_b32', v(vT1), 4, v(vT1)); a.valu('v_lshl_add_u32', v(vT1), v(vI), 10, v(vT1))
    a.salu('s_lshl_b32', s(t0), s(sTH), 15); a.valu('v_add_u32', v(vXR), s(t0), v(vT1))
    if 'rotr' in EXP: a.salu('s_lshr_b32', s(t0), s(sROT), 1)
    else: a.salu('s_and_b32', s(t0), s(sC), 3)
    a.salu('s_mul_i32', s(t1), s(sW), 7)
    a.salu('s_mul_i32', s(t2), s(t0), 11); a.salu('s_lshr_b32', s(t2), s(t2), 5); a.salu('s_mul_i32', s(t2), s(t2), 3); a.salu('s_sub_u32', s(t2), s(t0), s(t2))
    for p in range(3):
        a.salu('s_add_u32', s(t3), s(t2), p); a.salu('s_sub_u32', s(KS+p), s(t3), 3); a.scmp('s_cmp_ge_u32', s(t3), 3)
        a.salu('s_cselect_b32', s(KS+p), s(KS+p), s(t3)); a.salu('s_add_u32', s(KS+p), s(KS+p), s(t1))
    for p in range(4):
        a.salu('s_add_u32', s(t3), s(t0), p); a.salu('s_and_b32', s(t3), s(t3), 3); a.salu('s_add_u32', s(t3), s(t3), s(t1)); a.salu('s_add_u32', s(KS+3+p), s(t3), 3)
    vwait('x')
    stamp(); stamp('e')
    a_real = a; a = Rec(a_real)
    a.valu('v_readfirstlane_b32', s(sTAG), v(vEP))
    for j in range(32):
        a.valu('v_lshlrev_b32', v(F+2*j), 16, v(X+j)); a.valu('v_and_b32', v(F+2*j+1), '0xffff0000', v(X+j))
    a.salu('s_add_u32', s(sTAG), s(sTAG), 1)
    S0 = X
    for k in range(4): a.valu('v_add_f32', v(S0+k), v(F+k), v(F+4+k))
    for j in range(8, 64): a.valu('v_add_f32', v(S0+j%4), v(S0+j%4), v(F+j))
    a.valu('v_add_f32', v(S0), v(S0), v(S0+1)); a.valu('v_add_f32', v(S0+2), v(S0+2), v(S0+3)); a.valu('v_add_f32', v(S0), v(S0), v(S0+2))
    def red8(r):
        a.valu('v_add_f32_dpp', v(r), v(r), v(r), mod="quad_perm:[1,0,3,2] " + DPPM)
        a.valu('v_add_f32_dpp', v(r), v(r), v(r), mod="quad_perm:[2,3,0,1] " + DPPM)
        a.valu('v_add_f32_dpp', v(r), v(r), v(r), mod="row_half_mirror " + DPPM)
    red8(S0)
    vMEAN, vMB = S0 + 4, S0 + 5
    a.valu('v_mul_f32', v(vMEAN), '0x3b000000', v(S0))
    a.valu('v_cvt_pk_bf16_f32', v(vMB), v(vMEAN), v(vMEAN)); a.valu('v_lshlrev_b32', v(vMB), 16, v(vMB))
    for j in range(64): a.valu('v_sub_f32', v(F+j), v(F+j), v(vMB))
    for k in range(4): a.valu('v_mul_f32', v(S0+k), v(F+k), v(F+k))
    for j in range(4, 64): a.valu('v_fmac_f32', v(S0+j%4), v(F+j), v(F+j))
    a.valu('v_add_f32', v(S0), v(S0), v(S0+1)); a.valu('v_add_f32', v(S0+2), v(S0+2), v(S0+3)); a.valu('v_add_f32', v(S0), v(S0), v(S0+2))
    red8(S0)
    a.valu('v_sub_f32', v(vMEAN), v(vMEAN), v(vMB))
    a.valu('v_mul_f32', v(S0), '0x3b000000', v(S0))
    a.valu('v_fma_f32', v(S0), '-' + v(vMEAN), v(vMEAN), v(S0)); a.valu('v_max_f32', v(S0), 0, v(S0))
    a.valu('v_cvt_pk_bf16_f32', v(S0), v(S0), v(S0)); a.valu('v_lshlrev_b32', v(S0), 16, v(S0))
    a.valu('v_add_f32', v(S0), '0x3727c5ac', v(S0))
    a.valu('v_cvt_pk_bf16_f32', v(S0), v(S0), v(S0)); a.valu('v_lshlrev_b32', v(S0), 16, v(S0))
    a.valu('v_sqrt_f32', v(S0), v(S0))
    a.valu('v_cvt_pk_bf16_f32', v(S0), v(S0), v(S0)); a.valu('v_lshlrev_b32', v(S0), 16, v(S0))
    vRI = vT0
    a.valu('v_rcp_f32', v(vRI), v(S0))
    a.valu('v_fma_f32', v(vT1), '-' + v(S0), v(vRI), 1.0); a.valu('v_fma_f32', v(vRI), v(vT1), v(vRI), v(vRI))
    a.valu('v_xor_b32', v(vT1), 128, v(vXW))
    for j in range(8):
        fs = [F + 8*j + i for i in range(8)]
        rbf_pairs(a, fs, [X + 4*j + i for i in range(4)])
        for f in fs: a.valu('v_mul_f32', v(f), v(f), v(vRI))
        for i in range(4): a.valu('v_cvt_pk_bf16_f32', v(X+4*j+i), v(fs[2*i]), v(fs[2*i+1]))
        a.ds_write('ds_write_b128', v(vXW if j % 2 == 0 else vT1), v(X+4*j, 4), offset=(j >> 1) * 256)
    lnitems = a.items; a = a_real
    LNP = max(1, (len(lnitems) - 20) // max(1, len(early)))
    for n_, it in enumerate(lnitems):
        it()
        if n_ % LNP == LNP - 1 and early: early.pop(0)()
    for op in early: op()
    vwait('small')
    a.valu('v_lshl_or_b32', v(vWP), v(vFLAG), 16, v(vWP)); a.valu('v_lshl_or_b32', v(vWP+1), v(vCUR+3), 16, v(vWP+1))
    a.salu('s_and_b32', s(sPAR), s(sCQ), 1); a.salu('s_lshl_b32', s(t0), s(sPAR), 14); a.valu('v_add_u32', v(vXR), s(t0), v(vXR))
    for sl in range(2):
        for q4 in range(4): a.valu('v_xor_b32', v(TMP+sl*4+q4), (q4 << 6) | (sl << 14), v(vXR))
    stamp('e')
    a.waitcnt(lgkm=0); a.barrier()
    stamp(); stamp('e')
    for ks in range(16):
        for tb in range(2):
            a.ds_read('ds_read_b128', v(XF + (tb*16+ks)*4, 4), v(TMP + tb*4 + ks % 4), offset=(ks >> 2) * 256)
    if opt('w2j', 3) >= 0:
        a.valu('v_mov_b32', v(vCUR+4), v(vU0)); a.valu('v_mov_b32', v(vCUR+5), v(vU1))
    vID = vCUR + 2
    a.valu('v_lshrrev_b32', v(vT0), 4, v(vL)); a.valu('v_lshlrev_b32', v(vT0), 2, v(vT0)); a.valu('v_and_b32', v(vT1), 15, v(vL)); a.valu('v_sub_u32', v(vT0), v(vT1), v(vT0))
    a.valu('v_mov_b32', v(vT1), '0x3f80'); a.valu('v_mov_b32', v(vT2), '0x3f800000')
    for h in range(2):
        a.valu('v_cmp_eq_u32', 'vcc', 2*h, v(vT0)); a.valu('v_cndmask_b32', v(vID+h), 0, v(vT1), 'vcc')
        a.valu('v_cmp_eq_u32', 'vcc', 2*h+1, v(vT0)); a.valu('v_cndmask_b32', v(vID+h), v(vID+h), v(vT2), 'vcc')
    xf = lambda tb, ks: v(XF + (tb*16+ks)*4, 4)
    wf = lambda buf, i: v(WF + buf*16 + i*4, 4)
    started = set()
    curbase = {}
    def unit_info(u):
        if u < 24: return u >> 1, (u & 1) * 16384
        return 12 + ((u - 24) >> 2), ((u - 24) & 3) * 8192
    def read_ops(hs):
        j, so = unit_info(hs); sb = REG(j) + so; buf = hs & 1
        if j < 4: bases = [aK, aV]; d1, d2 = 8192, 1024
        elif j >= 12: bases = [aQ, aQ2]; d1, d2 = 4096, 512
        else: bases = [aF, aF+1]; d1, d2 = 8192, 1024
        lst = [(bases[0], 0, d2), (bases[1], 0, d2), (bases[0], d1, d2), (bases[1], d1, d2)]
        hi = (sb // 65536) * 65536; lo = sb - hi
        cur = {}
        for n, b in enumerate(bases):
            if hi:
                if curbase.get(n) != (b, hi):
                    a.valu('v_add_u32', v(vCUR+n), hex(hi), v(b)); curbase[n] = (b, hi)
                cur[b] = vCUR + n
            else: cur[b] = b
        ops = []
        for i, (b, off, dd) in enumerate(lst):
            r0 = WF + buf*16 + i*4
            ops.append(lambda r0=r0, b=b, off=off: a.ds_read('ds_read_b64_tr_b16', v(r0, 2), v(cur[b]), offset=lo + off))
            ops.append(lambda r0=r0, b=b, off=off, dd=dd: a.ds_read('ds_read_b64_tr_b16', v(r0+2, 2), v(cur[b]), offset=lo + off + dd))
        return ops
    aQ2 = vFLAG
    def mfma_ops(hs):
        if hs < 0: return []
        buf = hs & 1; L = []
        if hs < 8:
            for h in range(2):
                for tb in range(2): L.append((v(ACCA + tb*4, 4), wf(buf, 2*h), xf(tb, 2*hs+h), 'kv'))
                for tb in range(2): L.append((v(ACCA + 8 + tb*4, 4), xf(tb, 2*hs+h), wf(buf, 2*h+1), 'kv'))
        elif hs >= 24:
            for h in range(2):
                for e in range(2): L.append((v(ACCQ + e*4, 4), wf(buf, 2*h+e), xf(0, 2*(hs-24)+h), 'q'))
        else:
            hf = (hs - 8) >> 3; k0 = 2 * ((hs - 8) & 7); A0 = ACCB if hf else ACCA
            for h in range(2):
                for e in range(2):
                    for tb in range(2): L.append((v(A0 + (e*2+tb)*4, 4), wf(buf, 2*h+e), xf(tb, k0+h), 'f'))
        ops = []
        for d, A, B, ph in L:
            def op(d=d, A=A, B=B, ph=ph):
                c = d if ((d, ph) in started or ph == 'f') else 0
                started.add((d, ph)); a.mfma(d, A, B, c)
            ops.append(op)
        return ops
    def flag_store(setup, ts=t0, tv=(vT0, vT1)):
        setup()
        a.valu('v_mov_b32', v(tv[0]), 0); a.valu('v_mov_b32', v(tv[1]), s(sTAG))
        a.salu('s_mov_b64', 'exec', 1)
        a.bstore('buffer_store_dword', v(tv[1]), v(tv[0]), s(S_WS, 4), s(ts), flags=COH)
        a.salu('s_mov_b64', 'exec', -1)
    def tagcheck(regs_, label, reload, tv=(vT0, vT1)):
        a.salu('s_mov_b32', s(sSPIN), 0)
        a.label(f"L_{label}_chk")
        a.valu('v_xor_b32', v(tv[0]), s(sTAG), v(regs_[0]))
        for r_ in regs_[1:]:
            a.valu('v_xor_b32', v(tv[1]), s(sTAG), v(r_)); a.valu('v_or_b32', v(tv[0]), v(tv[0]), v(tv[1]))
        a.valu('v_cmp_ne_u32', 'vcc', 0, v(tv[0]))
        a.nop(1); a.scmp('s_cmp_eq_u64', 'vcc', 0); a.other(f"s_cbranch_scc1 L_{label}_ok")
        a.salu('s_add_u32', s(sSPIN), s(sSPIN), 1); a.scmp('s_cmp_ge_u32', s(sSPIN), 200000); a.other(f"s_cbranch_scc1 L_{label}_ok")
        a.other("s_sleep 2")
        reload(); a.waitcnt(vm=0)
        a.other(f"s_branch L_{label}_chk")
        a.label(f"L_{label}_ok")
    def head_s(dst):
        a.salu('s_lshl_b32', s(dst), s(sC), 2); a.salu('s_add_u32', s(dst), s(dst), s(sCQ))
    st = {'j': 0, 'nbar': 0, 'hs_done': -1, 'marks': {}}
    bg = Rec(a)
    def after_barrier(name):
        def mark(): st['marks'][name] = st['nbar']
        bg.block(mark)
        bg.gate(lambda: st['nbar'] > st['marks'][name])
    def mark_j(name): bg.block(lambda: st['marks'].__setitem__(name, st['nbar']))
    def wait_j(name, d): bg.gate(lambda: st['nbar'] >= st['marks'][name] + d or st['j'] >= NST)
    b = bg
    def red4(r, op, M, T, mid):
        r.valu('v_permlane32_swap_b32', v(M), v(M+1)); r.valu('v_permlane32_swap_b32', v(M+2), v(M+3))
        r.valu(op, v(M), v(M), v(M+1)); r.valu(op, v(M+2), v(M+2), v(M+3))
        r.valu('v_mov_b32', v(T), 0)
        r.valu('v_permlane16_swap_b32', v(M), v(M+2))
        r.valu(op, v(M), v(M), v(M+2))
        mid(M)
        r.valu('v_mov_b32', v(M+2), v(M)); r.valu('v_mov_b32', v(T), 0)
        r.valu('v_permlane16_swap_b32', v(M), v(M+2))
        r.valu('v_mov_b32', v(M+1), v(M)); r.valu('v_mov_b32', v(M+3), v(M+2)); r.valu('v_mov_b32', v(T), 0)
        r.valu('v_permlane32_swap_b32', v(M), v(M+1)); r.valu('v_permlane32_swap_b32', v(M+2), v(M+3))
    def softmax2(r, QBr, Pp, M, E, EE, TT, WPs=None):
        WPs = WPs or (vWP, vWP)
        for tb in range(2): r.mfma(v(Pp+4*tb, 4), v(WPs[tb], 2), v(QBr+2*tb, 2), 0, op='v_mfma_f32_16x16x16_bf16')
        r.valu('v_mov_b32', v(vU1), hex(L2E))
        for i in range(3): r.valu('v_mov_b32', v(E+i), 0)
        rbf_pairs(r, [Pp+i for i in range(8)], [E+i for i in range(4)])
        for tb in range(2):
            p = Pp + 4*tb
            r.valu('v_max3_f32', v(M+tb), v(p), v(p+1), v(p+2)); r.valu('v_max3_f32', v(M+2+tb), '-'+v(p), '-'+v(p+1), '-'+v(p+2))
            r.valu('v_max_f32', v(M+tb), v(M+tb), v(p+3)); r.valu('v_max_f32_e64', v(M+2+tb), v(M+2+tb), '-'+v(p+3))
        red4(r, 'v_max_f32', M, TT, lambda x: r.valu('v_mul_f32', v(x), hex(L2E), v(x)))
        for i in range(8): r.valu('v_fma_f32', v(E+i), v(Pp+i), v(vU1), '-'+v(M+i//4))
        for i in range(8): r.valu('v_fma_f32', v(EE+i), '-'+v(Pp+i), v(vU1), '-'+v(M+2+i//4))
        for i in range(8): r.valu('v_exp_f32', v(E+i), v(E+i))
        for i in range(8): r.valu('v_exp_f32', v(EE+i), v(EE+i))
        for tb in range(2):
            for k, e in enumerate((E, EE)):
                d = M + 2*k + tb
                r.valu('v_add_f32', v(d), v(e+4*tb), v(e+4*tb+1)); r.valu('v_add_f32', v(TT), v(e+4*tb+2), v(e+4*tb+3)); r.valu('v_add_f32', v(d), v(d), v(TT))
        red4(r, 'v_add_f32', M, TT, lambda x: r.valu('v_rcp_f32', v(x), v(x)))
        for i in range(8): r.valu('v_mul_f32', v(E+i), v(E+i), v(M+i//4))
        for i in range(8): r.valu('v_mul_f32', v(EE+i), v(EE+i), v(M+2+i//4))
        for tb in range(2):
            o = Pp + 4*tb
            r.valu('v_cvt_pk_bf16_f32', v(o), v(E+4*tb), v(E+4*tb+1)); r.valu('v_cvt_pk_bf16_f32', v(o+1), v(E+4*tb+2), v(E+4*tb+3))
            r.valu('v_cvt_pk_bf16_f32', v(o+2), v(EE+4*tb), v(EE+4*tb+1)); r.valu('v_cvt_pk_bf16_f32', v(o+3), v(EE+4*tb+2), v(EE+4*tb+3))
    KA = TMP; M = TMP + 4; E = TMP + 8; EE = TMP + 16; P = ACCB; VB = ACCB + 8; ONE = ACCB + 12
    KVP = E; ZP = EE
    def kv_convert():
        for tb in range(2):
            for h in range(2): a.valu('v_cvt_pk_bf16_f32', v(KA+2*tb+h), v(ACCA+tb*4+2*h), v(ACCA+tb*4+2*h+1))
        for tb in range(2):
            for h in range(2): a.valu('v_cvt_pk_bf16_f32', v(VB+2*tb+h), v(ACCA+8+tb*4+2*h), v(ACCA+8+tb*4+2*h+1))
        st['kvconv'] = True
    b.gate(lambda: st.get('kvconv'))
    softmax2(b, KA, P, M, E, EE, KA)
    for i in range(4): b.valu('v_mov_b32', v(ONE+i), '0x3f803f80')
    for sg, dst in enumerate((E, EE)):
        for tb in range(2): b.mfma(v(dst+4*tb, 4), v(P+4*tb+2*sg, 2), v(vID, 2), 0, op='v_mfma_f32_16x16x16_bf16')
    b.valu('v_lshlrev_b32', v(vU0), 4, v(vL)); b.salu('s_lshl_b32', s(u0), s(sCQ), 12); b.salu('s_add_u32', s(u0), s(u0), hex(MISC))
    b.valu('v_add_u32', v(vT2), s(u0), v(vU0))
    PHP = KA; PHM = M
    for i in range(4): b.valu('v_cvt_pk_bf16_f32', v(PHP+i), v(E+2*i), v(E+2*i+1))
    for i in range(4): b.valu('v_cvt_pk_bf16_f32', v(PHM+i), v(EE+2*i), v(EE+2*i+1))
    b.mfma(v(KVP, 4), v(PHP, 4), v(VB, 4), 0); b.mfma(v(KVP+4, 4), v(PHM, 4), v(VB, 4), 0)
    b.mfma(v(ZP, 4), v(PHP, 4), v(ONE, 4), 0); b.mfma(v(ZP+4, 4), v(PHM, 4), v(ONE, 4), 0)
    for i in range(3): b.valu('v_mov_b32', v(P+4*i+3), s(sTAG))
    def park():
        a.scmp('s_cmp_eq_u32', s(sTH), 0); a.other("s_cbranch_scc1 L_nopark")
        a.ds_write('ds_write_b128', v(vT2), v(KVP, 4)); a.ds_write('ds_write_b128', v(vT2), v(KVP+4, 4), offset=1024)
        a.ds_write('ds_write_b128', v(vT2), v(ZP, 4), offset=2048); a.ds_write('ds_write_b128', v(vT2), v(ZP+4, 4), offset=3072)
        a.label("L_nopark")
    b.block(park)
    after_barrier('park')
    def kv_publish():
        a.scmp('s_cmp_lg_u32', s(sTH), 0); a.other("s_cbranch_scc1 L_nopub")
        Q = TMP; G = ACCB
        head_s(u0); a.salu('s_lshl_b32', s(u0), s(u0), 5); a.salu('s_add_u32', s(u0), s(u0), s(sR)); a.salu('s_mul_i32', s(u0), s(u0), 3456)
        a.salu('s_add_u32', s(u0), s(u0), hex(PART))
        for k, src in enumerate((KVP, ZP)):
            a.ds_read('ds_read_b128', v(Q, 4), v(vT2), offset=2048*k); a.ds_read('ds_read_b128', v(Q+4, 4), v(vT2), offset=2048*k+1024)
            if k == 1: a.valu('v_and_b32', v(vU0), 48, v(vL)); a.valu('v_add_u32', v(vU0), 1024, v(vU0))
            a.waitcnt(lgkm=0)
            for i in range(8): a.valu('v_add_f32', v(G + 4*(i//3) + i%3), v(src+i), v(Q+i))
            if k == 1:
                a.salu('s_mov_b32', 'exec_lo', '0x00010001'); a.salu('s_mov_b32', 'exec_hi', '0x00010001')
            for i in range(3): a.bstore('buffer_store_dwordx4', v(G+4*i, 4), v(vU0), s(S_WS, 4), s(u0), offset=1152*i, flags=COH)
            if k == 1: a.salu('s_mov_b64', 'exec', -1)
            a.nop(2)
        a.label("L_nopub")
        vm.add('pst', 6, cls=0)
        st['pub'] = True
        stamp()
    b.block(kv_publish); mark_j('pub')
    vWP2 = vCUR + 2
    def wp2():
        a.salu('s_xor_b32', s(u1), s(sCQ), 1); a.salu('s_lshl_b32', s(u0), s(sC), 2); a.salu('s_add_u32', s(u0), s(u0), s(u1)); a.salu('s_lshl_b32', s(u0), s(u0), 9)
        a.valu('v_lshrrev_b32', v(vU0), 4, v(vL)); a.valu('v_lshlrev_b32', v(vU0), 7, v(vU0)); a.valu('v_and_b32', v(vU1), 15, v(vL)); a.valu('v_lshl_add_u32', v(vU0), v(vU1), 1, v(vU0))
        for k, d in enumerate((vWP2, vWP2+2, vWP2+1, vWP2+3)):
            a.bload('buffer_load_ushort', v(d), v(vU0), s(S_WP, 4), s(u0), offset=32*k)
        vm.add('wp2', 4)
        a.valu('v_xor_b32', v(aQ2), 32, v(aQ))
    b.block(wp2)
    QB = TMP; PQ = ACCQ
    def q_softmax(r):
        for tb in range(2):
            for h in range(2): r.valu('v_cvt_pk_bf16_f32', v(QB+2*tb+h), v(ACCQ+tb*4+2*h), v(ACCQ+tb*4+2*h+1))
        r.valu('v_lshlrev_b32', v(vU0), 4, v(vL)); r.salu('s_add_u32', s(u0), s(sWK), hex(MISC + 16384)); r.valu('v_add_u32', v(vT2), s(u0), v(vU0))
        softmax2(r, QB, PQ, M, E, EE, QB)
    def q_exchange():
        a.salu('s_and_b32', s(u0), s(sCQ), 1); a.scmp('s_cmp_eq_u32', s(u0), 0); a.other("s_cbranch_scc1 L_xw_e")
        a.ds_write('ds_write_b128', v(vT2), v(PQ, 4)); a.other("s_branch L_xw_d")
        a.label("L_xw_e"); a.ds_write('ds_write_b128', v(vT2), v(PQ+4, 4)); a.label("L_xw_d")
        a.valu('v_xor_b32', v(vT2), 1024, v(vT2))
        a.waitcnt(lgkm=0); a.barrier()
        a.salu('s_and_b32', s(u0), s(sCQ), 1); a.scmp('s_cmp_eq_u32', s(u0), 0); a.other("s_cbranch_scc1 L_xr_e")
        a.ds_read('ds_read_b128', v(PQ, 4), v(vT2)); a.other("s_branch L_xr_d")
        a.label("L_xr_e"); a.ds_read('ds_read_b128', v(PQ+4, 4), v(vT2)); a.label("L_xr_d")
    RD = TMP; vRO = aK
    def red_loads():
        for pg in range(2):
            for i in range(3):
                a.bload('buffer_load_dwordx4', v(RD + (pg*3+i)*4, 4), v(vRO + pg), s(S_WS, 4), s(sRED), offset=1152*i, flags=COH)
    def red_issue():
        a.salu('s_mov_b32', s(sRED), -1)
        a.scmp('s_cmp_eq_u32', s(sTH), 0); a.other("s_cbranch_scc1 L_nored1")
        a.salu('s_lshr_b32', s(u1), s(sR), 1)
        a.salu('s_xor_b32', s(u0), s(sR), s(sCQ)); a.scmp('s_cmp_eq_u32', s(u0), 1); a.salu('s_cselect_b32', s(u1), 16, s(u1))
        a.salu('s_cselect_b32', s(u0), 0, s(u0)); a.salu('s_and_b32', s(u0), s(u0), 1); a.scmp('s_cmp_lg_u32', s(u0), 0); a.other("s_cbranch_scc1 L_nored1")
        a.salu('s_lshl_b32', s(sSL), s(u1), 6)
        head_s(u0); a.salu('s_mul_i32', s(u0), s(u0), 32*3456); a.salu('s_add_u32', s(u0), s(u0), s(sSL)); a.salu('s_add_u32', s(sRED), s(u0), hex(PART))
        a.valu('v_lshrrev_b32', v(vU0), 2, v(vL)); a.valu('v_mul_u32_u24', v(vU0), 3456, v(vU0)); a.valu('v_and_b32', v(vU1), 3, v(vL))
        a.valu('v_lshl_add_u32', v(vRO), v(vU1), 4, v(vU0)); a.valu('v_add_u32', v(vRO+1), hex(16*3456), v(vRO))
        red_loads()
        a.label("L_nored1")
        vm.mark = len(vm.q[1])
    def red_finish():
        a.scmp('s_cmp_eq_u32', s(sRED), -1); a.other("s_cbranch_scc1 L_nored2")
        a.waitcnt(vm=len(vm.q[1]) - vm.mark)
        tagcheck([RD + 4*k + 3 for k in range(6)], "red", red_loads, tv=(vU0, vU1))
        V = [RD + 4*(i//3) + i%3 for i in range(8)]; T = [RD + 12 + i for i in range(8)]
        for x in V: a.valu('v_add_f32', v(x), v(x), v(x+12))
        for sh in (8, 4):
            for x in V: a.valu('v_add_f32_dpp', v(x), v(x), v(x), mod=f"row_ror:{sh} " + DPPM)
        allred(a, 'v_add_f32', V, T)
        G = RD + 12
        for i in range(3): a.valu('v_cvt_pk_bf16_f32', v(G+i), v(V[2*i]), v(V[2*i+1]))
        a.valu('v_cvt_pk_bf16_f32', v(G+4), v(V[6]), v(V[7]))
        a.valu('v_mov_b32', v(G+3), s(sTAG)); a.valu('v_mov_b32', v(G+7), s(sTAG))
        head_s(u0); a.salu('s_mul_i32', s(u0), s(u0), 2304); a.salu('s_add_u32', s(u0), s(u0), s(sSL)); a.salu('s_add_u32', s(u0), s(u0), hex(RED))
        a.valu('v_lshlrev_b32', v(vU0), 4, v(vL))
        a.salu('s_mov_b64', 'exec', 15)
        a.bstore('buffer_store_dwordx4', v(G, 4), v(vU0), s(S_WS, 4), s(u0), flags=COH)
        a.bstore('buffer_store_dwordx4', v(G+4, 4), v(vU0), s(S_WS, 4), s(u0), offset=1152, flags=COH)
        a.salu('s_mov_b64', 'exec', -1)
        a.nop(2)
        a.label("L_nored2")
        stamp()
    wait_j('pub', opt('rd1', 2)); b.block(red_issue); mark_j('red')
    def b1_init(hf):
        A0 = ACCB if hf else ACCA
        for e in range(2):
            for tb in range(2):
                for h in range(2):
                    d = A0 + (e*2+tb)*4 + 2*h
                    a.valu('v_lshlrev_b32', v(d), 16, v(vB1+4*hf+2*e+h)); a.valu('v_and_b32', v(d+1), '0xffff0000', v(vB1+4*hf+2*e+h))
    def h_epilogue(r, hf, us):
        A0 = ACCB if hf else ACCA
        r.valu('v_lshlrev_b32', v(vU0), 4, v(vL)); r.salu('s_lshl_b32', s(us[0]), s(sPAR), 10); r.valu('v_add_u32', v(vU0), s(us[0]), v(vU0)); r.valu('v_xor_b32', v(vU1), 1024, v(vU0))
        r.salu('s_mul_i32', s(us[0]), s(sR), 72); r.salu('s_add_u32', s(us[0]), s(us[0]), s(sK0)); r.salu('s_add_u32', s(us[0]), s(us[0]), s(sCQ))
        r.salu('s_lshl_b32', s(us[0]), s(us[0]), 12); r.salu('s_lshl_b32', s(us[1]), s(sTH), 11); r.salu('s_add_u32', s(us[0]), s(us[0]), s(us[1]))
        if hf: r.salu('s_add_u32', s(us[0]), s(us[0]), 4*4096)
        for tb in range(2):
            vals = [A0 + (e*2+tb)*4 + k for e in range(2) for k in range(4)]
            for x in vals: r.valu('v_max_f32', v(x), 0, v(x))
            for x in vals: r.valu('v_mul_f32', v(x), v(x), v(x))
            O = vals[0]
            r.valu('v_cvt_pk_bf16_f32', v(O), v(vals[0]), v(vals[1])); r.valu('v_cvt_pk_bf16_f32', v(O+1), v(vals[2]), v(vals[3]))
            r.valu('v_cvt_pk_bf16_f32', v(O+2), v(vals[4]), v(vals[5])); r.valu('v_cvt_pk_bf16_f32', v(O+3), v(vals[6]), v(vals[7]))
            def stv(O=O, tb=tb):
                a.bstore('buffer_store_dwordx4', v(O, 4), v(vU1 if tb else vU0), s(S_WS, 4), s(us[0]), flags=COH); vm.add(('hst', hf))
            if r is a: stv()
            else: r.block(stv)
    def hf_off(base, ts=(t0, t1)):
        def f():
            a.salu('s_lshl_b32', s(ts[0]), s(sR), 8); a.salu('s_lshl_b32', s(ts[1]), s(sW), 5); a.salu('s_add_u32', s(ts[0]), s(ts[0]), s(ts[1])); a.salu('s_add_u32', s(ts[0]), s(ts[0]), hex(base))
        return f
    def hf_own(base, ts=(t0, t1)):
        def f():
            a.salu('s_lshl_b32', s(ts[0]), s(sR), 8); a.salu('s_lshl_b32', s(ts[1]), s(sC), 5); a.salu('s_add_u32', s(ts[0]), s(ts[0]), s(ts[1]))
            a.salu('s_lshl_b32', s(ts[1]), s(sW), 2); a.salu('s_add_u32', s(ts[0]), s(ts[0]), s(ts[1])); a.salu('s_add_u32', s(ts[0]), s(ts[0]), hex(base))
        return f
    def h_flag(hf):
        def f():
            vwait(('hst', hf)); flag_store(hf_own(F_HB if hf else F_HA, (u0, u1)), ts=u0, tv=(vU0, vU1)); vm.add('fl')
        return f
    b.gate(lambda: st['hs_done'] >= 15)
    h_epilogue(b, 0, (u0, u1)); mark_j('ha')
    wait_j('red', opt('rd2', 2)); b.block(red_finish); mark_j('redf')
    wait_j('ha', 3); b.block(h_flag(0))
    b.gate(lambda: st['hs_done'] >= 23)
    h_epilogue(b, 1, (u0, u1)); mark_j('hb')
    vL4, vL8, vZO, vPOLL = aF, aF + 1, aK, aV
    KVD = ACCA
    def kv_loads():
        a.salu('s_lshl_b32', s(t0), s(sC), 2); a.salu('s_and_b32', s(t1), s(sCQ), 2); a.salu('s_add_u32', s(t0), s(t0), s(t1)); a.salu('s_mul_i32', s(t0), s(t0), 2304)
        a.salu('s_add_u32', s(t0), s(t0), hex(RED))
        for e in range(2):
            for k, vo in enumerate((vL4, vZO)):
                for i in range(2):
                    a.bload('buffer_load_dwordx4', v(KVD + 16*e + 8*k + 4*i, 4), v(vo), s(S_WS, 4), s(t0), offset=2304*e + 1152*i, flags=COH)
    def poll(base):
        def f():
            hf_off(base)(); a.bload('buffer_load_dword', v(vPOLL), v(vL8), s(S_WS, 4), s(t0), flags=COH)
        return f
    b.valu('v_lshlrev_b32', v(vL4), 4, v(vL)); b.valu('v_and_b32', v(vZO), 48, v(vL)); b.valu('v_add_u32', v(vZO), 1024, v(vZO))
    b.valu('v_and_b32', v(vL8), 7, v(vL)); b.valu('v_lshlrev_b32', v(vL8), 2, v(vL8))
    def pha(): poll(F_HA)(); vm.add('ha')
    b.gate(lambda: st['hs_done'] >= 27)
    b.block(pha)
    def bg_take(n):
        k = 0
        while k < n and bg.items:
            it = bg.items[0]
            if isinstance(it, tuple):
                if not it[1](): return
                bg.items.pop(0); continue
            bg.items.pop(0); it(); k += 1
    def interleave(ms, fs, lead=2, per=2, done=None):
        fs = list(fs)
        for _ in range(min(lead, len(fs))): fs.pop(0)()
        for m in ms:
            m()
            for _ in range(min(per, len(fs))): fs.pop(0)()
            bg_take(BGRATE)
        for f in fs: f()
        if done is not None: st['hs_done'] = done
    for j in range(NST):
        st['j'] = j
        vwait(('st', j), lgkm=0); a.barrier(); st['nbar'] += 1
        if j >= 3: stamp('it')
        if j <= 4: stamp('e')
        d = []
        if j == 0: d = dma_ops(3) + dma_ops(4)
        elif j in (1, 2): d = dma_ops(j + 4)
        elif j >= 4: d = dma_ops(j + 3)
        if j == 1:
            a.valu('v_lshrrev_b32', v(vT0), 2, v(vL)); a.valu('v_and_b32', v(vT1), 4, v(vT0)); a.valu('v_and_b32', v(vT2), 7, v(vL))
            a.valu('v_xor_b32', v(vT1), v(vT1), v(vT2)); a.valu('v_lshlrev_b32', v(vT1), 4, v(vT1)); a.valu('v_lshrrev_b32', v(vT2), 3, v(vL))
            a.valu('v_lshl_add_u32', v(vT1), v(vT2), 10, v(vT1)); a.salu('s_lshl_b32', s(t0), s(sC), 7); a.valu('v_add_u32', v(vDW), s(t0), v(vT1))
        if j == opt('w2j', 3):
            def tw(k, sd):
                def f(): a.bload('buffer_load_dword', 'v0', v(vCUR+4+k), s(sd, 4), 0); vm.add('touch')
                return f
            d = d + [tw(0, S_WO), tw(1, S_W2)]
        units = [2*j, 2*j+1] if j < 12 else [24 + 4*(j-12) + i for i in range(4)]
        nd = (len(d) + len(units) - 1) // len(units)
        for n_, u in enumerate(units):
            if n_: a.waitcnt(lgkm=0)
            r = read_ops(u)
            if u == 9:
                kv_convert(); vwait('b1'); b1_init(0)
            if u == 17:
                assert st.get('pub'); b1_init(1)
            dd = d[n_*nd:(n_+1)*nd]
            if u == 0: interleave([], dd + r)
            else: interleave(mfma_ops(u - 1), r + dd, done=u - 1, per=2 if u <= 24 else 3)
            if u == 8: stamp()
    st['j'] = NST
    a.waitcnt(lgkm=0); a.barrier(); st['nbar'] += 1
    interleave(mfma_ops(31), dma_ops(17), lead=0, per=1, done=31)
    st['nbar'] += 100
    bg_take(10000)
    assert not bg.items
    stamp()
    if 'noprio' not in EXP: a.other('s_setprio 3')
    AF = 128; Z0 = 192
    QB2, M2, E2_, EE2, PQ2, KVD2 = Z0, Z0 + 4, Z0 + 8, Z0 + 16, Z0 + 24, Z0 + 32
    afslot = lambda p: p if p < 8 else 0
    vA2 = vF
    A2 = 32; WF2 = 96; aW = vB1; aH = vB1 + 2
    a.salu('s_mul_i32', s(t2), s(sR), 294912)
    a.valu('v_and_b32', v(vT0), 15, v(vL)); a.valu('v_lshrrev_b32', v(vT1), 5, v(vL)); a.valu('v_lshl_add_u32', v(vT0), v(vT1), 4, v(vT0))
    a.valu('v_and_b32', v(vT1), 16, v(vL)); a.valu('v_lshlrev_b32', v(vT1), 6, v(vT1)); a.valu('v_lshl_add_u32', v(vT0), v(vT0), 4, v(vT1))
    a.valu('v_add_u32', v(vA2), s(t2), v(vT0))
    for tb in range(2):
        for h in range(2): a.valu('v_cvt_pk_bf16_f32', v(QB2+2*tb+h), v(ACCQ+tb*4+2*h), v(ACCQ+tb*4+2*h+1))
    def ldA_ops(p):
        ops = []
        for tg in range(2):
            for m in range(2):
                def op(tg=tg, m=m):
                    if p < 7: a.salu('s_lshl_b32', s(t1), s(KS+p), 12)
                    else:
                        a.salu('s_lshl_b32', s(t1), s(sW), 13); a.salu('s_add_u32', s(t1), s(t1), (56 + p - 7) * 4096)
                    if 'fakeA' in EXP:
                        a.salu('s_and_b32', s(t1), s(t1), 0x3ffff)
                        a.bload('buffer_load_dwordx4', v(AF + (afslot(p)*4+tg*2+m)*4, 4), v(vL4), s(S_W2, 4), s(t1), offset=tg*2048 + m*1024); vm.add(('A', p)); return
                    a.bload('buffer_load_dwordx4', v(AF + (afslot(p)*4+tg*2+m)*4, 4), v(vA2), s(S_WS, 4), s(t1), offset=tg*2048 + m*512, flags=('' if 'plainA' in EXP else COH)); vm.add(('A', p))
                ops.append(op)
        return ops
    def kv_loads2():
        for e in range(2):
            head_s(u0)
            if e: a.salu('s_xor_b32', s(u0), s(u0), 1)
            a.salu('s_mul_i32', s(u0), s(u0), 2304); a.salu('s_add_u32', s(u0), s(u0), hex(RED))
            for k, vo in enumerate((vL4, vZO)):
                for i in range(2):
                    a.bload('buffer_load_dwordx4', v(KVD2 + 16*e + 8*k + 4*i, 4), v(vo), s(S_WS, 4), s(u0), offset=1152*i, flags=COH)
    a.valu('v_lshl_or_b32', v(vWP2), v(vWP2+2), 16, v(vWP2)); a.valu('v_lshl_or_b32', v(vWP2+1), v(vWP2+3), 16, v(vWP2+1))
    vwait('ha'); tagcheck([vPOLL], "ha", poll(F_HA))
    for op in ldA_ops(0): op()
    b.valu('v_and_b32', v(vT1), 15, v(vL)); b.valu('v_lshrrev_b32', v(vT2), 2, v(vT1)); b.valu('v_lshrrev_b32', v(vT0), 5, v(vL)); b.valu('v_lshl_add_u32', v(vCUR), v(vT0), 2, v(vT2))
    b.valu('v_and_b32', v(vT2), 2, v(vT2)); b.valu('v_lshrrev_b32', v(vT0), 4, v(vL)); b.valu('v_and_b32', v(vT0), 1, v(vT0)); b.valu('v_or_b32', v(vT2), v(vT2), v(vT0))
    b.valu('v_and_b32', v(vT1), 3, v(vT1)); b.valu('v_lshlrev_b32', v(vT1), 3, v(vT1)); b.valu('v_lshl_add_u32', v(vT1), v(vT2), 5, v(vT1))
    b.valu('v_lshl_add_u32', v(vT1), v(vCUR), 7, v(vT1)); b.salu('s_lshl_b32', s(u0), s(sWK), 2); b.valu('v_add_u32', v(aW), s(u0), v(vT1))
    b.valu('v_xor_b32', v(aW+1), 64, v(aW))
    for nb in range(2): b.valu('v_add_u32', v(aH+nb), '0x10000', v(aW+nb))
    NSETUP = len(b.items)
    softmax2(b, QB2, PQ2, M2, E2_, EE2, QB2, WPs=(vWP, vWP2))
    def kvchk():
        vwait('kvd'); tagcheck([KVD2 + 4*k + 3 for k in range(8)], "kvd", kv_loads2, tv=(vU0, vU1)); stamp()
    b.block(kvchk)
    for k in range(4): b.valu('v_mov_b32', v(KVD2 + 8*k + 3), v(KVD2 + 8*k + 4))
    b.salu('s_mul_i32', s(u0), s(sR), 72); b.salu('s_lshl_b32', s(u1), s(sC), 1); b.salu('s_add_u32', s(u0), s(u0), s(u1))
    for e in range(2):
        b.mfma(v(E2_ + 8*e, 4), v(KVD2 + 16*e, 4), v(PQ2 + 4*e, 4), 0); b.mfma(v(E2_ + 8*e + 4, 4), v(KVD2 + 16*e + 8, 4), v(PQ2 + 4*e, 4), 0)
    b.salu('s_lshr_b32', s(u1), s(sCQ), 1); b.salu('s_add_u32', s(u0), s(u0), s(u1)); b.salu('s_add_u32', s(u0), s(u0), 56); b.salu('s_lshl_b32', s(u0), s(u0), 12)
    b.salu('s_lshl_b32', s(u1), s(sTH), 11); b.salu('s_add_u32', s(u0), s(u0), s(u1))
    b.salu('s_lshl_b32', s(u1), s(sPAR), 10); b.salu('s_add_u32', s(u0), s(u0), s(u1))
    for e in range(2):
        KV = E2_ + 8*e; Z = KV + 4; T = QB2; O = M2 + 2*e
        rbf_pairs(b, [KV+i for i in range(4)], [T, T+1])
        b.valu('v_cvt_pk_bf16_f32', v(Z), v(Z), v(Z)); b.valu('v_lshlrev_b32', v(Z), 16, v(Z))
        b.valu('v_add_f32', v(Z), '0x358637bd', v(Z))
        b.valu('v_cvt_pk_bf16_f32', v(Z), v(Z), v(Z)); b.valu('v_lshlrev_b32', v(Z), 16, v(Z))
        b.valu('v_rcp_f32', v(Z+1), v(Z))
        b.valu('v_fma_f32', v(Z+2), '-' + v(Z), v(Z+1), 1.0); b.valu('v_fma_f32', v(Z+1), v(Z+2), v(Z+1), v(Z+1))
        for i in range(4): b.valu('v_mul_f32', v(KV+i), v(KV+i), v(Z+1))
        b.valu('v_cvt_pk_bf16_f32', v(O), v(KV), v(KV+1)); b.valu('v_cvt_pk_bf16_f32', v(O+1), v(KV+2), v(KV+3))
    def ost():
        a.scmp('s_cmp_eq_u32', s(sPAR), 0); a.other("s_cbranch_scc1 L_nosw")
        a.valu('v_swap_b32', v(M2), v(M2+2), extra_w=[v(M2+2)], rmw=True); a.valu('v_swap_b32', v(M2+1), v(M2+3), extra_w=[v(M2+3)], rmw=True)
        a.label("L_nosw")
        a.bstore('buffer_store_dwordx4', v(M2, 4), v(vL4), s(S_WS, 4), s(u0), flags=COH); vm.add('ost')
    b.block(ost)
    def odone(): st['odone'] = True; stamp()
    b.block(odone)
    def hbf():
        vwait(('hst', 1)); flag_store(hf_own(F_HB), tv=(vCUR+4, vCUR+5)); vm.add('fl')
    def kvl(): kv_loads2(); vm.add('kvd', 8)
    def phb(): poll(F_HB)(); vm.add('hb')
    hbf(); kvl()
    pre = ldA_ops(1) + ldA_ops(2)
    QE = opt('qe', 16)
    bg_take(NSETUP)
    for x in pre:
        bg_take(QE); x()
    bg_take(10000)
    phb()
    srd(a, S_B2, 20, 1024); srd(a, S_OUT, 22, 2097152)
    stamp()
    def reads2(p):
        sb = REG(14 + p); hi = sb >= 65536; lo = sb - (65536 if hi else 0)
        ops = []
        for m in range(2):
            for nb in range(2):
                r0 = WF2 + (p & 1) * 16 + (m*2+nb) * 4; bb = (aH if hi else aW) + nb
                ops.append(lambda r0=r0, bb=bb, m=m: a.ds_read('ds_read_b64_tr_b16', v(r0, 2), v(bb), offset=lo + m*1024))
                ops.append(lambda r0=r0, bb=bb, m=m: a.ds_read('ds_read_b64_tr_b16', v(r0+2, 2), v(bb), offset=lo + m*1024 + 2048))
        return ops
    def mfmas2(p):
        ops = []
        for m in range(2):
            for nb in range(2):
                for tg in range(2):
                    d = v(A2 + (nb*2+tg)*16, 16)
                    ops.append(lambda d=d, nb=nb, tg=tg, m=m: a.mfma(d, v(WF2 + (p & 1)*16 + (m*2+nb)*4, 4), v(AF + (afslot(p)*4+tg*2+m)*4, 4), d if (p or m) else 0, op='v_mfma_f32_32x32x16_bf16'))
        return ops
    vXX, vBB, vOO = AF + 16, AF + 20, vAO
    def xb():
        a.valu('v_lshrrev_b32', v(vT0), 3, v(vL)); a.valu('v_lshlrev_b32', v(vT1), 2, v(vL8))
        a.salu('s_lshl_b32', s(t0), s(sR), 6); a.salu('s_lshl_b32', s(t1), s(sW), 3); a.salu('s_add_u32', s(t0), s(t0), s(t1))
        a.valu('v_add_u32', v(vT0), s(t0), v(vT0)); a.valu('v_lshl_add_u32', v(vOO), v(vT0), 10, v(vT1))
        a.salu('s_lshl_b32', s(t3), s(sC), 7)
        a.bload('buffer_load_dwordx4', v(vXX, 4), v(vOO), s(S_X, 4), s(t3)); a.bload('buffer_load_dwordx4', v(vBB, 4), v(vT1), s(S_B2, 4), s(t3)); vm.add('xb', 2)
    def off_(): vwait('ost'); flag_store(hf_own(F_OF)); vm.add('fl')
    def pof(): poll(F_OF)(); vm.add('of')
    HBP = opt('hbp', 1); OFP = opt('ofp', 6)
    pend = []; late = []
    for p in range(10):
        stamp('p2')
        fill = []
        if p < 9:
            vwait(('st', 14 + p), lgkm=0)
            fill = reads2(p)
        else: a.waitcnt(lgkm=0)
        vs = []
        if p == HBP:
            vwait('hb')
            flag_store(hf_own(F_OF)); vm.add('fl')
            if 'noprio' not in EXP: a.other('s_setprio 0')
            if 'bar2' in EXP: a.barrier()
            tagcheck([vPOLL], "hb", poll(F_HB))
            pend += ldA_ops(3) + ldA_ops(4) + ldA_ops(5) + ldA_ops(6)
        if p == OFP - 2: vs.append(pof)
        if p == OFP:
            vwait('of'); tagcheck([vPOLL], "of", poll(F_OF))
            pend += ldA_ops(7) + ldA_ops(8)
        if p == 4: vs.append(xb)
        n = opt('pace', 8)
        vs += pend[:n]; pend = pend[n:]
        if 1 <= p and p + 3 <= 8: vs += dma_ops(14 + p + 3)
        if p >= 1:
            for f in fill[:4]: f()
            fill = fill[4:]
            vwait(('A', p-1))
            interleave(mfmas2(p - 1), fill + vs, lead=0, per=2)
        else:
            for f in fill + vs: f()
    assert not pend and not late and not bg.items
    stamp(); stamp('p2')
    a.valu('v_lshrrev_b32', v(vT0), 5, v(vL)); a.valu('v_and_b32', v(vT1), 15, v(vL)); a.valu('v_xor_b32', v(vT0), v(vT0), v(vT1))
    a.valu('v_lshlrev_b32', v(vT0), 4, v(vT0)); a.valu('v_lshl_add_u32', v(vT0), v(vT1), 8, v(vT0))
    a.valu('v_and_b32', v(vT1), 16, v(vL)); a.valu('v_lshl_add_u32', v(vT0), v(vT1), 11, v(vT0)); a.salu('s_lshl_b32', s(t1), s(sWK), 2)
    WA = WF2
    a.valu('v_add_u32', v(WA), s(t1), v(vT0))
    for u in range(1, 8): a.valu('v_xor_b32', v(WA+u), u << 5, v(WA))
    for tg in range(2):
        if tg:
            for u in range(8): a.valu('v_add_u32', v(WA+u), '0x10000', v(WA+u))
        for nb in range(2):
            for q in range(4): a.ds_write('ds_write_b128', v(WA + nb*4 + q), v(A2 + (nb*2+tg)*16 + 4*q, 4))
    a.valu('v_lshrrev_b32', v(vT0), 3, v(vL)); a.salu('s_and_b32', s(t1), s(sW), 1); a.salu('s_lshl_b32', s(t1), s(t1), 3); a.valu('v_add_u32', v(vT0), s(t1), v(vT0))
    a.valu('v_lshrrev_b32', v(vT1), 1, v(vL8)); a.valu('v_xor_b32', v(vT1), v(vT1), v(vT0))
    a.valu('v_lshlrev_b32', v(vT1), 4, v(vT1))
    RA = vCUR
    a.valu('v_lshl_add_u32', v(RA), v(vT0), 8, v(vT1)); a.salu('s_lshr_b32', s(t1), s(sW), 1); a.salu('s_lshl_b32', s(t1), s(t1), 15)
    a.valu('v_add_u32', v(RA), s(t1), v(RA)); a.valu('v_xor_b32', v(RA+1), 16, v(RA))
    U = WF2 + 8
    for i in range(4):
        a.valu('v_lshlrev_b32', v(U+2*i), 16, v(vBB+i)); a.valu('v_and_b32', v(U+2*i+1), '0xffff0000', v(vBB+i))
        a.valu('v_lshlrev_b32', v(U+8+2*i), 16, v(vXX+i)); a.valu('v_and_b32', v(U+8+2*i+1), '0xffff0000', v(vXX+i))
    for i in range(8): a.valu('v_add_f32', v(U+i), v(U+i), v(U+8+i))
    a.waitcnt(lgkm=0); a.barrier()
    R = AF + 32
    for p in range(8):
        for e in range(2): a.ds_read('ds_read_b128', v(R + (p*2+e)*4, 4), v(RA + e), offset=p * 4096)
    for p in range(8):
        a.waitcnt(lgkm=14 - 2*p)
        for i in range(8): a.valu('v_add_f32', v(U+i), v(U+i), v(R+p*8+i))
    for i in range(4): a.valu('v_cvt_pk_bf16_f32', v(R+i), v(U+2*i), v(U+2*i+1))
    a.bstore('buffer_store_dwordx4', v(R, 4), v(vOO), s(S_OUT, 4), s(t3))
    a.salu('s_or_b32', s(t0), 's2', s(sW)); a.scmp('s_cmp_lg_u32', s(t0), 0); a.other("s_cbranch_scc1 L_noep")
    flag_store(lambda: a.salu('s_mov_b32', s(t0), hex(F_EPOCH)))
    a.label("L_noep")
    if 'dbg' in EXP:
        d = S_WQ; vt = TMP
        a.other(f"s_memrealtime {s(S_W1,2)}")
        a.scmp('s_cmp_lg_u32', s(sW), 0); a.other("s_cbranch_scc1 L_end")
        a.waitcnt(lgkm=0)
        a.salu('s_mov_b32', s(d), s(DBGP)); a.salu('s_and_b32', s(d+1), s(DBGP+1), 0xffff); a.salu('s_mov_b32', s(d+2), 256); a.salu('s_mov_b32', s(d+3), '0x00020000')
        a.valu('v_mov_b32', v(vt+2), 0); a.salu('s_mov_b64', 'exec', 1)
        a.salu('s_not_b32', s(t0), s(stamp_pairs[0])); a.valu('v_mov_b32', v(vt), s(t0))
        a.bstore('buffer_atomic_umax', v(vt), v(vt+2), s(d, 4), 0, offset=0, flags='sc1')
        for i, pr in enumerate(stamp_pairs[1:nst[0]] + [S_W1]):
            a.valu('v_mov_b32', v(vt+1), s(pr)); a.bstore('buffer_atomic_umax', v(vt+1), v(vt+2), s(d, 4), 0, offset=4 + 4*i, flags='sc1'); a.waitcnt(vm=0)
    elif STAMPS:
        d = S_WQ; vt = TMP
        a.other(f"{'s_memtime' if 'clk' in EXP else 's_memrealtime'} {s(S_W1,2)}")
        a.waitcnt(lgkm=0)
        a.salu('s_add_u32', s(d), s(S_WS), hex(STAMP_OFF)); a.salu('s_addc_u32', s(d+1), s(S_WS+1), 0)
        a.salu('s_mov_b32', s(d+2), '0x100000'); a.salu('s_mov_b32', s(d+3), '0x00020000')
        a.salu('s_lshl_b32', 's3', s(sW), 15); a.salu('s_lshl_b32', s(t0), 's2', 7); a.salu('s_add_u32', 's3', 's3', s(t0))
        a.valu('v_mov_b32', v(vt+2), 0); a.salu('s_mov_b64', 'exec', 1)
        for i, pr in enumerate(stamp_pairs[:nst[0]] + [S_W1]):
            a.valu('v_mov_b32', v(vt), s(pr)); a.valu('v_mov_b32', v(vt+1), s(pr+1))
            a.bstore('buffer_store_dwordx2', v(vt, 2), v(vt+2), s(d, 4), 's3', offset=i * 8); a.waitcnt(vm=0)
    a.label("L_end"); a.other("s_endpgm")
    a.label("L_code_end")
    sys.stderr.write(f"marks {st['marks']} nins {a.nins}\n")
    return a.text(), kernel_desc(kn, 256), 163840

k, d, l = gen()
hdr = open("cdna_kernels/" + NAME + ".s.ref").read().split("; Override")[0]
out = hdr + f"; @launch grid=(256,1,1) block=(512,1,1) lds={l}\n"
out += f'.amdgcn_target "amdgcn-amd-amdhsa--gfx950"\n.text\n.set CODE_BYTES, L_code_end - {NAME}_kernel - 128\n' + k
out += '.section .rodata,"a"\n.p2align 6\n' + d
sys.stdout.write(out)
```

```python
import sys
from asmlib import *
STAMPS = '--stamps' in sys.argv
EXP = [x[2:] for x in sys.argv[1:] if x.startswith('--')]
def opt(name, default):
    for x in EXP:
        if x.startswith(name + '='): return int(x.split('=')[1])
    return default
NAME = "parallel_sum__linear_kernel_hedgehog__dense_activation_squared_relu__prompt"
AWS = 0; PART = 0x1000000; RED = 0x1800000; FL = 0x1A00000; WS_BYTES = 0x2000000; STAMP_OFF = 0x8000000
F_EPOCH = FL; F_HA = FL + 0x4000; F_HB = FL + 0x8000; F_OF = FL + 0xC000
L2E = 0x3fb8aa3b
DPPM = "row_mask:0xf bank_mask:0xf"
COH = "sc0 sc1"
BGRATE = opt('bg', 8)

class VM:
    def __init__(self): self.q = [[], []]
    def add(self, tag, n=1, cls=None):
        for c in (0, 1):
            if cls is None or cls == c: self.q[c] += [tag] * n
    def need1(self, c, tags):
        last = -1
        for i, t in enumerate(self.q[c]):
            if t in tags: last = i
        if last < 0: return None
        return min(63, len(self.q[c]) - 1 - last)

class Rec:
    def __init__(self, a): self.a = a; self.items = []
    def __getattr__(self, name):
        f = getattr(self.a, name)
        def rec(*args, **kw): self.items.append(lambda: f(*args, **kw))
        return rec
    def block(self, fn): self.items.append(fn)
    def gate(self, cond): self.items.append(('gate', cond))

def srd(a, d, base, nbytes):
    a.salu('s_mov_b32', s(d), s(base)); a.salu('s_and_b32', s(d+1), s(base+1), 0xffff)
    a.salu('s_mov_b32', s(d+2), hex(nbytes)); a.salu('s_mov_b32', s(d+3), '0x00020000')

def rbf_pairs(a, vals, tmp):
    for i in range(0, len(vals), 2):
        a.valu('v_cvt_pk_bf16_f32', v(tmp[i//2]), v(vals[i]), v(vals[i+1]))
    for i in range(0, len(vals), 2):
        a.valu('v_lshlrev_b32', v(vals[i]), 16, v(tmp[i//2]))
        a.valu('v_and_b32', v(vals[i+1]), '0xffff0000', v(tmp[i//2]))

def allred(a, op, rs, tmp):
    for sw in ('v_permlane16_swap_b32', 'v_permlane32_swap_b32'):
        for r, t in zip(rs, tmp): a.valu('v_mov_b32', v(t), v(r))
        for r, t in zip(rs, tmp): a.valu(sw, v(r), v(t))
        for r, t in zip(rs, tmp): a.valu(op, v(r), v(r), v(t))

def gen():
    a = Asm(); vm = VM()
    kn = NAME + "_kernel"
    a.raw(kernel_header(kn))
    S_X, S_WQ, S_W1, S_WP, S_B1, S_WS, S_W2, S_WO, S_B2, S_OUT = 24, 28, 32, 36, 40, 44, 48, 52, 36, 40
    sR, sC, sW, sROT, sWK, sTH, sCQ, sK0, sTAG = 56, 57, 58, 59, 60, 61, 62, 63, 64
    t0, t1, t2, t3 = 65, 66, 67, 68
    b0, b1_ = 22, 23
    T1 = 70; KS = 86
    sSPIN = 93; sRED = 69; sSL = 3; sPAR = 59
    u0, u1 = 0, 1
    stamp_pairs = [94, 96, 98, 100, 4, 6, 8, 10, 12, 14, 16, 18]
    DBGP = 100
    if 'dbg' in EXP: stamp_pairs.remove(100)
    nst = [0]
    def stamp(kind='n'):
        mode = 'it' if 'iters' in EXP else ('p2' if 'p2' in EXP else ('e' if 'early' in EXP else 'n'))
        if STAMPS and (kind == mode or nst[0] == 0) and nst[0] < len(stamp_pairs):
            a.other(f"{'s_memtime' if 'clk' in EXP else 's_memrealtime'} {s(stamp_pairs[nst[0]],2)}"); nst[0] += 1
    wl = [0]
    def vwait(*tags, lgkm=None):
        n0, n1 = vm.need1(0, tags), vm.need1(1, tags)
        if n0 == n1: a.waitcnt(vm=n0, lgkm=lgkm); return
        wl[0] += 1; L = f"L_w{wl[0]}"
        a.scmp('s_cmp_eq_u32', s(sTH), 0); a.other(f"s_cbranch_scc1 {L}_0")
        if n1 is not None: a.waitcnt(vm=n1)
        a.other(f"s_branch {L}_e")
        a.label(f"{L}_0")
        if n0 is not None: a.waitcnt(vm=n0)
        a.label(f"{L}_e")
        if lgkm is not None: a.waitcnt(lgkm=lgkm)
    a.scmp('s_cmp_ge_u32', 's2', 256); a.other("s_cbranch_scc1 L_end")
    stamp()
    for d, off in ((4, 0), (14, 88), (6, 8), (8, 16), (10, 40), (12, 48), (16, 56), (18, 24), (20, 64), (22, 72)):
        a.other(f"s_load_dwordx2 {s(d,2)}, s[0:1], {off}")
    if 'dbg' in EXP: a.other(f's_load_dwordx2 {s(DBGP,2)}, s[0:1], 80')
    vL, vKV, vF, vQ, aK, aV, aF, aQ, vWP, vB1 = 1, 2, 3, 4, 5, 6, 7, 11, 12, 14
    vCUR = 22; vFLAG = 28; vT0, vT1, vT2 = 29, 30, 31
    vU0, vU1 = 9, 10
    ACCA = 32; ACCB = 48; ACCQ = 64; WF = 72; TMP = 104; XF = 128
    vEP = vCUR + 2
    a.valu('v_lshrrev_b32', v(vT0), 6, 'v0'); a.valu('v_and_b32', v(vL), 63, 'v0')
    a.valu('v_readfirstlane_b32', s(sW), v(vT0))
    a.salu('s_and_b32', s(t0), 's2', 7); a.salu('s_lshr_b32', s(t1), 's2', 3)
    if 'nopf' not in EXP:
        a.other(f"s_getpc_b64 {s(S_W2,2)}")
        a.salu('s_and_b32', s(S_W2+1), s(S_W2+1), 0xffff); a.salu('s_mov_b32', s(S_W2+2), 'CODE_BYTES'); a.salu('s_mov_b32', s(S_W2+3), '0x00020000')
        a.salu('s_and_b32', s(t2), s(t1), 3); a.salu('s_lshl_b32', s(t2), s(t2), 13)
        a.valu('v_lshlrev_b32', v(vT1), 7, v(vL))
        a.scmp('s_cmp_lg_u32', s(sW), 7); a.other("s_cbranch_scc1 L_nopf")
        a.bload('buffer_load_dword', v(vEP), v(vT1), s(S_W2, 4), s(t2))
        a.label("L_nopf")
    a.salu('s_lshr_b32', s(t2), s(t0), 1); a.salu('s_lshl_b32', s(t2), s(t2), 3); a.salu('s_lshr_b32', s(t3), s(t1), 2)
    a.salu('s_add_u32', s(sR), s(t2), s(t3))
    a.salu('s_and_b32', s(t2), s(t0), 1); a.salu('s_lshl_b32', s(t2), s(t2), 2); a.salu('s_and_b32', s(sC), s(t1), 3)
    a.salu('s_add_u32', s(sC), s(sC), s(t2))
    if opt('cx', 0): a.salu('s_xor_b32', s(sC), s(sC), opt('cx', 0))
    if 'norot' in EXP: a.salu('s_mov_b32', s(t3), 0)
    a.valu('v_lshrrev_b32', v(vT0), 3, v(vL)); a.valu('v_and_b32', v(vT1), 7, v(vL))
    a.salu('s_lshl_b32', s(t0), s(sR), 6); a.salu('s_lshl_b32', s(t1), s(sW), 3); a.salu('s_add_u32', s(t0), s(t0), s(t1))
    a.valu('v_add_u32', v(vT2), s(t0), v(vT0)); a.valu('v_lshlrev_b32', v(vT2), 10, v(vT2)); a.valu('v_lshl_add_u32', v(vT2), v(vT1), 4, v(vT2))
    a.waitcnt(lgkm=0)
    stamp('e')
    srd(a, S_X, 4, 2097152)
    X = 32; F = 64
    for j in range(8):
        a.salu('s_add_u32', s(t2), s(t3), j); a.salu('s_and_b32', s(t2), s(t2), 7); a.salu('s_lshl_b32', s(t2), s(t2), 7)
        a.bload('buffer_load_dwordx4', v(X+4*j, 4), v(vT2), s(S_X, 4), s(t2)); vm.add('x')
    srd(a, S_WS, 14, WS_BYTES)
    a.valu('v_mov_b32', v(TMP), 0); a.salu('s_mov_b32', s(t2), hex(F_EPOCH))
    a.bload('buffer_load_dword', v(vEP), v(TMP), s(S_WS, 4), s(t2), flags=COH); vm.add('x')
    if 'gt' in EXP:
        G0 = S_W2
        a.scmp('s_cmp_ge_u32', s(sW), 4); a.other("s_cbranch_scc1 L_nogt")
        a.scmp('s_cmp_eq_u32', s(sW), 0); a.salu('s_cselect_b32', s(G0), s(6), s(10)); a.salu('s_cselect_b32', s(G0+1), s(7), s(11)); a.salu('s_cselect_b32', s(t2), 48, 56)
        a.scmp('s_cmp_eq_u32', s(sW), 2); a.salu('s_cselect_b32', s(G0), s(16), s(G0)); a.salu('s_cselect_b32', s(G0+1), s(17), s(G0+1))
        a.scmp('s_cmp_eq_u32', s(sW), 3); a.salu('s_cselect_b32', s(G0), s(18), s(G0)); a.salu('s_cselect_b32', s(G0+1), s(19), s(G0+1)); a.salu('s_cselect_b32', s(t2), 16, s(t2))
        a.salu('s_and_b32', s(G0+1), s(G0+1), 0xffff); a.salu('s_lshl_b32', s(G0+2), s(t2), 15); a.salu('s_mov_b32', s(G0+3), '0x00020000')
        a.salu('s_sub_u32', s(t0), s(t2), 1); a.valu('v_min_u32', v(TMP+1), s(t0), v(vL)); a.valu('v_lshlrev_b32', v(TMP+1), 7, v(TMP+1))
        a.salu('s_mul_i32', s(t2), s(t2), 's2'); a.salu('s_lshl_b32', s(t2), s(t2), 7)
        a.bload('buffer_load_dword', 'v0', v(TMP+1), s(G0, 4), s(t2))
        a.label("L_nogt")
        vm.add('gt', 1, cls=0)
    a.salu('s_lshl_b32', s(sROT), s(t3), 1)
    a.salu('s_lshl_b32', s(sWK), s(sW), 10); a.salu('s_lshr_b32', s(sTH), s(sW), 2); a.salu('s_and_b32', s(sCQ), s(sW), 3)
    a.salu('s_mul_i32', s(sK0), s(sC), 7); a.salu('s_and_b32', s(t2), s(sC), 1); a.salu('s_sub_u32', s(sK0), s(sK0), s(t2))
    srd(a, S_WQ, 6, 1572864)
    for p in range(16):
        a.salu('s_add_u32', s(T1+p), s(sROT), p); a.salu('s_and_b32', s(T1+p), s(T1+p), 15)
    vXW = vCUR + 4
    a.valu('v_add_u32', v(vT0), s(t1), v(vT0))
    a.valu('v_and_b32', v(vT2), 15, v(vT0)); a.valu('v_xor_b32', v(vT2), v(vT2), v(vT1)); a.valu('v_lshlrev_b32', v(vT2), 4, v(vT2))
    a.valu('v_lshl_add_u32', v(vXW), v(vT0), 10, v(vT2))
    vG, vI = TMP + 4, TMP + 5
    a.valu('v_lshrrev_b32', v(vG), 4, v(vL)); a.valu('v_and_b32', v(vI), 15, v(vL))
    vCH, vRW = TMP + 10, TMP + 11
    a.salu('s_lshr_b32', s(t0), s(sW), 1); a.salu('s_and_b32', s(t0), s(t0), 1); a.salu('s_lshl_b32', s(t0), s(t0), 3)
    a.valu('v_lshlrev_b32', v(vT0), 1, v(vG)); a.valu('v_or_b32', v(vT0), s(t0), v(vT0)); a.valu('v_xor_b32', v(vCH), v(vT0), v(vI))
    a.valu('v_lshrrev_b32', v(vT1), 3, v(vCH)); a.valu('v_lshlrev_b32', v(vT1), 10, v(vT1))
    a.valu('v_and_b32', v(vT0), 7, v(vCH)); a.valu('v_lshl_add_u32', v(vT1), v(vT0), 4, v(vT1))
    a.salu('s_lshl_b32', s(t0), s(sW), 2); a.valu('v_add_u32', v(vRW), s(t0), v(vG))
    a.valu('v_mul_u32_u24', v(vT0), 3072, v(vRW)); a.valu('v_add_u32', v(vT1), v(vT1), v(vT0))
    a.salu('s_lshl_b32', s(t0), s(sC), 7); a.salu('s_add_u32', s(t0), s(t0), 1024)
    a.valu('v_add_u32', v(vKV), s(t0), v(vT1))
    NST = 14
    REG = lambda i: {0: 2, 1: 3, 2: 4}.get(i, (i - 3) % 4) * 32768
    MISC = 4 * 32768
    vDW, vAO = vKV, vQ
    def dma_ops(i):
        ops = []
        for q in range(4):
            def op(q=q):
                if i < 14: a.salu('s_add_u32', 'm0', s(sWK), hex(REG(i) + q * 8192))
                if i < 4:
                    a.salu('s_mul_i32', s(t0), s(T1 + 4*i + q), 98304); a.bload_lds(v(vKV), s(S_WQ, 4), s(t0))
                elif 12 <= i < 14:
                    a.salu('s_add_u32', s(t0), s(sTH), s(T1 + 8*(i-12) + 2*q)); a.salu('s_and_b32', s(t0), s(t0), 15)
                    a.salu('s_mul_i32', s(t0), s(t0), 98304); a.bload_lds(v(vQ), s(S_WQ, 4), s(t0))
                elif i < 14:
                    hf = (i - 4) >> 2; jj = (i - 4) & 3
                    a.salu('s_mul_i32', s(t0), s(T1 + 4*jj + q), 114688)
                    if hf: a.salu('s_add_u32', s(t0), s(t0), 256)
                    a.bload_lds(v(vF), s(S_W1, 4), s(t0))
                else:
                    p = i - 14
                    a.salu('s_lshl_b32', s(t1), s(sWK), 2); a.salu('s_add_u32', 'm0', s(t1), hex(REG(i) + q * 1024))
                    if p < 7:
                        a.salu('s_lshl_b32', s(t0), s(KS+p), 15)
                        if q: a.salu('s_add_u32', s(t0), s(t0), q * 8192)
                        a.bload_lds(v(vDW), s(S_W2, 4), s(t0))
                    else:
                        a.salu('s_lshl_b32', s(t0), s(sW), 16); a.salu('s_add_u32', s(t0), s(t0), (p - 7) * 32768 + q * 8192)
                        a.bload_lds(v(vDW), s(S_WO, 4), s(t0))
                vm.add(('st', i))
            ops.append(op)
        return ops
    srd(a, S_WP, 8, 16384); srd(a, S_B1, 12, 3584)
    a.salu('s_lshl_b32', s(t0), s(sC), 2); a.salu('s_add_u32', s(t0), s(t0), s(sCQ)); a.salu('s_lshl_b32', s(t0), s(t0), 9)
    a.valu('v_lshlrev_b32', v(vT0), 7, v(vG)); a.valu('v_lshl_add_u32', v(vT0), v(vI), 1, v(vT0))
    stamp('e')
    a.barrier()
    stamp('e')
    a.bload('buffer_load_ushort', v(vWP), v(vT0), s(S_WP, 4), s(t0), offset=0)
    a.bload('buffer_load_ushort', v(vFLAG), v(vT0), s(S_WP, 4), s(t0), offset=32)
    a.bload('buffer_load_ushort', v(vWP+1), v(vT0), s(S_WP, 4), s(t0), offset=64)
    a.bload('buffer_load_ushort', v(vCUR+3), v(vT0), s(S_WP, 4), s(t0), offset=96); vm.add('small', 4)
    NPRE = opt('npre', 4)
    early = dma_ops(0) + dma_ops(1) + dma_ops(2)
    for op in early[:NPRE]: op()
    early = early[NPRE:]
    vTA = XF
    a.salu('s_add_u32', s(t0), s(sK0), s(sCQ)); a.salu('s_lshl_b32', s(t0), s(t0), 6)
    a.valu('v_lshlrev_b32', v(vT0), 3, v(vG)); a.valu('v_add_u32', v(vTA), s(t0), v(vT0))
    for hf in range(2):
        for e in range(2):
            def op(hf=hf, e=e):
                a.bload('buffer_load_dwordx2', v(vB1+4*hf+2*e, 2), v(vTA), s(S_B1, 4), 0, offset=256*hf+32*e); vm.add('b1')
            early.append(op)
    srd(a, S_W1, 10, 1835008); srd(a, S_W2, 16, 1835008); srd(a, S_WO, 18, 524288)
    if 'notouch' not in EXP:
        a.salu('s_lshr_b32', s(t0), 's2', 3); a.salu('s_lshl_b32', s(t0), s(t0), 3); a.salu('s_add_u32', s(t0), s(t0), s(sW))
        a.salu('s_lshr_b32', s(t2), s(sC), 2)
        a.valu('v_lshrrev_b32', v(vT0), 4, v(vL)); a.valu('v_and_b32', v(vT0), 1, v(vT0)); a.salu('s_lshl_b32', s(t1), s(t0), 1); a.valu('v_add_u32', v(vT0), s(t1), v(vT0))
        a.valu('v_mul_u32_u24', v(vT1), 3584, v(vT0)); a.valu('v_min_u32', v(vT2), 13, v(vI)); a.valu('v_lshl_add_u32', v(vT1), v(vT2), 7, v(vT1))
        a.salu('s_mul_i32', s(t1), s(t2), 1792); a.valu('v_add_u32', v(vTA+1), s(t1), v(vT1))
        a.valu('v_and_b32', v(vT2), 3, v(vL)); a.valu('v_lshlrev_b32', v(vT2), 7, v(vT2)); a.salu('s_lshl_b32', s(t1), s(t2), 9); a.valu('v_add_u32', v(vT2), s(t1), v(vT2))
        a.valu('v_mul_u32_u24', v(vT1), 3072, v(vT0)); a.valu('v_add_u32', v(vTA+2), v(vT1), v(vT2))
        a.valu('v_lshl_add_u32', v(vTA+3), v(vT0), 10, v(vT2))
        a.salu('s_mul_i32', s(t0), s(t0), 7); a.valu('v_lshrrev_b32', v(vT0), 2, v(vL)); a.valu('v_min_u32', v(vT0), 6, v(vT0)); a.valu('v_add_u32', v(vT0), s(t0), v(vT0))
        a.valu('v_lshl_add_u32', v(vTA+4), v(vT0), 10, v(vT2))
        W2J = opt('w2j', 3)
        if W2J >= 0:
            a.valu('v_mov_b32', v(vU0), v(vTA+3)); a.valu('v_mov_b32', v(vU1), v(vTA+4))
        for k, sd in enumerate((S_W1, S_WQ, S_WO, S_W2)):
            if k >= 2 and W2J >= 0: continue
            def op(k=k, sd=sd):
                a.bload('buffer_load_dword', 'v0', v(vTA+1+k), s(sd, 4), 0); vm.add('touch')
            early.append(op)
    a.valu('v_mul_u32_u24', v(vT0), 3584, v(vRW)); a.valu('v_lshl_add_u32', v(vT0), v(vCH), 4, v(vT0))
    a.salu('s_lshl_b32', s(t0), s(sK0), 6); a.valu('v_add_u32', v(vF), s(t0), v(vT0))
    a.valu('v_and_b32', v(vT0), 1, v(vG)); a.salu('s_and_b32', s(t0), s(sW), 1); a.salu('s_lshl_b32', s(t0), s(t0), 1)
    a.valu('v_or_b32', v(vT0), s(t0), v(vT0)); a.valu('v_lshlrev_b32', v(vT0), 1, v(vT0))
    a.valu('v_and_b32', v(vT1), 7, v(vL)); a.valu('v_xor_b32', v(vT1), v(vT1), v(vT0)); a.valu('v_lshlrev_b32', v(vT1), 4, v(vT1))
    a.valu('v_lshrrev_b32', v(vT0), 3, v(vL)); a.salu('s_lshl_b32', s(t0), s(sCQ), 3); a.valu('v_add_u32', v(vT0), s(t0), v(vT0))
    a.valu('v_mul_u32_u24', v(vT0), 3072, v(vT0)); a.valu('v_add_u32', v(vT1), v(vT1), v(vT0))
    a.salu('s_lshl_b32', s(t0), s(sC), 7); a.valu('v_add_u32', v(vQ), s(t0), v(vT1))
    vRR, vROW, vFS, vC8 = TMP + 6, TMP + 7, TMP + 8, TMP + 9
    a.valu('v_lshrrev_b32', v(vRR), 2, v(vI)); a.valu('v_lshl_add_u32', v(vROW), v(vG), 3, v(vRR))
    a.valu('v_and_b32', v(vT0), 1, v(vG)); a.valu('v_lshl_or_b32', v(vFS), v(vT0), 2, v(vRR))
    a.valu('v_and_b32', v(vC8), 3, v(vI)); a.valu('v_lshlrev_b32', v(vC8), 3, v(vC8))
    a.valu('v_xor_b32', v(vT1), s(sCQ), v(vFS)); a.valu('v_lshl_add_u32', v(vT1), v(vT1), 5, v(vC8)); a.valu('v_lshl_add_u32', v(aK), v(vROW), 8, v(vT1))
    a.valu('v_xor_b32', v(aV), 128, v(aK))
    a.salu('s_lshl_b32', s(t0), s(sCQ), 1)
    a.valu('v_xor_b32', v(vT1), s(t0), v(vFS)); a.valu('v_lshl_add_u32', v(vT1), v(vT1), 5, v(vC8)); a.valu('v_lshl_add_u32', v(aF), v(vROW), 8, v(vT1))
    a.valu('v_xor_b32', v(aF+1), 32, v(aF))
    a.valu('v_lshrrev_b32', v(vT1), 1, v(vRR)); a.valu('v_lshl_or_b32', v(vT1), v(vT0), 1, v(vT1)); a.valu('v_xor_b32', v(vT1), s(sCQ), v(vT1))
    a.valu('v_lshl_add_u32', v(vT1), v(vT1), 5, v(vC8)); a.valu('v_lshl_add_u32', v(aQ), v(vROW), 7, v(vT1))
    vXR = vCUR + 5
    a.valu('v_xor_b32', v(vT1), v(vG), v(vI)); a.valu('v_lshlrev_b32', v(vT1), 4, v(vT1)); a.valu('v_lshl_add_u32', v(vT1), v(vI), 10, v(vT1))
    a.salu('s_lshl_b32', s(t0), s(sTH), 15); a.valu('v_add_u32', v(vXR), s(t0), v(vT1))
    if 'rotr' in EXP: a.salu('s_lshr_b32', s(t0), s(sROT), 1)
    else: a.salu('s_and_b32', s(t0), s(sC), 3)
    a.salu('s_mul_i32', s(t1), s(sW), 7)
    a.salu('s_mul_i32', s(t2), s(t0), 11); a.salu('s_lshr_b32', s(t2), s(t2), 5); a.salu('s_mul_i32', s(t2), s(t2), 3); a.salu('s_sub_u32', s(t2), s(t0), s(t2))
    for p in range(3):
        a.salu('s_add_u32', s(t3), s(t2), p); a.salu('s_sub_u32', s(KS+p), s(t3), 3); a.scmp('s_cmp_ge_u32', s(t3), 3)
        a.salu('s_cselect_b32', s(KS+p), s(KS+p), s(t3)); a.salu('s_add_u32', s(KS+p), s(KS+p), s(t1))
    for p in range(4):
        a.salu('s_add_u32', s(t3), s(t0), p); a.salu('s_and_b32', s(t3), s(t3), 3); a.salu('s_add_u32', s(t3), s(t3), s(t1)); a.salu('s_add_u32', s(KS+3+p), s(t3), 3)
    vwait('x')
    stamp(); stamp('e')
    a_real = a; a = Rec(a_real)
    a.valu('v_readfirstlane_b32', s(sTAG), v(vEP))
    for j in range(32):
        a.valu('v_lshlrev_b32', v(F+2*j), 16, v(X+j)); a.valu('v_and_b32', v(F+2*j+1), '0xffff0000', v(X+j))
    a.salu('s_add_u32', s(sTAG), s(sTAG), 1)
    S0 = X
    for k in range(4): a.valu('v_add_f32', v(S0+k), v(F+k), v(F+4+k))
    for j in range(8, 64): a.valu('v_add_f32', v(S0+j%4), v(S0+j%4), v(F+j))
    a.valu('v_add_f32', v(S0), v(S0), v(S0+1)); a.valu('v_add_f32', v(S0+2), v(S0+2), v(S0+3)); a.valu('v_add_f32', v(S0), v(S0), v(S0+2))
    def red8(r):
        a.valu('v_add_f32_dpp', v(r), v(r), v(r), mod="quad_perm:[1,0,3,2] " + DPPM)
        a.valu('v_add_f32_dpp', v(r), v(r), v(r), mod="quad_perm:[2,3,0,1] " + DPPM)
        a.valu('v_add_f32_dpp', v(r), v(r), v(r), mod="row_half_mirror " + DPPM)
    red8(S0)
    vMEAN, vMB = S0 + 4, S0 + 5
    a.valu('v_mul_f32', v(vMEAN), '0x3b000000', v(S0))
    a.valu('v_cvt_pk_bf16_f32', v(vMB), v(vMEAN), v(vMEAN)); a.valu('v_lshlrev_b32', v(vMB), 16, v(vMB))
    for j in range(64): a.valu('v_sub_f32', v(F+j), v(F+j), v(vMB))
    for k in range(4): a.valu('v_mul_f32', v(S0+k), v(F+k), v(F+k))
    for j in range(4, 64): a.valu('v_fmac_f32', v(S0+j%4), v(F+j), v(F+j))
    a.valu('v_add_f32', v(S0), v(S0), v(S0+1)); a.valu('v_add_f32', v(S0+2), v(S0+2), v(S0+3)); a.valu('v_add_f32', v(S0), v(S0), v(S0+2))
    red8(S0)
    a.valu('v_sub_f32', v(vMEAN), v(vMEAN), v(vMB))
    a.valu('v_mul_f32', v(S0), '0x3b000000', v(S0))
    a.valu('v_fma_f32', v(S0), '-' + v(vMEAN), v(vMEAN), v(S0)); a.valu('v_max_f32', v(S0), 0, v(S0))
    a.valu('v_cvt_pk_bf16_f32', v(S0), v(S0), v(S0)); a.valu('v_lshlrev_b32', v(S0), 16, v(S0))
    a.valu('v_add_f32', v(S0), '0x3727c5ac', v(S0))
    a.valu('v_cvt_pk_bf16_f32', v(S0), v(S0), v(S0)); a.valu('v_lshlrev_b32', v(S0), 16, v(S0))
    a.valu('v_sqrt_f32', v(S0), v(S0))
    a.valu('v_cvt_pk_bf16_f32', v(S0), v(S0), v(S0)); a.valu('v_lshlrev_b32', v(S0), 16, v(S0))
    vRI = vT0
    a.valu('v_rcp_f32', v(vRI), v(S0))
    a.valu('v_fma_f32', v(vT1), '-' + v(S0), v(vRI), 1.0); a.valu('v_fma_f32', v(vRI), v(vT1), v(vRI), v(vRI))
    a.valu('v_xor_b32', v(vT1), 128, v(vXW))
    for j in range(8):
        fs = [F + 8*j + i for i in range(8)]
        rbf_pairs(a, fs, [X + 4*j + i for i in range(4)])
        for f in fs: a.valu('v_mul_f32', v(f), v(f), v(vRI))
        for i in range(4): a.valu('v_cvt_pk_bf16_f32', v(X+4*j+i), v(fs[2*i]), v(fs[2*i+1]))
        a.ds_write('ds_write_b128', v(vXW if j % 2 == 0 else vT1), v(X+4*j, 4), offset=(j >> 1) * 256)
    lnitems = a.items; a = a_real
    LNP = max(1, (len(lnitems) - 20) // max(1, len(early)))
    for n_, it in enumerate(lnitems):
        it()
        if n_ % LNP == LNP - 1 and early: early.pop(0)()
    for op in early: op()
    vwait('small')
    a.valu('v_lshl_or_b32', v(vWP), v(vFLAG), 16, v(vWP)); a.valu('v_lshl_or_b32', v(vWP+1), v(vCUR+3), 16, v(vWP+1))
    a.salu('s_and_b32', s(sPAR), s(sCQ), 1); a.salu('s_lshl_b32', s(t0), s(sPAR), 14); a.valu('v_add_u32', v(vXR), s(t0), v(vXR))
    for sl in range(2):
        for q4 in range(4): a.valu('v_xor_b32', v(TMP+sl*4+q4), (q4 << 6) | (sl << 14), v(vXR))
    stamp('e')
    a.waitcnt(lgkm=0); a.barrier()
    stamp(); stamp('e')
    for ks in range(16):
        for tb in range(2):
            a.ds_read('ds_read_b128', v(XF + (tb*16+ks)*4, 4), v(TMP + tb*4 + ks % 4), offset=(ks >> 2) * 256)
    if opt('w2j', 3) >= 0:
        a.valu('v_mov_b32', v(vCUR+4), v(vU0)); a.valu('v_mov_b32', v(vCUR+5), v(vU1))
    vID = vCUR + 2
    a.valu('v_lshrrev_b32', v(vT0), 4, v(vL)); a.valu('v_lshlrev_b32', v(vT0), 2, v(vT0)); a.valu('v_and_b32', v(vT1), 15, v(vL)); a.valu('v_sub_u32', v(vT0), v(vT1), v(vT0))
    a.valu('v_mov_b32', v(vT1), '0x3f80'); a.valu('v_mov_b32', v(vT2), '0x3f800000')
    for h in range(2):
        a.valu('v_cmp_eq_u32', 'vcc', 2*h, v(vT0)); a.valu('v_cndmask_b32', v(vID+h), 0, v(vT1), 'vcc')
        a.valu('v_cmp_eq_u32', 'vcc', 2*h+1, v(vT0)); a.valu('v_cndmask_b32', v(vID+h), v(vID+h), v(vT2), 'vcc')
    xf = lambda tb, ks: v(XF + (tb*16+ks)*4, 4)
    wf = lambda buf, i: v(WF + buf*16 + i*4, 4)
    started = set()
    curbase = {}
    def unit_info(u):
        if u < 24: return u >> 1, (u & 1) * 16384
        return 12 + ((u - 24) >> 2), ((u - 24) & 3) * 8192
    def read_ops(hs):
        j, so = unit_info(hs); sb = REG(j) + so; buf = hs & 1
        if j < 4: bases = [aK, aV]; d1, d2 = 8192, 1024
        elif j >= 12: bases = [aQ, aQ2]; d1, d2 = 4096, 512
        else: bases = [aF, aF+1]; d1, d2 = 8192, 1024
        lst = [(bases[0], 0, d2), (bases[1], 0, d2), (bases[0], d1, d2), (bases[1], d1, d2)]
        hi = (sb // 65536) * 65536; lo = sb - hi
        cur = {}
        for n, b in enumerate(bases):
            if hi:
                if curbase.get(n) != (b, hi):
                    a.valu('v_add_u32', v(vCUR+n), hex(hi), v(b)); curbase[n] = (b, hi)
                cur[b] = vCUR + n
            else: cur[b] = b
        ops = []
        for i, (b, off, dd) in enumerate(lst):
            r0 = WF + buf*16 + i*4
            ops.append(lambda r0=r0, b=b, off=off: a.ds_read('ds_read_b64_tr_b16', v(r0, 2), v(cur[b]), offset=lo + off))
            ops.append(lambda r0=r0, b=b, off=off, dd=dd: a.ds_read('ds_read_b64_tr_b16', v(r0+2, 2), v(cur[b]), offset=lo + off + dd))
        return ops
    aQ2 = vFLAG
    def mfma_ops(hs):
        if hs < 0: return []
        buf = hs & 1; L = []
        if hs < 8:
            for h in range(2):
                for tb in range(2): L.append((v(ACCA + tb*4, 4), wf(buf, 2*h), xf(tb, 2*hs+h), 'kv'))
                for tb in range(2): L.append((v(ACCA + 8 + tb*4, 4), xf(tb, 2*hs+h), wf(buf, 2*h+1), 'kv'))
        elif hs >= 24:
            for h in range(2):
                for e in range(2): L.append((v(ACCQ + e*4, 4), wf(buf, 2*h+e), xf(0, 2*(hs-24)+h), 'q'))
        else:
            hf = (hs - 8) >> 3; k0 = 2 * ((hs - 8) & 7); A0 = ACCB if hf else ACCA
            for h in range(2):
                for e in range(2):
                    for tb in range(2): L.append((v(A0 + (e*2+tb)*4, 4), wf(buf, 2*h+e), xf(tb, k0+h), 'f'))
        ops = []
        for d, A, B, ph in L:
            def op(d=d, A=A, B=B, ph=ph):
                c = d if ((d, ph) in started or ph == 'f') else 0
                started.add((d, ph)); a.mfma(d, A, B, c)
            ops.append(op)
        return ops
    def flag_store(setup, ts=t0, tv=(vT0, vT1)):
        setup()
        a.valu('v_mov_b32', v(tv[0]), 0); a.valu('v_mov_b32', v(tv[1]), s(sTAG))
        a.salu('s_mov_b64', 'exec', 1)
        a.bstore('buffer_store_dword', v(tv[1]), v(tv[0]), s(S_WS, 4), s(ts), flags=COH)
        a.salu('s_mov_b64', 'exec', -1)
    def tagcheck(regs_, label, reload, tv=(vT0, vT1)):
        a.salu('s_mov_b32', s(sSPIN), 0)
        a.label(f"L_{label}_chk")
        a.valu('v_xor_b32', v(tv[0]), s(sTAG), v(regs_[0]))
        for r_ in regs_[1:]:
            a.valu('v_xor_b32', v(tv[1]), s(sTAG), v(r_)); a.valu('v_or_b32', v(tv[0]), v(tv[0]), v(tv[1]))
        a.valu('v_cmp_ne_u32', 'vcc', 0, v(tv[0]))
        a.nop(1); a.scmp('s_cmp_eq_u64', 'vcc', 0); a.other(f"s_cbranch_scc1 L_{label}_ok")
        a.salu('s_add_u32', s(sSPIN), s(sSPIN), 1); a.scmp('s_cmp_ge_u32', s(sSPIN), 200000); a.other(f"s_cbranch_scc1 L_{label}_ok")
        a.other("s_sleep 2")
        reload(); a.waitcnt(vm=0)
        a.other(f"s_branch L_{label}_chk")
        a.label(f"L_{label}_ok")
    def head_s(dst):
        a.salu('s_lshl_b32', s(dst), s(sC), 2); a.salu('s_add_u32', s(dst), s(dst), s(sCQ))
    st = {'j': 0, 'nbar': 0, 'hs_done': -1, 'marks': {}}
    bg = Rec(a)
    def after_barrier(name):
        def mark(): st['marks'][name] = st['nbar']
        bg.block(mark)
        bg.gate(lambda: st['nbar'] > st['marks'][name])
    def mark_j(name): bg.block(lambda: st['marks'].__setitem__(name, st['nbar']))
    def wait_j(name, d): bg.gate(lambda: st['nbar'] >= st['marks'][name] + d or st['j'] >= NST)
    b = bg
    def red4(r, op, M, T, mid):
        r.valu('v_permlane32_swap_b32', v(M), v(M+1)); r.valu('v_permlane32_swap_b32', v(M+2), v(M+3))
        r.valu(op, v(M), v(M), v(M+1)); r.valu(op, v(M+2), v(M+2), v(M+3))
        r.valu('v_mov_b32', v(T), 0)
        r.valu('v_permlane16_swap_b32', v(M), v(M+2))
        r.valu(op, v(M), v(M), v(M+2))
        mid(M)
        r.valu('v_mov_b32', v(M+2), v(M)); r.valu('v_mov_b32', v(T), 0)
        r.valu('v_permlane16_swap_b32', v(M), v(M+2))
        r.valu('v_mov_b32', v(M+1), v(M)); r.valu('v_mov_b32', v(M+3), v(M+2)); r.valu('v_mov_b32', v(T), 0)
        r.valu('v_permlane32_swap_b32', v(M), v(M+1)); r.valu('v_permlane32_swap_b32', v(M+2), v(M+3))
    def softmax2(r, QBr, Pp, M, E, EE, TT, WPs=None):
        WPs = WPs or (vWP, vWP)
        for tb in range(2): r.mfma(v(Pp+4*tb, 4), v(WPs[tb], 2), v(QBr+2*tb, 2), 0, op='v_mfma_f32_16x16x16_bf16')
        r.valu('v_mov_b32', v(vU1), hex(L2E))
        for i in range(3): r.valu('v_mov_b32', v(E+i), 0)
        rbf_pairs(r, [Pp+i for i in range(8)], [E+i for i in range(4)])
        for tb in range(2):
            p = Pp + 4*tb
            r.valu('v_max3_f32', v(M+tb), v(p), v(p+1), v(p+2)); r.valu('v_max3_f32', v(M+2+tb), '-'+v(p), '-'+v(p+1), '-'+v(p+2))
            r.valu('v_max_f32', v(M+tb), v(M+tb), v(p+3)); r.valu('v_max_f32_e64', v(M+2+tb), v(M+2+tb), '-'+v(p+3))
        red4(r, 'v_max_f32', M, TT, lambda x: r.valu('v_mul_f32', v(x), hex(L2E), v(x)))
        for i in range(8): r.valu('v_fma_f32', v(E+i), v(Pp+i), v(vU1), '-'+v(M+i//4))
        for i in range(8): r.valu('v_fma_f32', v(EE+i), '-'+v(Pp+i), v(vU1), '-'+v(M+2+i//4))
        for i in range(8): r.valu('v_exp_f32', v(E+i), v(E+i))
        for i in range(8): r.valu('v_exp_f32', v(EE+i), v(EE+i))
        for tb in range(2):
            for k, e in enumerate((E, EE)):
                d = M + 2*k + tb
                r.valu('v_add_f32', v(d), v(e+4*tb), v(e+4*tb+1)); r.valu('v_add_f32', v(TT), v(e+4*tb+2), v(e+4*tb+3)); r.valu('v_add_f32', v(d), v(d), v(TT))
        red4(r, 'v_add_f32', M, TT, lambda x: r.valu('v_rcp_f32', v(x), v(x)))
        for i in range(8): r.valu('v_mul_f32', v(E+i), v(E+i), v(M+i//4))
        for i in range(8): r.valu('v_mul_f32', v(EE+i), v(EE+i), v(M+2+i//4))
        for tb in range(2):
            o = Pp + 4*tb
            r.valu('v_cvt_pk_bf16_f32', v(o), v(E+4*tb), v(E+4*tb+1)); r.valu('v_cvt_pk_bf16_f32', v(o+1), v(E+4*tb+2), v(E+4*tb+3))
            r.valu('v_cvt_pk_bf16_f32', v(o+2), v(EE+4*tb), v(EE+4*tb+1)); r.valu('v_cvt_pk_bf16_f32', v(o+3), v(EE+4*tb+2), v(EE+4*tb+3))
    KA = TMP; M = TMP + 4; E = TMP + 8; EE = TMP + 16; P = ACCB; VB = ACCB + 8; ONE = ACCB + 12
    KVP = E; ZP = EE
    def kv_convert():
        for tb in range(2):
            for h in range(2): a.valu('v_cvt_pk_bf16_f32', v(KA+2*tb+h), v(ACCA+tb*4+2*h), v(ACCA+tb*4+2*h+1))
        for tb in range(2):
            for h in range(2): a.valu('v_cvt_pk_bf16_f32', v(VB+2*tb+h), v(ACCA+8+tb*4+2*h), v(ACCA+8+tb*4+2*h+1))
        st['kvconv'] = True
    b.gate(lambda: st.get('kvconv'))
    softmax2(b, KA, P, M, E, EE, KA)
    for i in range(4): b.valu('v_mov_b32', v(ONE+i), '0x3f803f80')
    for sg, dst in enumerate((E, EE)):
        for tb in range(2): b.mfma(v(dst+4*tb, 4), v(P+4*tb+2*sg, 2), v(vID, 2), 0, op='v_mfma_f32_16x16x16_bf16')
    b.valu('v_lshlrev_b32', v(vU0), 4, v(vL)); b.salu('s_lshl_b32', s(u0), s(sCQ), 12); b.salu('s_add_u32', s(u0), s(u0), hex(MISC))
    b.valu('v_add_u32', v(vT2), s(u0), v(vU0))
    PHP = KA; PHM = M
    for i in range(4): b.valu('v_cvt_pk_bf16_f32', v(PHP+i), v(E+2*i), v(E+2*i+1))
    for i in range(4): b.valu('v_cvt_pk_bf16_f32', v(PHM+i), v(EE+2*i), v(EE+2*i+1))
    b.mfma(v(KVP, 4), v(PHP, 4), v(VB, 4), 0); b.mfma(v(KVP+4, 4), v(PHM, 4), v(VB, 4), 0)
    b.mfma(v(ZP, 4), v(PHP, 4), v(ONE, 4), 0); b.mfma(v(ZP+4, 4), v(PHM, 4), v(ONE, 4), 0)
    for i in range(3): b.valu('v_mov_b32', v(P+4*i+3), s(sTAG))
    def park():
        a.scmp('s_cmp_eq_u32', s(sTH), 0); a.other("s_cbranch_scc1 L_nopark")
        a.ds_write('ds_write_b128', v(vT2), v(KVP, 4)); a.ds_write('ds_write_b128', v(vT2), v(KVP+4, 4), offset=1024)
        a.ds_write('ds_write_b128', v(vT2), v(ZP, 4), offset=2048); a.ds_write('ds_write_b128', v(vT2), v(ZP+4, 4), offset=3072)
        a.label("L_nopark")
    b.block(park)
    after_barrier('park')
    def kv_publish():
        a.scmp('s_cmp_lg_u32', s(sTH), 0); a.other("s_cbranch_scc1 L_nopub")
        Q = TMP; G = ACCB
        head_s(u0); a.salu('s_lshl_b32', s(u0), s(u0), 5); a.salu('s_add_u32', s(u0), s(u0), s(sR)); a.salu('s_mul_i32', s(u0), s(u0), 3456)
        a.salu('s_add_u32', s(u0), s(u0), hex(PART))
        for k, src in enumerate((KVP, ZP)):
            a.ds_read('ds_read_b128', v(Q, 4), v(vT2), offset=2048*k); a.ds_read('ds_read_b128', v(Q+4, 4), v(vT2), offset=2048*k+1024)
            if k == 1: a.valu('v_and_b32', v(vU0), 48, v(vL)); a.valu('v_add_u32', v(vU0), 1024, v(vU0))
            a.waitcnt(lgkm=0)
            for i in range(8): a.valu('v_add_f32', v(G + 4*(i//3) + i%3), v(src+i), v(Q+i))
            if k == 1:
                a.salu('s_mov_b32', 'exec_lo', '0x00010001'); a.salu('s_mov_b32', 'exec_hi', '0x00010001')
            for i in range(3): a.bstore('buffer_store_dwordx4', v(G+4*i, 4), v(vU0), s(S_WS, 4), s(u0), offset=1152*i, flags=COH)
            if k == 1: a.salu('s_mov_b64', 'exec', -1)
            a.nop(2)
        a.label("L_nopub")
        vm.add('pst', 6, cls=0)
        st['pub'] = True
        stamp()
    b.block(kv_publish); mark_j('pub')
    vWP2 = vCUR + 2
    def wp2():
        a.salu('s_xor_b32', s(u1), s(sCQ), 1); a.salu('s_lshl_b32', s(u0), s(sC), 2); a.salu('s_add_u32', s(u0), s(u0), s(u1)); a.salu('s_lshl_b32', s(u0), s(u0), 9)
        a.valu('v_lshrrev_b32', v(vU0), 4, v(vL)); a.valu('v_lshlrev_b32', v(vU0), 7, v(vU0)); a.valu('v_and_b32', v(vU1), 15, v(vL)); a.valu('v_lshl_add_u32', v(vU0), v(vU1), 1, v(vU0))
        for k, d in enumerate((vWP2, vWP2+2, vWP2+1, vWP2+3)):
            a.bload('buffer_load_ushort', v(d), v(vU0), s(S_WP, 4), s(u0), offset=32*k)
        vm.add('wp2', 4)
        a.valu('v_xor_b32', v(aQ2), 32, v(aQ))
    b.block(wp2)
    QB = TMP; PQ = ACCQ
    def q_softmax(r):
        for tb in range(2):
            for h in range(2): r.valu('v_cvt_pk_bf16_f32', v(QB+2*tb+h), v(ACCQ+tb*4+2*h), v(ACCQ+tb*4+2*h+1))
        r.valu('v_lshlrev_b32', v(vU0), 4, v(vL)); r.salu('s_add_u32', s(u0), s(sWK), hex(MISC + 16384)); r.valu('v_add_u32', v(vT2), s(u0), v(vU0))
        softmax2(r, QB, PQ, M, E, EE, QB)
    def q_exchange():
        a.salu('s_and_b32', s(u0), s(sCQ), 1); a.scmp('s_cmp_eq_u32', s(u0), 0); a.other("s_cbranch_scc1 L_xw_e")
        a.ds_write('ds_write_b128', v(vT2), v(PQ, 4)); a.other("s_branch L_xw_d")
        a.label("L_xw_e"); a.ds_write('ds_write_b128', v(vT2), v(PQ+4, 4)); a.label("L_xw_d")
        a.valu('v_xor_b32', v(vT2), 1024, v(vT2))
        a.waitcnt(lgkm=0); a.barrier()
        a.salu('s_and_b32', s(u0), s(sCQ), 1); a.scmp('s_cmp_eq_u32', s(u0), 0); a.other("s_cbranch_scc1 L_xr_e")
        a.ds_read('ds_read_b128', v(PQ, 4), v(vT2)); a.other("s_branch L_xr_d")
        a.label("L_xr_e"); a.ds_read('ds_read_b128', v(PQ+4, 4), v(vT2)); a.label("L_xr_d")
    RD = TMP; vRO = aK
    def red_loads():
        for pg in range(2):
            for i in range(3):
                a.bload('buffer_load_dwordx4', v(RD + (pg*3+i)*4, 4), v(vRO + pg), s(S_WS, 4), s(sRED), offset=1152*i, flags=COH)
    def red_issue():
        a.salu('s_mov_b32', s(sRED), -1)
        a.scmp('s_cmp_eq_u32', s(sTH), 0); a.other("s_cbranch_scc1 L_nored1")
        a.salu('s_lshr_b32', s(u1), s(sR), 1)
        a.salu('s_xor_b32', s(u0), s(sR), s(sCQ)); a.scmp('s_cmp_eq_u32', s(u0), 1); a.salu('s_cselect_b32', s(u1), 16, s(u1))
        a.salu('s_cselect_b32', s(u0), 0, s(u0)); a.salu('s_and_b32', s(u0), s(u0), 1); a.scmp('s_cmp_lg_u32', s(u0), 0); a.other("s_cbranch_scc1 L_nored1")
        a.salu('s_lshl_b32', s(sSL), s(u1), 6)
        head_s(u0); a.salu('s_mul_i32', s(u0), s(u0), 32*3456); a.salu('s_add_u32', s(u0), s(u0), s(sSL)); a.salu('s_add_u32', s(sRED), s(u0), hex(PART))
        a.valu('v_lshrrev_b32', v(vU0), 2, v(vL)); a.valu('v_mul_u32_u24', v(vU0), 3456, v(vU0)); a.valu('v_and_b32', v(vU1), 3, v(vL))
        a.valu('v_lshl_add_u32', v(vRO), v(vU1), 4, v(vU0)); a.valu('v_add_u32', v(vRO+1), hex(16*3456), v(vRO))
        red_loads()
        a.label("L_nored1")
        vm.mark = len(vm.q[1])
    def red_finish():
        a.scmp('s_cmp_eq_u32', s(sRED), -1); a.other("s_cbranch_scc1 L_nored2")
        a.waitcnt(vm=len(vm.q[1]) - vm.mark)
        tagcheck([RD + 4*k + 3 for k in range(6)], "red", red_loads, tv=(vU0, vU1))
        V = [RD + 4*(i//3) + i%3 for i in range(8)]; T = [RD + 12 + i for i in range(8)]
        for x in V: a.valu('v_add_f32', v(x), v(x), v(x+12))
        for sh in (8, 4):
            for x in V: a.valu('v_add_f32_dpp', v(x), v(x), v(x), mod=f"row_ror:{sh} " + DPPM)
        allred(a, 'v_add_f32', V, T)
        G = RD + 12
        for i in range(3): a.valu('v_cvt_pk_bf16_f32', v(G+i), v(V[2*i]), v(V[2*i+1]))
        a.valu('v_cvt_pk_bf16_f32', v(G+4), v(V[6]), v(V[7]))
        a.valu('v_mov_b32', v(G+3), s(sTAG)); a.valu('v_mov_b32', v(G+7), s(sTAG))
        head_s(u0); a.salu('s_mul_i32', s(u0), s(u0), 2304); a.salu('s_add_u32', s(u0), s(u0), s(sSL)); a.salu('s_add_u32', s(u0), s(u0), hex(RED))
        a.valu('v_lshlrev_b32', v(vU0), 4, v(vL))
        a.salu('s_mov_b64', 'exec', 15)
        a.bstore('buffer_store_dwordx4', v(G, 4), v(vU0), s(S_WS, 4), s(u0), flags=COH)
        a.bstore('buffer_store_dwordx4', v(G+4, 4), v(vU0), s(S_WS, 4), s(u0), offset=1152, flags=COH)
        a.salu('s_mov_b64', 'exec', -1)
        a.nop(2)
        a.label("L_nored2")
        stamp()
    wait_j('pub', opt('rd1', 2)); b.block(red_issue); mark_j('red')
    def b1_init(hf):
        A0 = ACCB if hf else ACCA
        for e in range(2):
            for tb in range(2):
                for h in range(2):
                    d = A0 + (e*2+tb)*4 + 2*h
                    a.valu('v_lshlrev_b32', v(d), 16, v(vB1+4*hf+2*e+h)); a.valu('v_and_b32', v(d+1), '0xffff0000', v(vB1+4*hf+2*e+h))
    def h_epilogue(r, hf, us):
        A0 = ACCB if hf else ACCA
        r.valu('v_lshlrev_b32', v(vU0), 4, v(vL)); r.salu('s_lshl_b32', s(us[0]), s(sPAR), 10); r.valu('v_add_u32', v(vU0), s(us[0]), v(vU0)); r.valu('v_xor_b32', v(vU1), 1024, v(vU0))
        r.salu('s_mul_i32', s(us[0]), s(sR), 72); r.salu('s_add_u32', s(us[0]), s(us[0]), s(sK0)); r.salu('s_add_u32', s(us[0]), s(us[0]), s(sCQ))
        r.salu('s_lshl_b32', s(us[0]), s(us[0]), 12); r.salu('s_lshl_b32', s(us[1]), s(sTH), 11); r.salu('s_add_u32', s(us[0]), s(us[0]), s(us[1]))
        if hf: r.salu('s_add_u32', s(us[0]), s(us[0]), 4*4096)
        for tb in range(2):
            vals = [A0 + (e*2+tb)*4 + k for e in range(2) for k in range(4)]
            for x in vals: r.valu('v_max_f32', v(x), 0, v(x))
            for x in vals: r.valu('v_mul_f32', v(x), v(x), v(x))
            O = vals[0]
            r.valu('v_cvt_pk_bf16_f32', v(O), v(vals[0]), v(vals[1])); r.valu('v_cvt_pk_bf16_f32', v(O+1), v(vals[2]), v(vals[3]))
            r.valu('v_cvt_pk_bf16_f32', v(O+2), v(vals[4]), v(vals[5])); r.valu('v_cvt_pk_bf16_f32', v(O+3), v(vals[6]), v(vals[7]))
            def stv(O=O, tb=tb):
                a.bstore('buffer_store_dwordx4', v(O, 4), v(vU1 if tb else vU0), s(S_WS, 4), s(us[0]), flags=COH); vm.add(('hst', hf))
            if r is a: stv()
            else: r.block(stv)
    def hf_off(base, ts=(t0, t1)):
        def f():
            a.salu('s_lshl_b32', s(ts[0]), s(sR), 8); a.salu('s_lshl_b32', s(ts[1]), s(sW), 5); a.salu('s_add_u32', s(ts[0]), s(ts[0]), s(ts[1])); a.salu('s_add_u32', s(ts[0]), s(ts[0]), hex(base))
        return f
    def hf_own(base, ts=(t0, t1)):
        def f():
            a.salu('s_lshl_b32', s(ts[0]), s(sR), 8); a.salu('s_lshl_b32', s(ts[1]), s(sC), 5); a.salu('s_add_u32', s(ts[0]), s(ts[0]), s(ts[1]))
            a.salu('s_lshl_b32', s(ts[1]), s(sW), 2); a.salu('s_add_u32', s(ts[0]), s(ts[0]), s(ts[1])); a.salu('s_add_u32', s(ts[0]), s(ts[0]), hex(base))
        return f
    def h_flag(hf):
        def f():
            vwait(('hst', hf)); flag_store(hf_own(F_HB if hf else F_HA, (u0, u1)), ts=u0, tv=(vU0, vU1)); vm.add('fl')
        return f
    b.gate(lambda: st['hs_done'] >= 15)
    h_epilogue(b, 0, (u0, u1)); mark_j('ha')
    wait_j('red', opt('rd2', 2)); b.block(red_finish); mark_j('redf')
    wait_j('ha', 3); b.block(h_flag(0))
    b.gate(lambda: st['hs_done'] >= 23)
    h_epilogue(b, 1, (u0, u1)); mark_j('hb')
    vL4, vL8, vZO, vPOLL = aF, aF + 1, aK, aV
    KVD = ACCA
    def kv_loads():
        a.salu('s_lshl_b32', s(t0), s(sC), 2); a.salu('s_and_b32', s(t1), s(sCQ), 2); a.salu('s_add_u32', s(t0), s(t0), s(t1)); a.salu('s_mul_i32', s(t0), s(t0), 2304)
        a.salu('s_add_u32', s(t0), s(t0), hex(RED))
        for e in range(2):
            for k, vo in enumerate((vL4, vZO)):
                for i in range(2):
                    a.bload('buffer_load_dwordx4', v(KVD + 16*e + 8*k + 4*i, 4), v(vo), s(S_WS, 4), s(t0), offset=2304*e + 1152*i, flags=COH)
    def poll(base):
        def f():
            hf_off(base)(); a.bload('buffer_load_dword', v(vPOLL), v(vL8), s(S_WS, 4), s(t0), flags=COH)
        return f
    b.valu('v_lshlrev_b32', v(vL4), 4, v(vL)); b.valu('v_and_b32', v(vZO), 48, v(vL)); b.valu('v_add_u32', v(vZO), 1024, v(vZO))
    b.valu('v_and_b32', v(vL8), 7, v(vL)); b.valu('v_lshlrev_b32', v(vL8), 2, v(vL8))
    def pha(): poll(F_HA)(); vm.add('ha')
    b.gate(lambda: st['hs_done'] >= 27)
    b.block(pha)
    def bg_take(n):
        k = 0
        while k < n and bg.items:
            it = bg.items[0]
            if isinstance(it, tuple):
                if not it[1](): return
                bg.items.pop(0); continue
            bg.items.pop(0); it(); k += 1
    def interleave(ms, fs, lead=2, per=2, done=None):
        fs = list(fs)
        for _ in range(min(lead, len(fs))): fs.pop(0)()
        for m in ms:
            m()
            for _ in range(min(per, len(fs))): fs.pop(0)()
            bg_take(BGRATE)
        for f in fs: f()
        if done is not None: st['hs_done'] = done
    for j in range(NST):
        st['j'] = j
        vwait(('st', j), lgkm=0); a.barrier(); st['nbar'] += 1
        if j >= 3: stamp('it')
        if j <= 4: stamp('e')
        d = []
        if j == 0: d = dma_ops(3) + dma_ops(4)
        elif j in (1, 2): d = dma_ops(j + 4)
        elif j >= 4: d = dma_ops(j + 3)
        if j == 1:
            a.valu('v_lshrrev_b32', v(vT0), 2, v(vL)); a.valu('v_and_b32', v(vT1), 4, v(vT0)); a.valu('v_and_b32', v(vT2), 7, v(vL))
            a.valu('v_xor_b32', v(vT1), v(vT1), v(vT2)); a.valu('v_lshlrev_b32', v(vT1), 4, v(vT1)); a.valu('v_lshrrev_b32', v(vT2), 3, v(vL))
            a.valu('v_lshl_add_u32', v(vT1), v(vT2), 10, v(vT1)); a.salu('s_lshl_b32', s(t0), s(sC), 7); a.valu('v_add_u32', v(vDW), s(t0), v(vT1))
        if j == opt('w2j', 3):
            def tw(k, sd):
                def f(): a.bload('buffer_load_dword', 'v0', v(vCUR+4+k), s(sd, 4), 0); vm.add('touch')
                return f
            d = d + [tw(0, S_WO), tw(1, S_W2)]
        units = [2*j, 2*j+1] if j < 12 else [24 + 4*(j-12) + i for i in range(4)]
        nd = (len(d) + len(units) - 1) // len(units)
        for n_, u in enumerate(units):
            if n_: a.waitcnt(lgkm=0)
            r = read_ops(u)
            if u == 9:
                kv_convert(); vwait('b1'); b1_init(0)
            if u == 17:
                assert st.get('pub'); b1_init(1)
            dd = d[n_*nd:(n_+1)*nd]
            if u == 0: interleave([], dd + r)
            else: interleave(mfma_ops(u - 1), r + dd, done=u - 1, per=2 if u <= 24 else 3)
            if u == 8: stamp()
    st['j'] = NST
    a.waitcnt(lgkm=0); a.barrier(); st['nbar'] += 1
    interleave(mfma_ops(31), dma_ops(17), lead=0, per=1, done=31)
    st['nbar'] += 100
    bg_take(10000)
    assert not bg.items
    stamp()
    if 'noprio' not in EXP: a.other('s_setprio 3')
    AF = 128; Z0 = 192
    QB2, M2, E2_, EE2, PQ2, KVD2 = Z0, Z0 + 4, Z0 + 8, Z0 + 16, Z0 + 24, Z0 + 32
    afslot = lambda p: p if p < 8 else 0
    vA2 = vF
    A2 = 32; WF2 = 96; aW = vB1; aH = vB1 + 2
    a.salu('s_mul_i32', s(t2), s(sR), 294912)
    a.valu('v_and_b32', v(vT0), 15, v(vL)); a.valu('v_lshrrev_b32', v(vT1), 5, v(vL)); a.valu('v_lshl_add_u32', v(vT0), v(vT1), 4, v(vT0))
    a.valu('v_and_b32', v(vT1), 16, v(vL)); a.valu('v_lshlrev_b32', v(vT1), 6, v(vT1)); a.valu('v_lshl_add_u32', v(vT0), v(vT0), 4, v(vT1))
    a.valu('v_add_u32', v(vA2), s(t2), v(vT0))
    for tb in range(2):
        for h in range(2): a.valu('v_cvt_pk_bf16_f32', v(QB2+2*tb+h), v(ACCQ+tb*4+2*h), v(ACCQ+tb*4+2*h+1))
    def ldA_ops(p):
        ops = []
        for tg in range(2):
            for m in range(2):
                def op(tg=tg, m=m):
                    if p < 7: a.salu('s_lshl_b32', s(t1), s(KS+p), 12)
                    else:
                        a.salu('s_lshl_b32', s(t1), s(sW), 13); a.salu('s_add_u32', s(t1), s(t1), (56 + p - 7) * 4096)
                    if 'fakeA' in EXP:
                        a.salu('s_and_b32', s(t1), s(t1), 0x3ffff)
                        a.bload('buffer_load_dwordx4', v(AF + (afslot(p)*4+tg*2+m)*4, 4), v(vL4), s(S_W2, 4), s(t1), offset=tg*2048 + m*1024); vm.add(('A', p)); return
                    a.bload('buffer_load_dwordx4', v(AF + (afslot(p)*4+tg*2+m)*4, 4), v(vA2), s(S_WS, 4), s(t1), offset=tg*2048 + m*512, flags=('' if 'plainA' in EXP else COH)); vm.add(('A', p))
                ops.append(op)
        return ops
    def kv_loads2():
        for e in range(2):
            head_s(u0)
            if e: a.salu('s_xor_b32', s(u0), s(u0), 1)
            a.salu('s_mul_i32', s(u0), s(u0), 2304); a.salu('s_add_u32', s(u0), s(u0), hex(RED))
            for k, vo in enumerate((vL4, vZO)):
                for i in range(2):
                    a.bload('buffer_load_dwordx4', v(KVD2 + 16*e + 8*k + 4*i, 4), v(vo), s(S_WS, 4), s(u0), offset=1152*i, flags=COH)
    a.valu('v_lshl_or_b32', v(vWP2), v(vWP2+2), 16, v(vWP2)); a.valu('v_lshl_or_b32', v(vWP2+1), v(vWP2+3), 16, v(vWP2+1))
    vwait('ha'); tagcheck([vPOLL], "ha", poll(F_HA))
    for op in ldA_ops(0): op()
    b.valu('v_and_b32', v(vT1), 15, v(vL)); b.valu('v_lshrrev_b32', v(vT2), 2, v(vT1)); b.valu('v_lshrrev_b32', v(vT0), 5, v(vL)); b.valu('v_lshl_add_u32', v(vCUR), v(vT0), 2, v(vT2))
    b.valu('v_and_b32', v(vT2), 2, v(vT2)); b.valu('v_lshrrev_b32', v(vT0), 4, v(vL)); b.valu('v_and_b32', v(vT0), 1, v(vT0)); b.valu('v_or_b32', v(vT2), v(vT2), v(vT0))
    b.valu('v_and_b32', v(vT1), 3, v(vT1)); b.valu('v_lshlrev_b32', v(vT1), 3, v(vT1)); b.valu('v_lshl_add_u32', v(vT1), v(vT2), 5, v(vT1))
    b.valu('v_lshl_add_u32', v(vT1), v(vCUR), 7, v(vT1)); b.salu('s_lshl_b32', s(u0), s(sWK), 2); b.valu('v_add_u32', v(aW), s(u0), v(vT1))
    b.valu('v_xor_b32', v(aW+1), 64, v(aW))
    for nb in range(2): b.valu('v_add_u32', v(aH+nb), '0x10000', v(aW+nb))
    NSETUP = len(b.items)
    softmax2(b, QB2, PQ2, M2, E2_, EE2, QB2, WPs=(vWP, vWP2))
    def kvchk():
        vwait('kvd'); tagcheck([KVD2 + 4*k + 3 for k in range(8)], "kvd", kv_loads2, tv=(vU0, vU1)); stamp()
    b.block(kvchk)
    for k in range(4): b.valu('v_mov_b32', v(KVD2 + 8*k + 3), v(KVD2 + 8*k + 4))
    b.salu('s_mul_i32', s(u0), s(sR), 72); b.salu('s_lshl_b32', s(u1), s(sC), 1); b.salu('s_add_u32', s(u0), s(u0), s(u1))
    for e in range(2):
        b.mfma(v(E2_ + 8*e, 4), v(KVD2 + 16*e, 4), v(PQ2 + 4*e, 4), 0); b.mfma(v(E2_ + 8*e + 4, 4), v(KVD2 + 16*e + 8, 4), v(PQ2 + 4*e, 4), 0)
    b.salu('s_lshr_b32', s(u1), s(sCQ), 1); b.salu('s_add_u32', s(u0), s(u0), s(u1)); b.salu('s_add_u32', s(u0), s(u0), 56); b.salu('s_lshl_b32', s(u0), s(u0), 12)
    b.salu('s_lshl_b32', s(u1), s(sTH), 11); b.salu('s_add_u32', s(u0), s(u0), s(u1))
    b.salu('s_lshl_b32', s(u1), s(sPAR), 10); b.salu('s_add_u32', s(u0), s(u0), s(u1))
    for e in range(2):
        KV = E2_ + 8*e; Z = KV + 4; T = QB2; O = M2 + 2*e
        rbf_pairs(b, [KV+i for i in range(4)], [T, T+1])
        b.valu('v_cvt_pk_bf16_f32', v(Z), v(Z), v(Z)); b.valu('v_lshlrev_b32', v(Z), 16, v(Z))
        b.valu('v_add_f32', v(Z), '0x358637bd', v(Z))
        b.valu('v_cvt_pk_bf16_f32', v(Z), v(Z), v(Z)); b.valu('v_lshlrev_b32', v(Z), 16, v(Z))
        b.valu('v_rcp_f32', v(Z+1), v(Z))
        b.valu('v_fma_f32', v(Z+2), '-' + v(Z), v(Z+1), 1.0); b.valu('v_fma_f32', v(Z+1), v(Z+2), v(Z+1), v(Z+1))
        for i in range(4): b.valu('v_mul_f32', v(KV+i), v(KV+i), v(Z+1))
        b.valu('v_cvt_pk_bf16_f32', v(O), v(KV), v(KV+1)); b.valu('v_cvt_pk_bf16_f32', v(O+1), v(KV+2), v(KV+3))
    def ost():
        a.scmp('s_cmp_eq_u32', s(sPAR), 0); a.other("s_cbranch_scc1 L_nosw")
        a.valu('v_swap_b32', v(M2), v(M2+2), extra_w=[v(M2+2)], rmw=True); a.valu('v_swap_b32', v(M2+1), v(M2+3), extra_w=[v(M2+3)], rmw=True)
        a.label("L_nosw")
        a.bstore('buffer_store_dwordx4', v(M2, 4), v(vL4), s(S_WS, 4), s(u0), flags=COH); vm.add('ost')
    b.block(ost)
    def odone(): st['odone'] = True; stamp()
    b.block(odone)
    def hbf():
        vwait(('hst', 1)); flag_store(hf_own(F_HB), tv=(vCUR+4, vCUR+5)); vm.add('fl')
    def kvl(): kv_loads2(); vm.add('kvd', 8)
    def phb(): poll(F_HB)(); vm.add('hb')
    hbf(); kvl()
    pre = ldA_ops(1) + ldA_ops(2)
    QE = opt('qe', 16)
    bg_take(NSETUP)
    for x in pre:
        bg_take(QE); x()
    srd(a, S_B2, 20, 1024); srd(a, S_OUT, 22, 2097152)
    stamp()
    def reads2(p):
        sb = REG(14 + p); hi = sb >= 65536; lo = sb - (65536 if hi else 0)
        ops = []
        for m in range(2):
            for nb in range(2):
                r0 = WF2 + (p & 1) * 16 + (m*2+nb) * 4; bb = (aH if hi else aW) + nb
                ops.append(lambda r0=r0, bb=bb, m=m: a.ds_read('ds_read_b64_tr_b16', v(r0, 2), v(bb), offset=lo + m*1024))
                ops.append(lambda r0=r0, bb=bb, m=m: a.ds_read('ds_read_b64_tr_b16', v(r0+2, 2), v(bb), offset=lo + m*1024 + 2048))
        return ops
    def mfmas2(p):
        ops = []
        for m in range(2):
            for nb in range(2):
                for tg in range(2):
                    d = v(A2 + (nb*2+tg)*16, 16)
                    ops.append(lambda d=d, nb=nb, tg=tg, m=m: a.mfma(d, v(WF2 + (p & 1)*16 + (m*2+nb)*4, 4), v(AF + (afslot(p)*4+tg*2+m)*4, 4), d if (p or m) else 0, op='v_mfma_f32_32x32x16_bf16'))
        return ops
    vXX, vBB, vOO = AF + 16, AF + 20, vAO
    def xb():
        a.valu('v_lshrrev_b32', v(vT0), 3, v(vL)); a.valu('v_lshlrev_b32', v(vT1), 2, v(vL8))
        a.salu('s_lshl_b32', s(t0), s(sR), 6); a.salu('s_lshl_b32', s(t1), s(sW), 3); a.salu('s_add_u32', s(t0), s(t0), s(t1))
        a.valu('v_add_u32', v(vT0), s(t0), v(vT0)); a.valu('v_lshl_add_u32', v(vOO), v(vT0), 10, v(vT1))
        a.salu('s_lshl_b32', s(t3), s(sC), 7)
        a.bload('buffer_load_dwordx4', v(vXX, 4), v(vOO), s(S_X, 4), s(t3)); a.bload('buffer_load_dwordx4', v(vBB, 4), v(vT1), s(S_B2, 4), s(t3)); vm.add('xb', 2)
    def off_(): vwait('ost'); flag_store(hf_own(F_OF)); vm.add('fl')
    def pof(): poll(F_OF)(); vm.add('of')
    HBP = opt('hbp', 3); OFP = opt('ofp', 6); DRP = opt('drp', 2)
    pend = []; late = []
    for p in range(10):
        stamp('p2')
        fill = []
        if p < 9:
            vwait(('st', 14 + p), lgkm=0)
            fill = reads2(p)
        else: a.waitcnt(lgkm=0)
        vs = []
        if p == DRP:
            bg_take(10000); phb()
        if p == HBP:
            vwait('hb')
            flag_store(hf_own(F_OF)); vm.add('fl')
            if 'noprio' not in EXP: a.other('s_setprio 0')
            if 'bar2' in EXP: a.barrier()
            tagcheck([vPOLL], "hb", poll(F_HB))
            pend += ldA_ops(3) + ldA_ops(4) + ldA_ops(5) + ldA_ops(6)
            if HBP >= 3:
                for f in pend[:4]: f()
                pend = pend[4:]
        if p == OFP - 2: vs.append(pof)
        if p == OFP:
            vwait('of'); tagcheck([vPOLL], "of", poll(F_OF))
            pend += ldA_ops(7) + ldA_ops(8)
        if p == 4: vs.append(xb)
        n = opt('pace', 8)
        vs += pend[:n]; pend = pend[n:]
        if 1 <= p and p + 3 <= 8: vs += dma_ops(14 + p + 3)
        if p >= 1:
            for f in fill[:4]: f()
            fill = fill[4:]
            vwait(('A', p-1))
            interleave(mfmas2(p - 1), fill + vs, lead=0, per=2)
        else:
            for f in fill + vs: f()
    assert not pend and not late and not bg.items
    stamp(); stamp('p2')
    a.valu('v_lshrrev_b32', v(vT0), 5, v(vL)); a.valu('v_and_b32', v(vT1), 15, v(vL)); a.valu('v_xor_b32', v(vT0), v(vT0), v(vT1))
    a.valu('v_lshlrev_b32', v(vT0), 4, v(vT0)); a.valu('v_lshl_add_u32', v(vT0), v(vT1), 8, v(vT0))
    a.valu('v_and_b32', v(vT1), 16, v(vL)); a.valu('v_lshl_add_u32', v(vT0), v(vT1), 11, v(vT0)); a.salu('s_lshl_b32', s(t1), s(sWK), 2)
    WA = WF2
    a.valu('v_add_u32', v(WA), s(t1), v(vT0))
    for u in range(1, 8): a.valu('v_xor_b32', v(WA+u), u << 5, v(WA))
    for tg in range(2):
        if tg:
            for u in range(8): a.valu('v_add_u32', v(WA+u), '0x10000', v(WA+u))
        for nb in range(2):
            for q in range(4): a.ds_write('ds_write_b128', v(WA + nb*4 + q), v(A2 + (nb*2+tg)*16 + 4*q, 4))
    a.valu('v_lshrrev_b32', v(vT0), 3, v(vL)); a.salu('s_and_b32', s(t1), s(sW), 1); a.salu('s_lshl_b32', s(t1), s(t1), 3); a.valu('v_add_u32', v(vT0), s(t1), v(vT0))
    a.valu('v_lshrrev_b32', v(vT1), 1, v(vL8)); a.valu('v_xor_b32', v(vT1), v(vT1), v(vT0))
    a.valu('v_lshlrev_b32', v(vT1), 4, v(vT1))
    RA = vCUR
    a.valu('v_lshl_add_u32', v(RA), v(vT0), 8, v(vT1)); a.salu('s_lshr_b32', s(t1), s(sW), 1); a.salu('s_lshl_b32', s(t1), s(t1), 15)
    a.valu('v_add_u32', v(RA), s(t1), v(RA)); a.valu('v_xor_b32', v(RA+1), 16, v(RA))
    U = WF2 + 8
    for i in range(4):
        a.valu('v_lshlrev_b32', v(U+2*i), 16, v(vBB+i)); a.valu('v_and_b32', v(U+2*i+1), '0xffff0000', v(vBB+i))
        a.valu('v_lshlrev_b32', v(U+8+2*i), 16, v(vXX+i)); a.valu('v_and_b32', v(U+8+2*i+1), '0xffff0000', v(vXX+i))
    for i in range(8): a.valu('v_add_f32', v(U+i), v(U+i), v(U+8+i))
    a.waitcnt(lgkm=0); a.barrier()
    R = AF + 32
    for p in range(8):
        for e in range(2): a.ds_read('ds_read_b128', v(R + (p*2+e)*4, 4), v(RA + e), offset=p * 4096)
    for p in range(8):
        a.waitcnt(lgkm=14 - 2*p)
        for i in range(8): a.valu('v_add_f32', v(U+i), v(U+i), v(R+p*8+i))
    for i in range(4): a.valu('v_cvt_pk_bf16_f32', v(R+i), v(U+2*i), v(U+2*i+1))
    a.bstore('buffer_store_dwordx4', v(R, 4), v(vOO), s(S_OUT, 4), s(t3))
    a.salu('s_or_b32', s(t0), 's2', s(sW)); a.scmp('s_cmp_lg_u32', s(t0), 0); a.other("s_cbranch_scc1 L_noep")
    flag_store(lambda: a.salu('s_mov_b32', s(t0), hex(F_EPOCH)))
    a.label("L_noep")
    if 'dbg' in EXP:
        d = S_WQ; vt = TMP
        a.other(f"s_memrealtime {s(S_W1,2)}")
        a.scmp('s_cmp_lg_u32', s(sW), 0); a.other("s_cbranch_scc1 L_end")
        a.waitcnt(lgkm=0)
        a.salu('s_mov_b32', s(d), s(DBGP)); a.salu('s_and_b32', s(d+1), s(DBGP+1), 0xffff); a.salu('s_mov_b32', s(d+2), 256); a.salu('s_mov_b32', s(d+3), '0x00020000')
        a.valu('v_mov_b32', v(vt+2), 0); a.salu('s_mov_b64', 'exec', 1)
        a.salu('s_not_b32', s(t0), s(stamp_pairs[0])); a.valu('v_mov_b32', v(vt), s(t0))
        a.bstore('buffer_atomic_umax', v(vt), v(vt+2), s(d, 4), 0, offset=0, flags='sc1')
        for i, pr in enumerate(stamp_pairs[1:nst[0]] + [S_W1]):
            a.valu('v_mov_b32', v(vt+1), s(pr)); a.bstore('buffer_atomic_umax', v(vt+1), v(vt+2), s(d, 4), 0, offset=4 + 4*i, flags='sc1'); a.waitcnt(vm=0)
    elif STAMPS:
        d = S_WQ; vt = TMP
        a.other(f"{'s_memtime' if 'clk' in EXP else 's_memrealtime'} {s(S_W1,2)}")
        a.waitcnt(lgkm=0)
        a.salu('s_add_u32', s(d), s(S_WS), hex(STAMP_OFF)); a.salu('s_addc_u32', s(d+1), s(S_WS+1), 0)
        a.salu('s_mov_b32', s(d+2), '0x100000'); a.salu('s_mov_b32', s(d+3), '0x00020000')
        a.salu('s_lshl_b32', 's3', s(sW), 15); a.salu('s_lshl_b32', s(t0), 's2', 7); a.salu('s_add_u32', 's3', 's3', s(t0))
        a.valu('v_mov_b32', v(vt+2), 0); a.salu('s_mov_b64', 'exec', 1)
        for i, pr in enumerate(stamp_pairs[:nst[0]] + [S_W1]):
            a.valu('v_mov_b32', v(vt), s(pr)); a.valu('v_mov_b32', v(vt+1), s(pr+1))
            a.bstore('buffer_store_dwordx2', v(vt, 2), v(vt+2), s(d, 4), 's3', offset=i * 8); a.waitcnt(vm=0)
    a.label("L_end"); a.other("s_endpgm")
    a.label("L_code_end")
    sys.stderr.write(f"marks {st['marks']} nins {a.nins}\n")
    return a.text(), kernel_desc(kn, 256), 163840

k, d, l = gen()
hdr = open("cdna_kernels/" + NAME + ".s.ref").read().split("; Override")[0]
out = hdr + f"; @launch grid=(256,1,1) block=(512,1,1) lds={l}\n"
out += f'.amdgcn_target "amdgcn-amd-amdhsa--gfx950"\n.text\n.set CODE_BYTES, L_code_end - {NAME}_kernel - 128\n' + k
out += '.section .rodata,"a"\n.p2align 6\n' + d
sys.stdout.write(out)
```

```python
import sys
from asmlib import *
STAMPS = '--stamps' in sys.argv
EXP = [x[2:] for x in sys.argv[1:] if x.startswith('--')]
def opt(name, default):
    for x in EXP:
        if x.startswith(name + '='): return int(x.split('=')[1])
    return default
NAME = "parallel_sum__linear_kernel_hedgehog__dense_activation_squared_relu__prompt"
AWS = 0; PART = 0x1000000; RED = 0x1800000; FL = 0x1A00000; WS_BYTES = 0x2000000; STAMP_OFF = 0x8000000
F_EPOCH = FL; F_HA = FL + 0x4000; F_HB = FL + 0x8000; F_OF = FL + 0xC000
L2E = 0x3fb8aa3b
DPPM = "row_mask:0xf bank_mask:0xf"
COH = "sc0 sc1"
BGRATE = opt('bg', 8)

class VM:
    def __init__(self): self.q = [[], []]
    def add(self, tag, n=1, cls=None):
        for c in (0, 1):
            if cls is None or cls == c: self.q[c] += [tag] * n
    def need1(self, c, tags):
        last = -1
        for i, t in enumerate(self.q[c]):
            if t in tags: last = i
        if last < 0: return None
        return min(63, len(self.q[c]) - 1 - last)

class Rec:
    def __init__(self, a): self.a = a; self.items = []
    def __getattr__(self, name):
        f = getattr(self.a, name)
        def rec(*args, **kw): self.items.append(lambda: f(*args, **kw))
        return rec
    def block(self, fn): self.items.append(fn)
    def gate(self, cond): self.items.append(('gate', cond))

def srd(a, d, base, nbytes):
    a.salu('s_mov_b32', s(d), s(base)); a.salu('s_and_b32', s(d+1), s(base+1), 0xffff)
    a.salu('s_mov_b32', s(d+2), hex(nbytes)); a.salu('s_mov_b32', s(d+3), '0x00020000')

def rbf_pairs(a, vals, tmp):
    for i in range(0, len(vals), 2):
        a.valu('v_cvt_pk_bf16_f32', v(tmp[i//2]), v(vals[i]), v(vals[i+1]))
    for i in range(0, len(vals), 2):
        a.valu('v_lshlrev_b32', v(vals[i]), 16, v(tmp[i//2]))
        a.valu('v_and_b32', v(vals[i+1]), '0xffff0000', v(tmp[i//2]))

def allred(a, op, rs, tmp):
    for sw in ('v_permlane16_swap_b32', 'v_permlane32_swap_b32'):
        for r, t in zip(rs, tmp): a.valu('v_mov_b32', v(t), v(r))
        for r, t in zip(rs, tmp): a.valu(sw, v(r), v(t))
        for r, t in zip(rs, tmp): a.valu(op, v(r), v(r), v(t))

def gen():
    a = Asm(); vm = VM()
    kn = NAME + "_kernel"
    a.raw(kernel_header(kn))
    S_X, S_WQ, S_W1, S_WP, S_B1, S_WS, S_W2, S_WO, S_B2, S_OUT = 24, 28, 32, 36, 40, 44, 48, 52, 36, 40
    sR, sC, sW, sROT, sWK, sTH, sCQ, sK0, sTAG = 56, 57, 58, 59, 60, 61, 62, 63, 64
    t0, t1, t2, t3 = 65, 66, 67, 68
    b0, b1_ = 22, 23
    T1 = 70; KS = 86
    sSPIN = 93; sRED = 69; sSL = 3; sPAR = 59
    u0, u1 = 0, 1
    stamp_pairs = [94, 96, 98, 100, 4, 6, 8, 10, 12, 14, 16, 18]
    DBGP = 100
    if 'dbg' in EXP: stamp_pairs.remove(100)
    nst = [0]
    def stamp(kind='n'):
        mode = 'it' if 'iters' in EXP else ('p2' if 'p2' in EXP else ('e' if 'early' in EXP else 'n'))
        if STAMPS and (kind == mode or nst[0] == 0) and nst[0] < len(stamp_pairs):
            a.other(f"{'s_memtime' if 'clk' in EXP else 's_memrealtime'} {s(stamp_pairs[nst[0]],2)}"); nst[0] += 1
    wl = [0]
    def vwait(*tags, lgkm=None):
        n0, n1 = vm.need1(0, tags), vm.need1(1, tags)
        if n0 == n1: a.waitcnt(vm=n0, lgkm=lgkm); return
        wl[0] += 1; L = f"L_w{wl[0]}"
        a.scmp('s_cmp_eq_u32', s(sTH), 0); a.other(f"s_cbranch_scc1 {L}_0")
        if n1 is not None: a.waitcnt(vm=n1)
        a.other(f"s_branch {L}_e")
        a.label(f"{L}_0")
        if n0 is not None: a.waitcnt(vm=n0)
        a.label(f"{L}_e")
        if lgkm is not None: a.waitcnt(lgkm=lgkm)
    a.scmp('s_cmp_ge_u32', 's2', 256); a.other("s_cbranch_scc1 L_end")
    stamp()
    for d, off in ((4, 0), (14, 88), (6, 8), (8, 16), (10, 40), (12, 48), (16, 56), (18, 24), (20, 64), (22, 72)):
        a.other(f"s_load_dwordx2 {s(d,2)}, s[0:1], {off}")
    if 'dbg' in EXP: a.other(f's_load_dwordx2 {s(DBGP,2)}, s[0:1], 80')
    vL, vKV, vF, vQ, aK, aV, aF, aQ, vWP, vB1 = 1, 2, 3, 4, 5, 6, 7, 11, 12, 14
    vCUR = 22; vFLAG = 28; vT0, vT1, vT2 = 29, 30, 31
    vU0, vU1 = 9, 10
    ACCA = 32; ACCB = 48; ACCQ = 64; WF = 72; TMP = 104; XF = 128
    vEP = vCUR + 2
    a.valu('v_lshrrev_b32', v(vT0), 6, 'v0'); a.valu('v_and_b32', v(vL), 63, 'v0')
    a.valu('v_readfirstlane_b32', s(sW), v(vT0))
    a.salu('s_and_b32', s(t0), 's2', 7); a.salu('s_lshr_b32', s(t1), 's2', 3)
    if 'nopf' not in EXP:
        a.other(f"s_getpc_b64 {s(S_W2,2)}")
        a.salu('s_and_b32', s(S_W2+1), s(S_W2+1), 0xffff); a.salu('s_mov_b32', s(S_W2+2), 'CODE_BYTES'); a.salu('s_mov_b32', s(S_W2+3), '0x00020000')
        a.salu('s_and_b32', s(t2), s(t1), 3); a.salu('s_lshl_b32', s(t2), s(t2), 13)
        a.valu('v_lshlrev_b32', v(vT1), 7, v(vL))
        a.scmp('s_cmp_lg_u32', s(sW), 7); a.other("s_cbranch_scc1 L_nopf")
        a.bload('buffer_load_dword', v(vEP), v(vT1), s(S_W2, 4), s(t2))
        a.label("L_nopf")
    a.salu('s_lshr_b32', s(t2), s(t0), 1); a.salu('s_lshl_b32', s(t2), s(t2), 3); a.salu('s_lshr_b32', s(t3), s(t1), 2)
    a.salu('s_add_u32', s(sR), s(t2), s(t3))
    a.salu('s_and_b32', s(t2), s(t0), 1); a.salu('s_lshl_b32', s(t2), s(t2), 2); a.salu('s_and_b32', s(sC), s(t1), 3)
    a.salu('s_add_u32', s(sC), s(sC), s(t2))
    if opt('cx', 0): a.salu('s_xor_b32', s(sC), s(sC), opt('cx', 0))
    if 'norot' in EXP: a.salu('s_mov_b32', s(t3), 0)
    a.valu('v_lshrrev_b32', v(vT0), 3, v(vL)); a.valu('v_and_b32', v(vT1), 7, v(vL))
    a.salu('s_lshl_b32', s(t0), s(sR), 6); a.salu('s_lshl_b32', s(t1), s(sW), 3); a.salu('s_add_u32', s(t0), s(t0), s(t1))
    a.valu('v_add_u32', v(vT2), s(t0), v(vT0)); a.valu('v_lshlrev_b32', v(vT2), 10, v(vT2)); a.valu('v_lshl_add_u32', v(vT2), v(vT1), 4, v(vT2))
    a.waitcnt(lgkm=0)
    stamp('e')
    srd(a, S_X, 4, 2097152)
    X = 32; F = 64
    for j in range(8):
        a.salu('s_add_u32', s(t2), s(t3), j); a.salu('s_and_b32', s(t2), s(t2), 7); a.salu('s_lshl_b32', s(t2), s(t2), 7)
        a.bload('buffer_load_dwordx4', v(X+4*j, 4), v(vT2), s(S_X, 4), s(t2)); vm.add('x')
    srd(a, S_WS, 14, WS_BYTES)
    a.valu('v_mov_b32', v(TMP), 0); a.salu('s_mov_b32', s(t2), hex(F_EPOCH))
    a.bload('buffer_load_dword', v(vEP), v(TMP), s(S_WS, 4), s(t2), flags=COH); vm.add('x')
    if 'gt' in EXP:
        G0 = S_W2
        a.scmp('s_cmp_ge_u32', s(sW), 4); a.other("s_cbranch_scc1 L_nogt")
        a.scmp('s_cmp_eq_u32', s(sW), 0); a.salu('s_cselect_b32', s(G0), s(6), s(10)); a.salu('s_cselect_b32', s(G0+1), s(7), s(11)); a.salu('s_cselect_b32', s(t2), 48, 56)
        a.scmp('s_cmp_eq_u32', s(sW), 2); a.salu('s_cselect_b32', s(G0), s(16), s(G0)); a.salu('s_cselect_b32', s(G0+1), s(17), s(G0+1))
        a.scmp('s_cmp_eq_u32', s(sW), 3); a.salu('s_cselect_b32', s(G0), s(18), s(G0)); a.salu('s_cselect_b32', s(G0+1), s(19), s(G0+1)); a.salu('s_cselect_b32', s(t2), 16, s(t2))
        a.salu('s_and_b32', s(G0+1), s(G0+1), 0xffff); a.salu('s_lshl_b32', s(G0+2), s(t2), 15); a.salu('s_mov_b32', s(G0+3), '0x00020000')
        a.salu('s_sub_u32', s(t0), s(t2), 1); a.valu('v_min_u32', v(TMP+1), s(t0), v(vL)); a.valu('v_lshlrev_b32', v(TMP+1), 7, v(TMP+1))
        a.salu('s_mul_i32', s(t2), s(t2), 's2'); a.salu('s_lshl_b32', s(t2), s(t2), 7)
        a.bload('buffer_load_dword', 'v0', v(TMP+1), s(G0, 4), s(t2))
        a.label("L_nogt")
        vm.add('gt', 1, cls=0)
    if 'tlb' in EXP:
        G1 = S_W1
        a.valu('v_and_b32', v(TMP+2), 15, v(vL)); a.valu('v_lshlrev_b32', v(TMP+2), 21, v(TMP+2)); a.valu('v_mov_b32', v(TMP+3), 0)
        a.salu('s_mov_b32', s(t2), '0x1fff80')
        TL = 4
        if TL is not None:
            a.scmp('s_cmp_lg_u32', s(sW), TL); a.other("s_cbranch_scc1 L_notlb")
        a.bload('buffer_load_dword', 'v0', v(TMP+2), s(S_WS, 4), s(t2), flags=COH)
        for base in (22, 20, 12, 8, 16, 18, 10):
            srd(a, G1, base, 1024); a.bload('buffer_load_dword', 'v0', v(TMP+3), s(G1, 4), 0)
        if TL is not None: a.label("L_notlb")
    a.salu('s_lshl_b32', s(sROT), s(t3), 1)
    a.salu('s_lshl_b32', s(sWK), s(sW), 10); a.salu('s_lshr_b32', s(sTH), s(sW), 2); a.salu('s_and_b32', s(sCQ), s(sW), 3)
    a.salu('s_mul_i32', s(sK0), s(sC), 7); a.salu('s_and_b32', s(t2), s(sC), 1); a.salu('s_sub_u32', s(sK0), s(sK0), s(t2))
    srd(a, S_WQ, 6, 1572864)
    for p in range(16):
        a.salu('s_add_u32', s(T1+p), s(sROT), p); a.salu('s_and_b32', s(T1+p), s(T1+p), 15)
    vXW = vCUR + 4
    a.valu('v_add_u32', v(vT0), s(t1), v(vT0))
    a.valu('v_and_b32', v(vT2), 15, v(vT0)); a.valu('v_xor_b32', v(vT2), v(vT2), v(vT1)); a.valu('v_lshlrev_b32', v(vT2), 4, v(vT2))
    a.valu('v_lshl_add_u32', v(vXW), v(vT0), 10, v(vT2))
    vG, vI = TMP + 4, TMP + 5
    a.valu('v_lshrrev_b32', v(vG), 4, v(vL)); a.valu('v_and_b32', v(vI), 15, v(vL))
    vCH, vRW = TMP + 10, TMP + 11
    a.salu('s_lshr_b32', s(t0), s(sW), 1); a.salu('s_and_b32', s(t0), s(t0), 1); a.salu('s_lshl_b32', s(t0), s(t0), 3)
    a.valu('v_lshlrev_b32', v(vT0), 1, v(vG)); a.valu('v_or_b32', v(vT0), s(t0), v(vT0)); a.valu('v_xor_b32', v(vCH), v(vT0), v(vI))
    a.valu('v_lshrrev_b32', v(vT1), 3, v(vCH)); a.valu('v_lshlrev_b32', v(vT1), 10, v(vT1))
    a.valu('v_and_b32', v(vT0), 7, v(vCH)); a.valu('v_lshl_add_u32', v(vT1), v(vT0), 4, v(vT1))
    a.salu('s_lshl_b32', s(t0), s(sW), 2); a.valu('v_add_u32', v(vRW), s(t0), v(vG))
    a.valu('v_mul_u32_u24', v(vT0), 3072, v(vRW)); a.valu('v_add_u32', v(vT1), v(vT1), v(vT0))
    a.salu('s_lshl_b32', s(t0), s(sC), 7); a.salu('s_add_u32', s(t0), s(t0), 1024)
    a.valu('v_add_u32', v(vKV), s(t0), v(vT1))
    NST = 14
    REG = lambda i: {0: 2, 1: 3, 2: 4}.get(i, (i - 3) % 4) * 32768
    MISC = 4 * 32768
    vDW, vAO = vKV, vQ
    def dma_ops(i):
        ops = []
        for q in range(4):
            def op(q=q):
                if i < 14: a.salu('s_add_u32', 'm0', s(sWK), hex(REG(i) + q * 8192))
                if i < 4:
                    a.salu('s_mul_i32', s(t0), s(T1 + 4*i + q), 98304); a.bload_lds(v(vKV), s(S_WQ, 4), s(t0))
                elif 12 <= i < 14:
                    a.salu('s_add_u32', s(t0), s(sTH), s(T1 + 8*(i-12) + 2*q)); a.salu('s_and_b32', s(t0), s(t0), 15)
                    a.salu('s_mul_i32', s(t0), s(t0), 98304); a.bload_lds(v(vQ), s(S_WQ, 4), s(t0))
                elif i < 14:
                    hf = (i - 4) >> 2; jj = (i - 4) & 3
                    a.salu('s_mul_i32', s(t0), s(T1 + 4*jj + q), 114688)
                    if hf: a.salu('s_add_u32', s(t0), s(t0), 256)
                    a.bload_lds(v(vF), s(S_W1, 4), s(t0))
                else:
                    p = i - 14
                    a.salu('s_lshl_b32', s(t1), s(sWK), 2); a.salu('s_add_u32', 'm0', s(t1), hex(REG(i) + q * 1024))
                    if p < 7:
                        a.salu('s_lshl_b32', s(t0), s(KS+p), 15)
                        if q: a.salu('s_add_u32', s(t0), s(t0), q * 8192)
                        a.bload_lds(v(vDW), s(S_W2, 4), s(t0))
                    else:
                        a.salu('s_lshl_b32', s(t0), s(sW), 16); a.salu('s_add_u32', s(t0), s(t0), (p - 7) * 32768 + q * 8192)
                        a.bload_lds(v(vDW), s(S_WO, 4), s(t0))
                vm.add(('st', i))
            ops.append(op)
        return ops
    srd(a, S_WP, 8, 16384); srd(a, S_B1, 12, 3584)
    a.salu('s_lshl_b32', s(t0), s(sC), 2); a.salu('s_add_u32', s(t0), s(t0), s(sCQ)); a.salu('s_lshl_b32', s(t0), s(t0), 9)
    a.valu('v_lshlrev_b32', v(vT0), 7, v(vG)); a.valu('v_lshl_add_u32', v(vT0), v(vI), 1, v(vT0))
    stamp('e')
    a.barrier()
    stamp('e')
    a.bload('buffer_load_ushort', v(vWP), v(vT0), s(S_WP, 4), s(t0), offset=0)
    a.bload('buffer_load_ushort', v(vFLAG), v(vT0), s(S_WP, 4), s(t0), offset=32)
    a.bload('buffer_load_ushort', v(vWP+1), v(vT0), s(S_WP, 4), s(t0), offset=64)
    a.bload('buffer_load_ushort', v(vCUR+3), v(vT0), s(S_WP, 4), s(t0), offset=96); vm.add('small', 4)
    NPRE = opt('npre', 4)
    early = dma_ops(0) + dma_ops(1) + dma_ops(2)
    for op in early[:NPRE]: op()
    early = early[NPRE:]
    vTA = XF
    a.salu('s_add_u32', s(t0), s(sK0), s(sCQ)); a.salu('s_lshl_b32', s(t0), s(t0), 6)
    a.valu('v_lshlrev_b32', v(vT0), 3, v(vG)); a.valu('v_add_u32', v(vTA), s(t0), v(vT0))
    for hf in range(2):
        for e in range(2):
            def op(hf=hf, e=e):
                a.bload('buffer_load_dwordx2', v(vB1+4*hf+2*e, 2), v(vTA), s(S_B1, 4), 0, offset=256*hf+32*e); vm.add('b1')
            early.append(op)
    srd(a, S_W1, 10, 1835008); srd(a, S_W2, 16, 1835008); srd(a, S_WO, 18, 524288)
    if 'notouch' not in EXP:
        a.salu('s_lshr_b32', s(t0), 's2', 3); a.salu('s_lshl_b32', s(t0), s(t0), 3); a.salu('s_add_u32', s(t0), s(t0), s(sW))
        a.salu('s_lshr_b32', s(t2), s(sC), 2)
        a.valu('v_lshrrev_b32', v(vT0), 4, v(vL)); a.valu('v_and_b32', v(vT0), 1, v(vT0)); a.salu('s_lshl_b32', s(t1), s(t0), 1); a.valu('v_add_u32', v(vT0), s(t1), v(vT0))
        a.valu('v_mul_u32_u24', v(vT1), 3584, v(vT0)); a.valu('v_min_u32', v(vT2), 13, v(vI)); a.valu('v_lshl_add_u32', v(vT1), v(vT2), 7, v(vT1))
        a.salu('s_mul_i32', s(t1), s(t2), 1792); a.valu('v_add_u32', v(vTA+1), s(t1), v(vT1))
        a.valu('v_and_b32', v(vT2), 3, v(vL)); a.valu('v_lshlrev_b32', v(vT2), 7, v(vT2)); a.salu('s_lshl_b32', s(t1), s(t2), 9); a.valu('v_add_u32', v(vT2), s(t1), v(vT2))
        a.valu('v_mul_u32_u24', v(vT1), 3072, v(vT0)); a.valu('v_add_u32', v(vTA+2), v(vT1), v(vT2))
        a.valu('v_lshl_add_u32', v(vTA+3), v(vT0), 10, v(vT2))
        a.salu('s_mul_i32', s(t0), s(t0), 7); a.valu('v_lshrrev_b32', v(vT0), 2, v(vL)); a.valu('v_min_u32', v(vT0), 6, v(vT0)); a.valu('v_add_u32', v(vT0), s(t0), v(vT0))
        a.valu('v_lshl_add_u32', v(vTA+4), v(vT0), 10, v(vT2))
        W2J = opt('w2j', 3)
        if W2J >= 0:
            a.valu('v_mov_b32', v(vU0), v(vTA+3)); a.valu('v_mov_b32', v(vU1), v(vTA+4))
        for k, sd in enumerate((S_W1, S_WQ, S_WO, S_W2)):
            if k >= 2 and W2J >= 0: continue
            def op(k=k, sd=sd):
                a.bload('buffer_load_dword', 'v0', v(vTA+1+k), s(sd, 4), 0); vm.add('touch')
            early.append(op)
    a.valu('v_mul_u32_u24', v(vT0), 3584, v(vRW)); a.valu('v_lshl_add_u32', v(vT0), v(vCH), 4, v(vT0))
    a.salu('s_lshl_b32', s(t0), s(sK0), 6); a.valu('v_add_u32', v(vF), s(t0), v(vT0))
    a.valu('v_and_b32', v(vT0), 1, v(vG)); a.salu('s_and_b32', s(t0), s(sW), 1); a.salu('s_lshl_b32', s(t0), s(t0), 1)
    a.valu('v_or_b32', v(vT0), s(t0), v(vT0)); a.valu('v_lshlrev_b32', v(vT0), 1, v(vT0))
    a.valu('v_and_b32', v(vT1), 7, v(vL)); a.valu('v_xor_b32', v(vT1), v(vT1), v(vT0)); a.valu('v_lshlrev_b32', v(vT1), 4, v(vT1))
    a.valu('v_lshrrev_b32', v(vT0), 3, v(vL)); a.salu('s_lshl_b32', s(t0), s(sCQ), 3); a.valu('v_add_u32', v(vT0), s(t0), v(vT0))
    a.valu('v_mul_u32_u24', v(vT0), 3072, v(vT0)); a.valu('v_add_u32', v(vT1), v(vT1), v(vT0))
    a.salu('s_lshl_b32', s(t0), s(sC), 7); a.valu('v_add_u32', v(vQ), s(t0), v(vT1))
    vRR, vROW, vFS, vC8 = TMP + 6, TMP + 7, TMP + 8, TMP + 9
    a.valu('v_lshrrev_b32', v(vRR), 2, v(vI)); a.valu('v_lshl_add_u32', v(vROW), v(vG), 3, v(vRR))
    a.valu('v_and_b32', v(vT0), 1, v(vG)); a.valu('v_lshl_or_b32', v(vFS), v(vT0), 2, v(vRR))
    a.valu('v_and_b32', v(vC8), 3, v(vI)); a.valu('v_lshlrev_b32', v(vC8), 3, v(vC8))
    a.valu('v_xor_b32', v(vT1), s(sCQ), v(vFS)); a.valu('v_lshl_add_u32', v(vT1), v(vT1), 5, v(vC8)); a.valu('v_lshl_add_u32', v(aK), v(vROW), 8, v(vT1))
    a.valu('v_xor_b32', v(aV), 128, v(aK))
    a.salu('s_lshl_b32', s(t0), s(sCQ), 1)
    a.valu('v_xor_b32', v(vT1), s(t0), v(vFS)); a.valu('v_lshl_add_u32', v(vT1), v(vT1), 5, v(vC8)); a.valu('v_lshl_add_u32', v(aF), v(vROW), 8, v(vT1))
    a.valu('v_xor_b32', v(aF+1), 32, v(aF))
    a.valu('v_lshrrev_b32', v(vT1), 1, v(vRR)); a.valu('v_lshl_or_b32', v(vT1), v(vT0), 1, v(vT1)); a.valu('v_xor_b32', v(vT1), s(sCQ), v(vT1))
    a.valu('v_lshl_add_u32', v(vT1), v(vT1), 5, v(vC8)); a.valu('v_lshl_add_u32', v(aQ), v(vROW), 7, v(vT1))
    vXR = vCUR + 5
    a.valu('v_xor_b32', v(vT1), v(vG), v(vI)); a.valu('v_lshlrev_b32', v(vT1), 4, v(vT1)); a.valu('v_lshl_add_u32', v(vT1), v(vI), 10, v(vT1))
    a.salu('s_lshl_b32', s(t0), s(sTH), 15); a.valu('v_add_u32', v(vXR), s(t0), v(vT1))
    if 'rotr' in EXP: a.salu('s_lshr_b32', s(t0), s(sROT), 1)
    else: a.salu('s_and_b32', s(t0), s(sC), 3)
    a.salu('s_mul_i32', s(t1), s(sW), 7)
    a.salu('s_mul_i32', s(t2), s(t0), 11); a.salu('s_lshr_b32', s(t2), s(t2), 5); a.salu('s_mul_i32', s(t2), s(t2), 3); a.salu('s_sub_u32', s(t2), s(t0), s(t2))
    for p in range(3):
        a.salu('s_add_u32', s(t3), s(t2), p); a.salu('s_sub_u32', s(KS+p), s(t3), 3); a.scmp('s_cmp_ge_u32', s(t3), 3)
        a.salu('s_cselect_b32', s(KS+p), s(KS+p), s(t3)); a.salu('s_add_u32', s(KS+p), s(KS+p), s(t1))
    for p in range(4):
        a.salu('s_add_u32', s(t3), s(t0), p); a.salu('s_and_b32', s(t3), s(t3), 3); a.salu('s_add_u32', s(t3), s(t3), s(t1)); a.salu('s_add_u32', s(KS+3+p), s(t3), 3)
    vwait('x')
    stamp(); stamp('e')
    a_real = a; a = Rec(a_real)
    a.valu('v_readfirstlane_b32', s(sTAG), v(vEP))
    for j in range(32):
        a.valu('v_lshlrev_b32', v(F+2*j), 16, v(X+j)); a.valu('v_and_b32', v(F+2*j+1), '0xffff0000', v(X+j))
    a.salu('s_add_u32', s(sTAG), s(sTAG), 1)
    S0 = X
    for k in range(4): a.valu('v_add_f32', v(S0+k), v(F+k), v(F+4+k))
    for j in range(8, 64): a.valu('v_add_f32', v(S0+j%4), v(S0+j%4), v(F+j))
    a.valu('v_add_f32', v(S0), v(S0), v(S0+1)); a.valu('v_add_f32', v(S0+2), v(S0+2), v(S0+3)); a.valu('v_add_f32', v(S0), v(S0), v(S0+2))
    def red8(r):
        a.valu('v_add_f32_dpp', v(r), v(r), v(r), mod="quad_perm:[1,0,3,2] " + DPPM)
        a.valu('v_add_f32_dpp', v(r), v(r), v(r), mod="quad_perm:[2,3,0,1] " + DPPM)
        a.valu('v_add_f32_dpp', v(r), v(r), v(r), mod="row_half_mirror " + DPPM)
    red8(S0)
    vMEAN, vMB = S0 + 4, S0 + 5
    a.valu('v_mul_f32', v(vMEAN), '0x3b000000', v(S0))
    a.valu('v_cvt_pk_bf16_f32', v(vMB), v(vMEAN), v(vMEAN)); a.valu('v_lshlrev_b32', v(vMB), 16, v(vMB))
    for j in range(64): a.valu('v_sub_f32', v(F+j), v(F+j), v(vMB))
    for k in range(4): a.valu('v_mul_f32', v(S0+k), v(F+k), v(F+k))
    for j in range(4, 64): a.valu('v_fmac_f32', v(S0+j%4), v(F+j), v(F+j))
    a.valu('v_add_f32', v(S0), v(S0), v(S0+1)); a.valu('v_add_f32', v(S0+2), v(S0+2), v(S0+3)); a.valu('v_add_f32', v(S0), v(S0), v(S0+2))
    red8(S0)
    a.valu('v_sub_f32', v(vMEAN), v(vMEAN), v(vMB))
    a.valu('v_mul_f32', v(S0), '0x3b000000', v(S0))
    a.valu('v_fma_f32', v(S0), '-' + v(vMEAN), v(vMEAN), v(S0)); a.valu('v_max_f32', v(S0), 0, v(S0))
    a.valu('v_cvt_pk_bf16_f32', v(S0), v(S0), v(S0)); a.valu('v_lshlrev_b32', v(S0), 16, v(S0))
    a.valu('v_add_f32', v(S0), '0x3727c5ac', v(S0))
    a.valu('v_cvt_pk_bf16_f32', v(S0), v(S0), v(S0)); a.valu('v_lshlrev_b32', v(S0), 16, v(S0))
    a.valu('v_sqrt_f32', v(S0), v(S0))
    a.valu('v_cvt_pk_bf16_f32', v(S0), v(S0), v(S0)); a.valu('v_lshlrev_b32', v(S0), 16, v(S0))
    vRI = vT0
    a.valu('v_rcp_f32', v(vRI), v(S0))
    a.valu('v_fma_f32', v(vT1), '-' + v(S0), v(vRI), 1.0); a.valu('v_fma_f32', v(vRI), v(vT1), v(vRI), v(vRI))
    a.valu('v_xor_b32', v(vT1), 128, v(vXW))
    for j in range(8):
        fs = [F + 8*j + i for i in range(8)]
        rbf_pairs(a, fs, [X + 4*j + i for i in range(4)])
        for f in fs: a.valu('v_mul_f32', v(f), v(f), v(vRI))
        for i in range(4): a.valu('v_cvt_pk_bf16_f32', v(X+4*j+i), v(fs[2*i]), v(fs[2*i+1]))
        a.ds_write('ds_write_b128', v(vXW if j % 2 == 0 else vT1), v(X+4*j, 4), offset=(j >> 1) * 256)
    lnitems = a.items; a = a_real
    LNP = max(1, (len(lnitems) - 20) // max(1, len(early)))
    for n_, it in enumerate(lnitems):
        it()
        if n_ % LNP == LNP - 1 and early: early.pop(0)()
    for op in early: op()
    vwait('small')
    a.valu('v_lshl_or_b32', v(vWP), v(vFLAG), 16, v(vWP)); a.valu('v_lshl_or_b32', v(vWP+1), v(vCUR+3), 16, v(vWP+1))
    a.salu('s_and_b32', s(sPAR), s(sCQ), 1); a.salu('s_lshl_b32', s(t0), s(sPAR), 14); a.valu('v_add_u32', v(vXR), s(t0), v(vXR))
    for sl in range(2):
        for q4 in range(4): a.valu('v_xor_b32', v(TMP+sl*4+q4), (q4 << 6) | (sl << 14), v(vXR))
    stamp('e')
    a.waitcnt(lgkm=0); a.barrier()
    stamp(); stamp('e')
    for ks in range(16):
        for tb in range(2):
            a.ds_read('ds_read_b128', v(XF + (tb*16+ks)*4, 4), v(TMP + tb*4 + ks % 4), offset=(ks >> 2) * 256)
    if opt('w2j', 3) >= 0:
        a.valu('v_mov_b32', v(vCUR+4), v(vU0)); a.valu('v_mov_b32', v(vCUR+5), v(vU1))
    vID = vCUR + 2
    a.valu('v_lshrrev_b32', v(vT0), 4, v(vL)); a.valu('v_lshlrev_b32', v(vT0), 2, v(vT0)); a.valu('v_and_b32', v(vT1), 15, v(vL)); a.valu('v_sub_u32', v(vT0), v(vT1), v(vT0))
    a.valu('v_mov_b32', v(vT1), '0x3f80'); a.valu('v_mov_b32', v(vT2), '0x3f800000')
    for h in range(2):
        a.valu('v_cmp_eq_u32', 'vcc', 2*h, v(vT0)); a.valu('v_cndmask_b32', v(vID+h), 0, v(vT1), 'vcc')
        a.valu('v_cmp_eq_u32', 'vcc', 2*h+1, v(vT0)); a.valu('v_cndmask_b32', v(vID+h), v(vID+h), v(vT2), 'vcc')
    xf = lambda tb, ks: v(XF + (tb*16+ks)*4, 4)
    wf = lambda buf, i: v(WF + buf*16 + i*4, 4)
    started = set()
    curbase = {}
    def unit_info(u):
        if u < 24: return u >> 1, (u & 1) * 16384
        return 12 + ((u - 24) >> 2), ((u - 24) & 3) * 8192
    def read_ops(hs):
        j, so = unit_info(hs); sb = REG(j) + so; buf = hs & 1
        if j < 4: bases = [aK, aV]; d1, d2 = 8192, 1024
        elif j >= 12: bases = [aQ, aQ2]; d1, d2 = 4096, 512
        else: bases = [aF, aF+1]; d1, d2 = 8192, 1024
        lst = [(bases[0], 0, d2), (bases[1], 0, d2), (bases[0], d1, d2), (bases[1], d1, d2)]
        hi = (sb // 65536) * 65536; lo = sb - hi
        cur = {}
        for n, b in enumerate(bases):
            if hi:
                if curbase.get(n) != (b, hi):
                    a.valu('v_add_u32', v(vCUR+n), hex(hi), v(b)); curbase[n] = (b, hi)
                cur[b] = vCUR + n
            else: cur[b] = b
        ops = []
        for i, (b, off, dd) in enumerate(lst):
            r0 = WF + buf*16 + i*4
            ops.append(lambda r0=r0, b=b, off=off: a.ds_read('ds_read_b64_tr_b16', v(r0, 2), v(cur[b]), offset=lo + off))
            ops.append(lambda r0=r0, b=b, off=off, dd=dd: a.ds_read('ds_read_b64_tr_b16', v(r0+2, 2), v(cur[b]), offset=lo + off + dd))
        return ops
    aQ2 = vFLAG
    def mfma_ops(hs):
        if hs < 0: return []
        buf = hs & 1; L = []
        if hs < 8:
            for h in range(2):
                for tb in range(2): L.append((v(ACCA + tb*4, 4), wf(buf, 2*h), xf(tb, 2*hs+h), 'kv'))
                for tb in range(2): L.append((v(ACCA + 8 + tb*4, 4), xf(tb, 2*hs+h), wf(buf, 2*h+1), 'kv'))
        elif hs >= 24:
            for h in range(2):
                for e in range(2): L.append((v(ACCQ + e*4, 4), wf(buf, 2*h+e), xf(0, 2*(hs-24)+h), 'q'))
        else:
            hf = (hs - 8) >> 3; k0 = 2 * ((hs - 8) & 7); A0 = ACCB if hf else ACCA
            for h in range(2):
                for e in range(2):
                    for tb in range(2): L.append((v(A0 + (e*2+tb)*4, 4), wf(buf, 2*h+e), xf(tb, k0+h), 'f'))
        ops = []
        for d, A, B, ph in L:
            def op(d=d, A=A, B=B, ph=ph):
                c = d if ((d, ph) in started or ph == 'f') else 0
                started.add((d, ph)); a.mfma(d, A, B, c)
            ops.append(op)
        return ops
    def flag_store(setup, ts=t0, tv=(vT0, vT1)):
        setup()
        a.valu('v_mov_b32', v(tv[0]), 0); a.valu('v_mov_b32', v(tv[1]), s(sTAG))
        a.salu('s_mov_b64', 'exec', 1)
        a.bstore('buffer_store_dword', v(tv[1]), v(tv[0]), s(S_WS, 4), s(ts), flags=COH)
        a.salu('s_mov_b64', 'exec', -1)
    def tagcheck(regs_, label, reload, tv=(vT0, vT1)):
        a.salu('s_mov_b32', s(sSPIN), 0)
        a.label(f"L_{label}_chk")
        a.valu('v_xor_b32', v(tv[0]), s(sTAG), v(regs_[0]))
        for r_ in regs_[1:]:
            a.valu('v_xor_b32', v(tv[1]), s(sTAG), v(r_)); a.valu('v_or_b32', v(tv[0]), v(tv[0]), v(tv[1]))
        a.valu('v_cmp_ne_u32', 'vcc', 0, v(tv[0]))
        a.nop(1); a.scmp('s_cmp_eq_u64', 'vcc', 0); a.other(f"s_cbranch_scc1 L_{label}_ok")
        a.salu('s_add_u32', s(sSPIN), s(sSPIN), 1); a.scmp('s_cmp_ge_u32', s(sSPIN), 200000); a.other(f"s_cbranch_scc1 L_{label}_ok")
        a.other("s_sleep 2")
        reload(); a.waitcnt(vm=0)
        a.other(f"s_branch L_{label}_chk")
        a.label(f"L_{label}_ok")
    def head_s(dst):
        a.salu('s_lshl_b32', s(dst), s(sC), 2); a.salu('s_add_u32', s(dst), s(dst), s(sCQ))
    st = {'j': 0, 'nbar': 0, 'hs_done': -1, 'marks': {}}
    bg = Rec(a)
    def after_barrier(name):
        def mark(): st['marks'][name] = st['nbar']
        bg.block(mark)
        bg.gate(lambda: st['nbar'] > st['marks'][name])
    def mark_j(name): bg.block(lambda: st['marks'].__setitem__(name, st['nbar']))
    def wait_j(name, d): bg.gate(lambda: st['nbar'] >= st['marks'][name] + d or st['j'] >= NST)
    b = bg
    def red4(r, op, M, T, mid):
        r.valu('v_permlane32_swap_b32', v(M), v(M+1)); r.valu('v_permlane32_swap_b32', v(M+2), v(M+3))
        r.valu(op, v(M), v(M), v(M+1)); r.valu(op, v(M+2), v(M+2), v(M+3))
        r.valu('v_mov_b32', v(T), 0)
        r.valu('v_permlane16_swap_b32', v(M), v(M+2))
        r.valu(op, v(M), v(M), v(M+2))
        mid(M)
        r.valu('v_mov_b32', v(M+2), v(M)); r.valu('v_mov_b32', v(T), 0)
        r.valu('v_permlane16_swap_b32', v(M), v(M+2))
        r.valu('v_mov_b32', v(M+1), v(M)); r.valu('v_mov_b32', v(M+3), v(M+2)); r.valu('v_mov_b32', v(T), 0)
        r.valu('v_permlane32_swap_b32', v(M), v(M+1)); r.valu('v_permlane32_swap_b32', v(M+2), v(M+3))
    def softmax2(r, QBr, Pp, M, E, EE, TT, WPs=None):
        WPs = WPs or (vWP, vWP)
        for tb in range(2): r.mfma(v(Pp+4*tb, 4), v(WPs[tb], 2), v(QBr+2*tb, 2), 0, op='v_mfma_f32_16x16x16_bf16')
        r.valu('v_mov_b32', v(vU1), hex(L2E))
        for i in range(3): r.valu('v_mov_b32', v(E+i), 0)
        rbf_pairs(r, [Pp+i for i in range(8)], [E+i for i in range(4)])
        for tb in range(2):
            p = Pp + 4*tb
            r.valu('v_max3_f32', v(M+tb), v(p), v(p+1), v(p+2)); r.valu('v_max3_f32', v(M+2+tb), '-'+v(p), '-'+v(p+1), '-'+v(p+2))
            r.valu('v_max_f32', v(M+tb), v(M+tb), v(p+3)); r.valu('v_max_f32_e64', v(M+2+tb), v(M+2+tb), '-'+v(p+3))
        red4(r, 'v_max_f32', M, TT, lambda x: r.valu('v_mul_f32', v(x), hex(L2E), v(x)))
        for i in range(8): r.valu('v_fma_f32', v(E+i), v(Pp+i), v(vU1), '-'+v(M+i//4))
        for i in range(8): r.valu('v_fma_f32', v(EE+i), '-'+v(Pp+i), v(vU1), '-'+v(M+2+i//4))
        for i in range(8): r.valu('v_exp_f32', v(E+i), v(E+i))
        for i in range(8): r.valu('v_exp_f32', v(EE+i), v(EE+i))
        for tb in range(2):
            for k, e in enumerate((E, EE)):
                d = M + 2*k + tb
                r.valu('v_add_f32', v(d), v(e+4*tb), v(e+4*tb+1)); r.valu('v_add_f32', v(TT), v(e+4*tb+2), v(e+4*tb+3)); r.valu('v_add_f32', v(d), v(d), v(TT))
        red4(r, 'v_add_f32', M, TT, lambda x: r.valu('v_rcp_f32', v(x), v(x)))
        for i in range(8): r.valu('v_mul_f32', v(E+i), v(E+i), v(M+i//4))
        for i in range(8): r.valu('v_mul_f32', v(EE+i), v(EE+i), v(M+2+i//4))
        for tb in range(2):
            o = Pp + 4*tb
            r.valu('v_cvt_pk_bf16_f32', v(o), v(E+4*tb), v(E+4*tb+1)); r.valu('v_cvt_pk_bf16_f32', v(o+1), v(E+4*tb+2), v(E+4*tb+3))
            r.valu('v_cvt_pk_bf16_f32', v(o+2), v(EE+4*tb), v(EE+4*tb+1)); r.valu('v_cvt_pk_bf16_f32', v(o+3), v(EE+4*tb+2), v(EE+4*tb+3))
    KA = TMP; M = TMP + 4; E = TMP + 8; EE = TMP + 16; P = ACCB; VB = ACCB + 8; ONE = ACCB + 12
    KVP = E; ZP = EE
    def kv_convert():
        for tb in range(2):
            for h in range(2): a.valu('v_cvt_pk_bf16_f32', v(KA+2*tb+h), v(ACCA+tb*4+2*h), v(ACCA+tb*4+2*h+1))
        for tb in range(2):
            for h in range(2): a.valu('v_cvt_pk_bf16_f32', v(VB+2*tb+h), v(ACCA+8+tb*4+2*h), v(ACCA+8+tb*4+2*h+1))
        st['kvconv'] = True
    b.gate(lambda: st.get('kvconv'))
    softmax2(b, KA, P, M, E, EE, KA)
    for i in range(4): b.valu('v_mov_b32', v(ONE+i), '0x3f803f80')
    for sg, dst in enumerate((E, EE)):
        for tb in range(2): b.mfma(v(dst+4*tb, 4), v(P+4*tb+2*sg, 2), v(vID, 2), 0, op='v_mfma_f32_16x16x16_bf16')
    b.valu('v_lshlrev_b32', v(vU0), 4, v(vL)); b.salu('s_lshl_b32', s(u0), s(sCQ), 12); b.salu('s_add_u32', s(u0), s(u0), hex(MISC))
    b.valu('v_add_u32', v(vT2), s(u0), v(vU0))
    PHP = KA; PHM = M
    for i in range(4): b.valu('v_cvt_pk_bf16_f32', v(PHP+i), v(E+2*i), v(E+2*i+1))
    for i in range(4): b.valu('v_cvt_pk_bf16_f32', v(PHM+i), v(EE+2*i), v(EE+2*i+1))
    b.mfma(v(KVP, 4), v(PHP, 4), v(VB, 4), 0); b.mfma(v(KVP+4, 4), v(PHM, 4), v(VB, 4), 0)
    b.mfma(v(ZP, 4), v(PHP, 4), v(ONE, 4), 0); b.mfma(v(ZP+4, 4), v(PHM, 4), v(ONE, 4), 0)
    for i in range(3): b.valu('v_mov_b32', v(P+4*i+3), s(sTAG))
    def park():
        a.scmp('s_cmp_eq_u32', s(sTH), 0); a.other("s_cbranch_scc1 L_nopark")
        a.ds_write('ds_write_b128', v(vT2), v(KVP, 4)); a.ds_write('ds_write_b128', v(vT2), v(KVP+4, 4), offset=1024)
        a.ds_write('ds_write_b128', v(vT2), v(ZP, 4), offset=2048); a.ds_write('ds_write_b128', v(vT2), v(ZP+4, 4), offset=3072)
        a.label("L_nopark")
    b.block(park)
    after_barrier('park')
    def kv_publish():
        a.scmp('s_cmp_lg_u32', s(sTH), 0); a.other("s_cbranch_scc1 L_nopub")
        Q = TMP; G = ACCB
        head_s(u0); a.salu('s_lshl_b32', s(u0), s(u0), 5); a.salu('s_add_u32', s(u0), s(u0), s(sR)); a.salu('s_mul_i32', s(u0), s(u0), 3456)
        a.salu('s_add_u32', s(u0), s(u0), hex(PART))
        for k, src in enumerate((KVP, ZP)):
            a.ds_read('ds_read_b128', v(Q, 4), v(vT2), offset=2048*k); a.ds_read('ds_read_b128', v(Q+4, 4), v(vT2), offset=2048*k+1024)
            if k == 1: a.valu('v_and_b32', v(vU0), 48, v(vL)); a.valu('v_add_u32', v(vU0), 1024, v(vU0))
            a.waitcnt(lgkm=0)
            for i in range(8): a.valu('v_add_f32', v(G + 4*(i//3) + i%3), v(src+i), v(Q+i))
            if k == 1:
                a.salu('s_mov_b32', 'exec_lo', '0x00010001'); a.salu('s_mov_b32', 'exec_hi', '0x00010001')
            for i in range(3): a.bstore('buffer_store_dwordx4', v(G+4*i, 4), v(vU0), s(S_WS, 4), s(u0), offset=1152*i, flags=COH)
            if k == 1: a.salu('s_mov_b64', 'exec', -1)
            a.nop(2)
        a.label("L_nopub")
        vm.add('pst', 6, cls=0)
        st['pub'] = True
        stamp()
    b.block(kv_publish); mark_j('pub')
    vWP2 = vCUR + 2
    def wp2():
        a.salu('s_xor_b32', s(u1), s(sCQ), 1); a.salu('s_lshl_b32', s(u0), s(sC), 2); a.salu('s_add_u32', s(u0), s(u0), s(u1)); a.salu('s_lshl_b32', s(u0), s(u0), 9)
        a.valu('v_lshrrev_b32', v(vU0), 4, v(vL)); a.valu('v_lshlrev_b32', v(vU0), 7, v(vU0)); a.valu('v_and_b32', v(vU1), 15, v(vL)); a.valu('v_lshl_add_u32', v(vU0), v(vU1), 1, v(vU0))
        for k, d in enumerate((vWP2, vWP2+2, vWP2+1, vWP2+3)):
            a.bload('buffer_load_ushort', v(d), v(vU0), s(S_WP, 4), s(u0), offset=32*k)
        vm.add('wp2', 4)
        a.valu('v_xor_b32', v(aQ2), 32, v(aQ))
    b.block(wp2)
    QB = TMP; PQ = ACCQ
    def q_softmax(r):
        for tb in range(2):
            for h in range(2): r.valu('v_cvt_pk_bf16_f32', v(QB+2*tb+h), v(ACCQ+tb*4+2*h), v(ACCQ+tb*4+2*h+1))
        r.valu('v_lshlrev_b32', v(vU0), 4, v(vL)); r.salu('s_add_u32', s(u0), s(sWK), hex(MISC + 16384)); r.valu('v_add_u32', v(vT2), s(u0), v(vU0))
        softmax2(r, QB, PQ, M, E, EE, QB)
    def q_exchange():
        a.salu('s_and_b32', s(u0), s(sCQ), 1); a.scmp('s_cmp_eq_u32', s(u0), 0); a.other("s_cbranch_scc1 L_xw_e")
        a.ds_write('ds_write_b128', v(vT2), v(PQ, 4)); a.other("s_branch L_xw_d")
        a.label("L_xw_e"); a.ds_write('ds_write_b128', v(vT2), v(PQ+4, 4)); a.label("L_xw_d")
        a.valu('v_xor_b32', v(vT2), 1024, v(vT2))
        a.waitcnt(lgkm=0); a.barrier()
        a.salu('s_and_b32', s(u0), s(sCQ), 1); a.scmp('s_cmp_eq_u32', s(u0), 0); a.other("s_cbranch_scc1 L_xr_e")
        a.ds_read('ds_read_b128', v(PQ, 4), v(vT2)); a.other("s_branch L_xr_d")
        a.label("L_xr_e"); a.ds_read('ds_read_b128', v(PQ+4, 4), v(vT2)); a.label("L_xr_d")
    RD = TMP; vRO = aK
    def red_loads():
        for pg in range(2):
            for i in range(3):
                a.bload('buffer_load_dwordx4', v(RD + (pg*3+i)*4, 4), v(vRO + pg), s(S_WS, 4), s(sRED), offset=1152*i, flags=COH)
    def red_issue():
        a.salu('s_mov_b32', s(sRED), -1)
        a.scmp('s_cmp_eq_u32', s(sTH), 0); a.other("s_cbranch_scc1 L_nored1")
        a.salu('s_lshr_b32', s(u1), s(sR), 1)
        a.salu('s_xor_b32', s(u0), s(sR), s(sCQ)); a.scmp('s_cmp_eq_u32', s(u0), 1); a.salu('s_cselect_b32', s(u1), 16, s(u1))
        a.salu('s_cselect_b32', s(u0), 0, s(u0)); a.salu('s_and_b32', s(u0), s(u0), 1); a.scmp('s_cmp_lg_u32', s(u0), 0); a.other("s_cbranch_scc1 L_nored1")
        a.salu('s_lshl_b32', s(sSL), s(u1), 6)
        head_s(u0); a.salu('s_mul_i32', s(u0), s(u0), 32*3456); a.salu('s_add_u32', s(u0), s(u0), s(sSL)); a.salu('s_add_u32', s(sRED), s(u0), hex(PART))
        a.valu('v_lshrrev_b32', v(vU0), 2, v(vL)); a.valu('v_mul_u32_u24', v(vU0), 3456, v(vU0)); a.valu('v_and_b32', v(vU1), 3, v(vL))
        a.valu('v_lshl_add_u32', v(vRO), v(vU1), 4, v(vU0)); a.valu('v_add_u32', v(vRO+1), hex(16*3456), v(vRO))
        red_loads()
        a.label("L_nored1")
        vm.mark = len(vm.q[1])
    def red_finish():
        a.scmp('s_cmp_eq_u32', s(sRED), -1); a.other("s_cbranch_scc1 L_nored2")
        a.waitcnt(vm=len(vm.q[1]) - vm.mark)
        tagcheck([RD + 4*k + 3 for k in range(6)], "red", red_loads, tv=(vU0, vU1))
        V = [RD + 4*(i//3) + i%3 for i in range(8)]; T = [RD + 12 + i for i in range(8)]
        for x in V: a.valu('v_add_f32', v(x), v(x), v(x+12))
        for sh in (8, 4):
            for x in V: a.valu('v_add_f32_dpp', v(x), v(x), v(x), mod=f"row_ror:{sh} " + DPPM)
        allred(a, 'v_add_f32', V, T)
        G = RD + 12
        for i in range(3): a.valu('v_cvt_pk_bf16_f32', v(G+i), v(V[2*i]), v(V[2*i+1]))
        a.valu('v_cvt_pk_bf16_f32', v(G+4), v(V[6]), v(V[7]))
        a.valu('v_mov_b32', v(G+3), s(sTAG)); a.valu('v_mov_b32', v(G+7), s(sTAG))
        head_s(u0); a.salu('s_mul_i32', s(u0), s(u0), 2304); a.salu('s_add_u32', s(u0), s(u0), s(sSL)); a.salu('s_add_u32', s(u0), s(u0), hex(RED))
        a.valu('v_lshlrev_b32', v(vU0), 4, v(vL))
        a.salu('s_mov_b64', 'exec', 15)
        a.bstore('buffer_store_dwordx4', v(G, 4), v(vU0), s(S_WS, 4), s(u0), flags=COH)
        a.bstore('buffer_store_dwordx4', v(G+4, 4), v(vU0), s(S_WS, 4), s(u0), offset=1152, flags=COH)
        a.salu('s_mov_b64', 'exec', -1)
        a.nop(2)
        a.label("L_nored2")
        stamp()
    wait_j('pub', opt('rd1', 2)); b.block(red_issue); mark_j('red')
    def b1_init(hf):
        A0 = ACCB if hf else ACCA
        for e in range(2):
            for tb in range(2):
                for h in range(2):
                    d = A0 + (e*2+tb)*4 + 2*h
                    a.valu('v_lshlrev_b32', v(d), 16, v(vB1+4*hf+2*e+h)); a.valu('v_and_b32', v(d+1), '0xffff0000', v(vB1+4*hf+2*e+h))
    def h_epilogue(r, hf, us):
        A0 = ACCB if hf else ACCA
        r.valu('v_lshlrev_b32', v(vU0), 4, v(vL)); r.salu('s_lshl_b32', s(us[0]), s(sPAR), 10); r.valu('v_add_u32', v(vU0), s(us[0]), v(vU0)); r.valu('v_xor_b32', v(vU1), 1024, v(vU0))
        r.salu('s_mul_i32', s(us[0]), s(sR), 72); r.salu('s_add_u32', s(us[0]), s(us[0]), s(sK0)); r.salu('s_add_u32', s(us[0]), s(us[0]), s(sCQ))
        r.salu('s_lshl_b32', s(us[0]), s(us[0]), 12); r.salu('s_lshl_b32', s(us[1]), s(sTH), 11); r.salu('s_add_u32', s(us[0]), s(us[0]), s(us[1]))
        if hf: r.salu('s_add_u32', s(us[0]), s(us[0]), 4*4096)
        for tb in range(2):
            vals = [A0 + (e*2+tb)*4 + k for e in range(2) for k in range(4)]
            for x in vals: r.valu('v_max_f32', v(x), 0, v(x))
            for x in vals: r.valu('v_mul_f32', v(x), v(x), v(x))
            O = vals[0]
            r.valu('v_cvt_pk_bf16_f32', v(O), v(vals[0]), v(vals[1])); r.valu('v_cvt_pk_bf16_f32', v(O+1), v(vals[2]), v(vals[3]))
            r.valu('v_cvt_pk_bf16_f32', v(O+2), v(vals[4]), v(vals[5])); r.valu('v_cvt_pk_bf16_f32', v(O+3), v(vals[6]), v(vals[7]))
            def stv(O=O, tb=tb):
                a.bstore('buffer_store_dwordx4', v(O, 4), v(vU1 if tb else vU0), s(S_WS, 4), s(us[0]), flags=COH); vm.add(('hst', hf))
            if r is a: stv()
            else: r.block(stv)
    def hf_off(base, ts=(t0, t1)):
        def f():
            a.salu('s_lshl_b32', s(ts[0]), s(sR), 8); a.salu('s_lshl_b32', s(ts[1]), s(sW), 5); a.salu('s_add_u32', s(ts[0]), s(ts[0]), s(ts[1])); a.salu('s_add_u32', s(ts[0]), s(ts[0]), hex(base))
        return f
    def hf_own(base, ts=(t0, t1)):
        def f():
            a.salu('s_lshl_b32', s(ts[0]), s(sR), 8); a.salu('s_lshl_b32', s(ts[1]), s(sC), 5); a.salu('s_add_u32', s(ts[0]), s(ts[0]), s(ts[1]))
            a.salu('s_lshl_b32', s(ts[1]), s(sW), 2); a.salu('s_add_u32', s(ts[0]), s(ts[0]), s(ts[1])); a.salu('s_add_u32', s(ts[0]), s(ts[0]), hex(base))
        return f
    def h_flag(hf):
        def f():
            vwait(('hst', hf)); flag_store(hf_own(F_HB if hf else F_HA, (u0, u1)), ts=u0, tv=(vU0, vU1)); vm.add('fl')
        return f
    b.gate(lambda: st['hs_done'] >= 15)
    h_epilogue(b, 0, (u0, u1)); mark_j('ha')
    wait_j('red', opt('rd2', 2)); b.block(red_finish); mark_j('redf')
    wait_j('ha', 3); b.block(h_flag(0))
    b.gate(lambda: st['hs_done'] >= 23)
    h_epilogue(b, 1, (u0, u1)); mark_j('hb')
    vL4, vL8, vZO, vPOLL = aF, aF + 1, aK, aV
    KVD = ACCA
    def kv_loads():
        a.salu('s_lshl_b32', s(t0), s(sC), 2); a.salu('s_and_b32', s(t1), s(sCQ), 2); a.salu('s_add_u32', s(t0), s(t0), s(t1)); a.salu('s_mul_i32', s(t0), s(t0), 2304)
        a.salu('s_add_u32', s(t0), s(t0), hex(RED))
        for e in range(2):
            for k, vo in enumerate((vL4, vZO)):
                for i in range(2):
                    a.bload('buffer_load_dwordx4', v(KVD + 16*e + 8*k + 4*i, 4), v(vo), s(S_WS, 4), s(t0), offset=2304*e + 1152*i, flags=COH)
    def poll(base):
        def f():
            hf_off(base)(); a.bload('buffer_load_dword', v(vPOLL), v(vL8), s(S_WS, 4), s(t0), flags=COH)
        return f
    b.valu('v_lshlrev_b32', v(vL4), 4, v(vL)); b.valu('v_and_b32', v(vZO), 48, v(vL)); b.valu('v_add_u32', v(vZO), 1024, v(vZO))
    b.valu('v_and_b32', v(vL8), 7, v(vL)); b.valu('v_lshlrev_b32', v(vL8), 2, v(vL8))
    def pha(): poll(F_HA)(); vm.add('ha')
    b.gate(lambda: st['hs_done'] >= 27)
    b.block(pha)
    def bg_take(n):
        k = 0
        while k < n and bg.items:
            it = bg.items[0]
            if isinstance(it, tuple):
                if not it[1](): return
                bg.items.pop(0); continue
            bg.items.pop(0); it(); k += 1
    def interleave(ms, fs, lead=2, per=2, done=None):
        fs = list(fs)
        for _ in range(min(lead, len(fs))): fs.pop(0)()
        for m in ms:
            m()
            for _ in range(min(per, len(fs))): fs.pop(0)()
            bg_take(BGRATE)
        for f in fs: f()
        if done is not None: st['hs_done'] = done
    for j in range(NST):
        st['j'] = j
        vwait(('st', j), lgkm=0); a.barrier(); st['nbar'] += 1
        if j >= 3: stamp('it')
        if j <= 4: stamp('e')
        d = []
        if j == 0: d = dma_ops(3) + dma_ops(4)
        elif j in (1, 2): d = dma_ops(j + 4)
        elif j >= 4: d = dma_ops(j + 3)
        if j == 1:
            a.valu('v_lshrrev_b32', v(vT0), 2, v(vL)); a.valu('v_and_b32', v(vT1), 4, v(vT0)); a.valu('v_and_b32', v(vT2), 7, v(vL))
            a.valu('v_xor_b32', v(vT1), v(vT1), v(vT2)); a.valu('v_lshlrev_b32', v(vT1), 4, v(vT1)); a.valu('v_lshrrev_b32', v(vT2), 3, v(vL))
            a.valu('v_lshl_add_u32', v(vT1), v(vT2), 10, v(vT1)); a.salu('s_lshl_b32', s(t0), s(sC), 7); a.valu('v_add_u32', v(vDW), s(t0), v(vT1))
        if j == opt('w2j', 3):
            def tw(k, sd):
                def f(): a.bload('buffer_load_dword', 'v0', v(vCUR+4+k), s(sd, 4), 0); vm.add('touch')
                return f
            d = d + [tw(0, S_WO), tw(1, S_W2)]
        units = [2*j, 2*j+1] if j < 12 else [24 + 4*(j-12) + i for i in range(4)]
        nd = (len(d) + len(units) - 1) // len(units)
        for n_, u in enumerate(units):
            if n_: a.waitcnt(lgkm=0)
            r = read_ops(u)
            if u == 9:
                kv_convert(); vwait('b1'); b1_init(0)
            if u == 17:
                assert st.get('pub'); b1_init(1)
            dd = d[n_*nd:(n_+1)*nd]
            if u == 0: interleave([], dd + r)
            else: interleave(mfma_ops(u - 1), r + dd, done=u - 1, per=2 if u <= 24 else 3)
            if u == 8: stamp()
    st['j'] = NST
    a.waitcnt(lgkm=0); a.barrier(); st['nbar'] += 1
    interleave(mfma_ops(31), dma_ops(17), lead=0, per=1, done=31)
    st['nbar'] += 100
    bg_take(10000)
    assert not bg.items
    stamp()
    if 'noprio' not in EXP: a.other('s_setprio 3')
    AF = 128; Z0 = 192
    QB2, M2, E2_, EE2, PQ2, KVD2 = Z0, Z0 + 4, Z0 + 8, Z0 + 16, Z0 + 24, Z0 + 32
    afslot = lambda p: p if p < 8 else 0
    vA2 = vF
    A2 = 32; WF2 = 96; aW = vB1; aH = vB1 + 2
    a.salu('s_mul_i32', s(t2), s(sR), 294912)
    a.valu('v_and_b32', v(vT0), 15, v(vL)); a.valu('v_lshrrev_b32', v(vT1), 5, v(vL)); a.valu('v_lshl_add_u32', v(vT0), v(vT1), 4, v(vT0))
    a.valu('v_and_b32', v(vT1), 16, v(vL)); a.valu('v_lshlrev_b32', v(vT1), 6, v(vT1)); a.valu('v_lshl_add_u32', v(vT0), v(vT0), 4, v(vT1))
    a.valu('v_add_u32', v(vA2), s(t2), v(vT0))
    for tb in range(2):
        for h in range(2): a.valu('v_cvt_pk_bf16_f32', v(QB2+2*tb+h), v(ACCQ+tb*4+2*h), v(ACCQ+tb*4+2*h+1))
    def ldA_ops(p):
        ops = []
        for tg in range(2):
            for m in range(2):
                def op(tg=tg, m=m):
                    if p < 7: a.salu('s_lshl_b32', s(t1), s(KS+p), 12)
                    else:
                        a.salu('s_lshl_b32', s(t1), s(sW), 13); a.salu('s_add_u32', s(t1), s(t1), (56 + p - 7) * 4096)
                    if 'fakeA' in EXP:
                        a.salu('s_and_b32', s(t1), s(t1), 0x3ffff)
                        a.bload('buffer_load_dwordx4', v(AF + (afslot(p)*4+tg*2+m)*4, 4), v(vL4), s(S_W2, 4), s(t1), offset=tg*2048 + m*1024); vm.add(('A', p)); return
                    a.bload('buffer_load_dwordx4', v(AF + (afslot(p)*4+tg*2+m)*4, 4), v(vA2), s(S_WS, 4), s(t1), offset=tg*2048 + m*512, flags=('' if 'plainA' in EXP else COH)); vm.add(('A', p))
                ops.append(op)
        return ops
    def kv_loads2():
        for e in range(2):
            head_s(u0)
            if e: a.salu('s_xor_b32', s(u0), s(u0), 1)
            a.salu('s_mul_i32', s(u0), s(u0), 2304); a.salu('s_add_u32', s(u0), s(u0), hex(RED))
            for k, vo in enumerate((vL4, vZO)):
                for i in range(2):
                    a.bload('buffer_load_dwordx4', v(KVD2 + 16*e + 8*k + 4*i, 4), v(vo), s(S_WS, 4), s(u0), offset=1152*i, flags=COH)
    a.valu('v_lshl_or_b32', v(vWP2), v(vWP2+2), 16, v(vWP2)); a.valu('v_lshl_or_b32', v(vWP2+1), v(vWP2+3), 16, v(vWP2+1))
    vwait('ha'); tagcheck([vPOLL], "ha", poll(F_HA))
    for op in ldA_ops(0): op()
    b.valu('v_and_b32', v(vT1), 15, v(vL)); b.valu('v_lshrrev_b32', v(vT2), 2, v(vT1)); b.valu('v_lshrrev_b32', v(vT0), 5, v(vL)); b.valu('v_lshl_add_u32', v(vCUR), v(vT0), 2, v(vT2))
    b.valu('v_and_b32', v(vT2), 2, v(vT2)); b.valu('v_lshrrev_b32', v(vT0), 4, v(vL)); b.valu('v_and_b32', v(vT0), 1, v(vT0)); b.valu('v_or_b32', v(vT2), v(vT2), v(vT0))
    b.valu('v_and_b32', v(vT1), 3, v(vT1)); b.valu('v_lshlrev_b32', v(vT1), 3, v(vT1)); b.valu('v_lshl_add_u32', v(vT1), v(vT2), 5, v(vT1))
    b.valu('v_lshl_add_u32', v(vT1), v(vCUR), 7, v(vT1)); b.salu('s_lshl_b32', s(u0), s(sWK), 2); b.valu('v_add_u32', v(aW), s(u0), v(vT1))
    b.valu('v_xor_b32', v(aW+1), 64, v(aW))
    for nb in range(2): b.valu('v_add_u32', v(aH+nb), '0x10000', v(aW+nb))
    NSETUP = len(b.items)
    softmax2(b, QB2, PQ2, M2, E2_, EE2, QB2, WPs=(vWP, vWP2))
    def kvchk():
        vwait('kvd'); tagcheck([KVD2 + 4*k + 3 for k in range(8)], "kvd", kv_loads2, tv=(vU0, vU1)); stamp()
    b.block(kvchk)
    for k in range(4): b.valu('v_mov_b32', v(KVD2 + 8*k + 3), v(KVD2 + 8*k + 4))
    b.salu('s_mul_i32', s(u0), s(sR), 72); b.salu('s_lshl_b32', s(u1), s(sC), 1); b.salu('s_add_u32', s(u0), s(u0), s(u1))
    for e in range(2):
        b.mfma(v(E2_ + 8*e, 4), v(KVD2 + 16*e, 4), v(PQ2 + 4*e, 4), 0); b.mfma(v(E2_ + 8*e + 4, 4), v(KVD2 + 16*e + 8, 4), v(PQ2 + 4*e, 4), 0)
    b.salu('s_lshr_b32', s(u1), s(sCQ), 1); b.salu('s_add_u32', s(u0), s(u0), s(u1)); b.salu('s_add_u32', s(u0), s(u0), 56); b.salu('s_lshl_b32', s(u0), s(u0), 12)
    b.salu('s_lshl_b32', s(u1), s(sTH), 11); b.salu('s_add_u32', s(u0), s(u0), s(u1))
    b.salu('s_lshl_b32', s(u1), s(sPAR), 10); b.salu('s_add_u32', s(u0), s(u0), s(u1))
    for e in range(2):
        KV = E2_ + 8*e; Z = KV + 4; T = QB2; O = M2 + 2*e
        rbf_pairs(b, [KV+i for i in range(4)], [T, T+1])
        b.valu('v_cvt_pk_bf16_f32', v(Z), v(Z), v(Z)); b.valu('v_lshlrev_b32', v(Z), 16, v(Z))
        b.valu('v_add_f32', v(Z), '0x358637bd', v(Z))
        b.valu('v_cvt_pk_bf16_f32', v(Z), v(Z), v(Z)); b.valu('v_lshlrev_b32', v(Z), 16, v(Z))
        b.valu('v_rcp_f32', v(Z+1), v(Z))
        b.valu('v_fma_f32', v(Z+2), '-' + v(Z), v(Z+1), 1.0); b.valu('v_fma_f32', v(Z+1), v(Z+2), v(Z+1), v(Z+1))
        for i in range(4): b.valu('v_mul_f32', v(KV+i), v(KV+i), v(Z+1))
        b.valu('v_cvt_pk_bf16_f32', v(O), v(KV), v(KV+1)); b.valu('v_cvt_pk_bf16_f32', v(O+1), v(KV+2), v(KV+3))
    def ost():
        a.scmp('s_cmp_eq_u32', s(sPAR), 0); a.other("s_cbranch_scc1 L_nosw")
        a.valu('v_swap_b32', v(M2), v(M2+2), extra_w=[v(M2+2)], rmw=True); a.valu('v_swap_b32', v(M2+1), v(M2+3), extra_w=[v(M2+3)], rmw=True)
        a.label("L_nosw")
        a.bstore('buffer_store_dwordx4', v(M2, 4), v(vL4), s(S_WS, 4), s(u0), flags=COH); vm.add('ost')
    b.block(ost)
    def odone(): st['odone'] = True; stamp()
    b.block(odone)
    def hbf():
        vwait(('hst', 1)); flag_store(hf_own(F_HB), tv=(vCUR+4, vCUR+5)); vm.add('fl')
    def kvl(): kv_loads2(); vm.add('kvd', 8)
    def phb(): poll(F_HB)(); vm.add('hb')
    hbf(); kvl()
    pre = ldA_ops(1) + ldA_ops(2)
    QE = opt('qe', 16)
    bg_take(NSETUP)
    for x in pre:
        bg_take(QE); x()
    srd(a, S_B2, 20, 1024); srd(a, S_OUT, 22, 2097152)
    stamp()
    def reads2(p):
        sb = REG(14 + p); hi = sb >= 65536; lo = sb - (65536 if hi else 0)
        ops = []
        for m in range(2):
            for nb in range(2):
                r0 = WF2 + (p & 1) * 16 + (m*2+nb) * 4; bb = (aH if hi else aW) + nb
                ops.append(lambda r0=r0, bb=bb, m=m: a.ds_read('ds_read_b64_tr_b16', v(r0, 2), v(bb), offset=lo + m*1024))
                ops.append(lambda r0=r0, bb=bb, m=m: a.ds_read('ds_read_b64_tr_b16', v(r0+2, 2), v(bb), offset=lo + m*1024 + 2048))
        return ops
    def mfmas2(p):
        ops = []
        for m in range(2):
            for nb in range(2):
                for tg in range(2):
                    d = v(A2 + (nb*2+tg)*16, 16)
                    ops.append(lambda d=d, nb=nb, tg=tg, m=m: a.mfma(d, v(WF2 + (p & 1)*16 + (m*2+nb)*4, 4), v(AF + (afslot(p)*4+tg*2+m)*4, 4), d if (p or m) else 0, op='v_mfma_f32_32x32x16_bf16'))
        return ops
    vXX, vBB, vOO = AF + 16, AF + 20, vAO
    def xb():
        a.valu('v_lshrrev_b32', v(vT0), 3, v(vL)); a.valu('v_lshlrev_b32', v(vT1), 2, v(vL8))
        a.salu('s_lshl_b32', s(t0), s(sR), 6); a.salu('s_lshl_b32', s(t1), s(sW), 3); a.salu('s_add_u32', s(t0), s(t0), s(t1))
        a.valu('v_add_u32', v(vT0), s(t0), v(vT0)); a.valu('v_lshl_add_u32', v(vOO), v(vT0), 10, v(vT1))
        a.salu('s_lshl_b32', s(t3), s(sC), 7)
        a.bload('buffer_load_dwordx4', v(vXX, 4), v(vOO), s(S_X, 4), s(t3)); a.bload('buffer_load_dwordx4', v(vBB, 4), v(vT1), s(S_B2, 4), s(t3)); vm.add('xb', 2)
    def off_(): vwait('ost'); flag_store(hf_own(F_OF)); vm.add('fl')
    def pof(): poll(F_OF)(); vm.add('of')
    HBP = opt('hbp', 3); OFP = opt('ofp', 6); DRP = opt('drp', 2)
    pend = []; late = []
    for p in range(10):
        stamp('p2')
        fill = []
        if p < 9:
            vwait(('st', 14 + p), lgkm=0)
            fill = reads2(p)
        else: a.waitcnt(lgkm=0)
        vs = []
        if p == DRP:
            bg_take(10000); phb()
        if p == HBP:
            vwait('hb')
            flag_store(hf_own(F_OF)); vm.add('fl')
            if 'noprio' not in EXP: a.other('s_setprio 0')
            if 'bar2' in EXP: a.barrier()
            tagcheck([vPOLL], "hb", poll(F_HB))
            pend += ldA_ops(3) + ldA_ops(4) + ldA_ops(5) + ldA_ops(6)
            if HBP >= 3:
                for f in pend[:4]: f()
                pend = pend[4:]
        if p == OFP - 2: vs.append(pof)
        if p == OFP:
            vwait('of'); tagcheck([vPOLL], "of", poll(F_OF))
            pend += ldA_ops(7) + ldA_ops(8)
        if p == 4: vs.append(xb)
        n = opt('pace', 8)
        vs += pend[:n]; pend = pend[n:]
        if 1 <= p and p + 3 <= 8: vs += dma_ops(14 + p + 3)
        if p >= 1:
            for f in fill[:4]: f()
            fill = fill[4:]
            vwait(('A', p-1))
            interleave(mfmas2(p - 1), fill + vs, lead=0, per=2)
        else:
            for f in fill + vs: f()
    assert not pend and not late and not bg.items
    stamp(); stamp('p2')
    a.valu('v_lshrrev_b32', v(vT0), 5, v(vL)); a.valu('v_and_b32', v(vT1), 15, v(vL)); a.valu('v_xor_b32', v(vT0), v(vT0), v(vT1))
    a.valu('v_lshlrev_b32', v(vT0), 4, v(vT0)); a.valu('v_lshl_add_u32', v(vT0), v(vT1), 8, v(vT0))
    a.valu('v_and_b32', v(vT1), 16, v(vL)); a.valu('v_lshl_add_u32', v(vT0), v(vT1), 11, v(vT0)); a.salu('s_lshl_b32', s(t1), s(sWK), 2)
    WA = WF2
    a.valu('v_add_u32', v(WA), s(t1), v(vT0))
    for u in range(1, 8): a.valu('v_xor_b32', v(WA+u), u << 5, v(WA))
    for tg in range(2):
        if tg:
            for u in range(8): a.valu('v_add_u32', v(WA+u), '0x10000', v(WA+u))
        for nb in range(2):
            for q in range(4): a.ds_write('ds_write_b128', v(WA + nb*4 + q), v(A2 + (nb*2+tg)*16 + 4*q, 4))
    a.valu('v_lshrrev_b32', v(vT0), 3, v(vL)); a.salu('s_and_b32', s(t1), s(sW), 1); a.salu('s_lshl_b32', s(t1), s(t1), 3); a.valu('v_add_u32', v(vT0), s(t1), v(vT0))
    a.valu('v_lshrrev_b32', v(vT1), 1, v(vL8)); a.valu('v_xor_b32', v(vT1), v(vT1), v(vT0))
    a.valu('v_lshlrev_b32', v(vT1), 4, v(vT1))
    RA = vCUR
    a.valu('v_lshl_add_u32', v(RA), v(vT0), 8, v(vT1)); a.salu('s_lshr_b32', s(t1), s(sW), 1); a.salu('s_lshl_b32', s(t1), s(t1), 15)
    a.valu('v_add_u32', v(RA), s(t1), v(RA)); a.valu('v_xor_b32', v(RA+1), 16, v(RA))
    U = WF2 + 8
    for i in range(4):
        a.valu('v_lshlrev_b32', v(U+2*i), 16, v(vBB+i)); a.valu('v_and_b32', v(U+2*i+1), '0xffff0000', v(vBB+i))
        a.valu('v_lshlrev_b32', v(U+8+2*i), 16, v(vXX+i)); a.valu('v_and_b32', v(U+8+2*i+1), '0xffff0000', v(vXX+i))
    for i in range(8): a.valu('v_add_f32', v(U+i), v(U+i), v(U+8+i))
    a.waitcnt(lgkm=0); a.barrier()
    R = AF + 32
    for p in range(8):
        for e in range(2): a.ds_read('ds_read_b128', v(R + (p*2+e)*4, 4), v(RA + e), offset=p * 4096)
    for p in range(8):
        a.waitcnt(lgkm=14 - 2*p)
        for i in range(8): a.valu('v_add_f32', v(U+i), v(U+i), v(R+p*8+i))
    for i in range(4): a.valu('v_cvt_pk_bf16_f32', v(R+i), v(U+2*i), v(U+2*i+1))
    a.bstore('buffer_store_dwordx4', v(R, 4), v(vOO), s(S_OUT, 4), s(t3))
    a.salu('s_or_b32', s(t0), 's2', s(sW)); a.scmp('s_cmp_lg_u32', s(t0), 0); a.other("s_cbranch_scc1 L_noep")
    flag_store(lambda: a.salu('s_mov_b32', s(t0), hex(F_EPOCH)))
    a.label("L_noep")
    if 'dbg' in EXP:
        d = S_WQ; vt = TMP
        a.other(f"s_memrealtime {s(S_W1,2)}")
        a.scmp('s_cmp_lg_u32', s(sW), 0); a.other("s_cbranch_scc1 L_end")
        a.waitcnt(lgkm=0)
        a.salu('s_mov_b32', s(d), s(DBGP)); a.salu('s_and_b32', s(d+1), s(DBGP+1), 0xffff); a.salu('s_mov_b32', s(d+2), 256); a.salu('s_mov_b32', s(d+3), '0x00020000')
        a.valu('v_mov_b32', v(vt+2), 0); a.salu('s_mov_b64', 'exec', 1)
        a.salu('s_not_b32', s(t0), s(stamp_pairs[0])); a.valu('v_mov_b32', v(vt), s(t0))
        a.bstore('buffer_atomic_umax', v(vt), v(vt+2), s(d, 4), 0, offset=0, flags='sc1')
        for i, pr in enumerate(stamp_pairs[1:nst[0]] + [S_W1]):
            a.valu('v_mov_b32', v(vt+1), s(pr)); a.bstore('buffer_atomic_umax', v(vt+1), v(vt+2), s(d, 4), 0, offset=4 + 4*i, flags='sc1'); a.waitcnt(vm=0)
    elif STAMPS:
        d = S_WQ; vt = TMP
        a.other(f"{'s_memtime' if 'clk' in EXP else 's_memrealtime'} {s(S_W1,2)}")
        a.waitcnt(lgkm=0)
        a.salu('s_add_u32', s(d), s(S_WS), hex(STAMP_OFF)); a.salu('s_addc_u32', s(d+1), s(S_WS+1), 0)
        a.salu('s_mov_b32', s(d+2), '0x100000'); a.salu('s_mov_b32', s(d+3), '0x00020000')
        a.salu('s_lshl_b32', 's3', s(sW), 15); a.salu('s_lshl_b32', s(t0), 's2', 7); a.salu('s_add_u32', 's3', 's3', s(t0))
        a.valu('v_mov_b32', v(vt+2), 0); a.salu('s_mov_b64', 'exec', 1)
        for i, pr in enumerate(stamp_pairs[:nst[0]] + [S_W1]):
            a.valu('v_mov_b32', v(vt), s(pr)); a.valu('v_mov_b32', v(vt+1), s(pr+1))
            a.bstore('buffer_store_dwordx2', v(vt, 2), v(vt+2), s(d, 4), 's3', offset=i * 8); a.waitcnt(vm=0)
    a.label("L_end"); a.other("s_endpgm")
    a.label("L_code_end")
    sys.stderr.write(f"marks {st['marks']} nins {a.nins}\n")
    return a.text(), kernel_desc(kn, 256), 163840

k, d, l = gen()
hdr = open("cdna_kernels/" + NAME + ".s.ref").read().split("; Override")[0]
out = hdr + f"; @launch grid=(256,1,1) block=(512,1,1) lds={l}\n"
out += f'.amdgcn_target "amdgcn-amd-amdhsa--gfx950"\n.text\n.set CODE_BYTES, L_code_end - {NAME}_kernel - 128\n' + k
out += '.section .rodata,"a"\n.p2align 6\n' + d
sys.stdout.write(out)
```

```python
import sys
from asmlib import *
STAMPS = '--stamps' in sys.argv
EXP = [x[2:] for x in sys.argv[1:] if x.startswith('--')]
def opt(name, default):
    for x in EXP:
        if x.startswith(name + '='): return int(x.split('=')[1])
    return default
NAME = "parallel_sum__linear_kernel_hedgehog__dense_activation_squared_relu__prompt"
PART = 0x1000000; RED = 0x1800000; FL = 0x1A00000; WS_BYTES = 0x2000000; STAMP_OFF = 0x8000000
F_EPOCH = FL; F_HA = FL + 0x4000; F_HB = FL + 0x8000; F_OF = FL + 0xC000
PSTR = 6144
RSTR = 3072
L2E = 0x3fb8aa3b
DPPM = "row_mask:0xf bank_mask:0xf"
COH = "sc0 sc1"
M32 = 'v_mfma_f32_32x32x16_bf16'

class VM:
    def __init__(self): self.q = []
    def add(self, tag, n=1): self.q += [tag] * n
    def need(self, *tags):
        last = -1
        for i, t in enumerate(self.q):
            if t in tags: last = i
        assert last >= 0, tags
        return min(63, len(self.q) - 1 - last)

class Rec:
    def __init__(self, a): self.a = a; self.items = []
    def __getattr__(self, name):
        f = getattr(self.a, name)
        def rec(*args, **kw): self.items.append(lambda: f(*args, **kw))
        return rec
    def block(self, fn): self.items.append(fn)
    def gate(self, cond): self.items.append(('gate', cond))

def srd(a, d, base, nbytes):
    a.salu('s_mov_b32', s(d), s(base)); a.salu('s_and_b32', s(d+1), s(base+1), 0xffff)
    a.salu('s_mov_b32', s(d+2), hex(nbytes)); a.salu('s_mov_b32', s(d+3), '0x00020000')

def rbf_pairs(a, vals, tmp):
    for i in range(0, len(vals), 2):
        a.valu('v_cvt_pk_bf16_f32', v(tmp[i//2]), v(vals[i]), v(vals[i+1]))
    for i in range(0, len(vals), 2):
        a.valu('v_lshlrev_b32', v(vals[i]), 16, v(tmp[i//2]))
        a.valu('v_and_b32', v(vals[i+1]), '0xffff0000', v(tmp[i//2]))

def gen():
    a = Asm(); vm = VM()
    kn = NAME + "_kernel"
    a.raw(kernel_header(kn))
    S_X, S_WQ, S_W1, S_WP, S_B1, S_WS, S_W2, S_WO, S_B2, S_OUT = 24, 28, 32, 36, 40, 44, 48, 52, 36, 40
    sR, sC, sW, sROT, sWK, sHP, sPAR, sK0, sTAG = 56, 57, 58, 59, 60, 61, 62, 63, 64
    t0, t1, t2, t3 = 65, 66, 67, 68
    T1 = 70; KS = 4
    sSPIN = 86; sRED = 69; sSL = 3; sMSK = 88
    u0, u1 = 0, 1
    stamp_pairs = [90, 92, 94, 96, 98, 100, 18]
    nst = [0]
    want = [int(x) for x in (next((e.split('=')[1] for e in EXP if e.startswith('sel=')), '0,1,2,3,4,5,6')).split(',')]
    sid = [0]
    def stamp(kind='n'):
        mode = 'it' if 'iters' in EXP else ('p2' if 'p2' in EXP else 'n')
        if not STAMPS or not (kind == mode or sid[0] == 0): return
        if sid[0] in want and nst[0] < len(stamp_pairs):
            a.other(f"s_memrealtime {s(stamp_pairs[nst[0]],2)}"); nst[0] += 1
        sid[0] += 1
    def vwait(*tags, lgkm=None): a.waitcnt(vm=vm.need(*tags), lgkm=lgkm)
    a.scmp('s_cmp_ge_u32', 's2', 256); a.other("s_cbranch_scc1 L_end")
    stamp()
    for d, off in ((4, 0), (14, 88), (6, 8), (8, 16), (10, 40), (12, 48), (16, 56), (18, 24), (20, 64), (22, 72)):
        a.other(f"s_load_dwordx2 {s(d,2)}, s[0:1], {off}")
    vL, vKV, vF, vQ, aKV, aF, aQ, vCUR, vU0, vU1, vC1 = 1, 2, 3, 4, 5, 6, 7, 8, 9, 10, 11
    vWPO, vIP, vIM = 12, 16, 20
    vTW = 24
    vEP = 28; vT0, vT1, vT2 = 29, 30, 31
    ACCA = 32; ACCB = 64; ACCQ = 96; WF0 = 112; WF1 = 176; SP0 = 144; SP1 = 208; TMP = 240
    a.valu('v_lshrrev_b32', v(vT0), 6, 'v0'); a.valu('v_and_b32', v(vL), 63, 'v0')
    a.valu('v_readfirstlane_b32', s(sW), v(vT0))
    a.salu('s_and_b32', s(t0), 's2', 7); a.salu('s_lshr_b32', s(t1), 's2', 3)
    if 'nopf' not in EXP:
        a.other(f"s_getpc_b64 {s(S_W2,2)}")
        a.salu('s_and_b32', s(S_W2+1), s(S_W2+1), 0xffff); a.salu('s_mov_b32', s(S_W2+2), 'CODE_BYTES'); a.salu('s_mov_b32', s(S_W2+3), '0x00020000')
        a.salu('s_and_b32', s(t2), s(t1), 3); a.salu('s_lshl_b32', s(t2), s(t2), 13)
        a.valu('v_lshlrev_b32', v(vT1), 7, v(vL))
        a.scmp('s_cmp_lg_u32', s(sW), 3); a.other("s_cbranch_scc1 L_nopf")
        a.bload('buffer_load_dword', v(vEP), v(vT1), s(S_W2, 4), s(t2))
        a.label("L_nopf")
    a.salu('s_lshr_b32', s(t2), s(t0), 1); a.salu('s_lshl_b32', s(t2), s(t2), 3); a.salu('s_lshr_b32', s(t3), s(t1), 2)
    a.salu('s_add_u32', s(sR), s(t2), s(t3))
    a.salu('s_and_b32', s(t2), s(t0), 1); a.salu('s_lshl_b32', s(t2), s(t2), 2); a.salu('s_and_b32', s(sC), s(t1), 3)
    a.salu('s_add_u32', s(sC), s(sC), s(t2))
    a.valu('v_lshrrev_b32', v(vT0), 3, v(vL)); a.valu('v_and_b32', v(vT1), 7, v(vL))
    a.salu('s_lshl_b32', s(t0), s(sR), 6); a.salu('s_lshl_b32', s(t1), s(sW), 4); a.salu('s_add_u32', s(t0), s(t0), s(t1))
    a.valu('v_add_u32', v(vT2), s(t0), v(vT0)); a.valu('v_lshlrev_b32', v(vT2), 10, v(vT2)); a.valu('v_lshl_add_u32', v(vT2), v(vT1), 4, v(vT2))
    a.waitcnt(lgkm=0)
    srd(a, S_X, 4, 2097152)
    X0 = 32; F = 96
    for gq in range(2):
        for j in range(8):
            a.salu('s_add_u32', s(t2), s(t3), j); a.salu('s_and_b32', s(t2), s(t2), 7); a.salu('s_lshl_b32', s(t2), s(t2), 7)
            if gq: a.salu('s_add_u32', s(t2), s(t2), 8192)
            a.bload('buffer_load_dwordx4', v(X0+32*gq+4*j, 4), v(vT2), s(S_X, 4), s(t2)); vm.add(('x', gq))
        if gq == 0:
            srd(a, S_WS, 14, WS_BYTES)
            a.valu('v_mov_b32', v(TMP), 0); a.salu('s_mov_b32', s(t2), hex(F_EPOCH))
            a.bload('buffer_load_dword', v(vEP), v(TMP), s(S_WS, 4), s(t2), flags=COH); vm.add(('x', 0))
    if 'gt' in EXP:
        G0 = S_W2
        a.scmp('s_cmp_eq_u32', s(sW), 0); a.salu('s_cselect_b32', s(G0), s(6), s(10)); a.salu('s_cselect_b32', s(G0+1), s(7), s(11)); a.salu('s_cselect_b32', s(t2), 48, 56)
        a.scmp('s_cmp_eq_u32', s(sW), 2); a.salu('s_cselect_b32', s(G0), s(16), s(G0)); a.salu('s_cselect_b32', s(G0+1), s(17), s(G0+1))
        a.scmp('s_cmp_eq_u32', s(sW), 3); a.salu('s_cselect_b32', s(G0), s(18), s(G0)); a.salu('s_cselect_b32', s(G0+1), s(19), s(G0+1)); a.salu('s_cselect_b32', s(t2), 16, s(t2))
        a.salu('s_and_b32', s(G0+1), s(G0+1), 0xffff); a.salu('s_lshl_b32', s(G0+2), s(t2), 15); a.salu('s_mov_b32', s(G0+3), '0x00020000')
        a.salu('s_sub_u32', s(t0), s(t2), 1); a.valu('v_min_u32', v(TMP+1), s(t0), v(vL)); a.valu('v_lshlrev_b32', v(TMP+1), 7, v(TMP+1))
        a.salu('s_mul_i32', s(t2), s(t2), 's2'); a.salu('s_lshl_b32', s(t2), s(t2), 7)
        a.bload('buffer_load_dword', 'v0', v(TMP+1), s(G0, 4), s(t2)); vm.add('gt')
    if 'tlb' in EXP:
        G1 = S_W1
        a.valu('v_and_b32', v(TMP+2), 15, v(vL)); a.valu('v_lshlrev_b32', v(TMP+2), 21, v(TMP+2)); a.valu('v_mov_b32', v(TMP+3), 0)
        a.salu('s_mov_b32', s(t2), '0x1fff80')
        TL = 2
        if TL is not None:
            a.scmp('s_cmp_lg_u32', s(sW), TL); a.other("s_cbranch_scc1 L_notlb")
        a.bload('buffer_load_dword', 'v0', v(TMP+2), s(S_WS, 4), s(t2), flags=COH)
        for base in (22, 20, 12, 8, 16, 18, 10):
            srd(a, G1, base, 1024); a.bload('buffer_load_dword', 'v0', v(TMP+3), s(G1, 4), 0)
        if TL is not None: a.label("L_notlb")
    a.salu('s_lshl_b32', s(sROT), s(t3), 1)
    a.salu('s_lshl_b32', s(sWK), s(sW), 10); a.salu('s_lshr_b32', s(sHP), s(sW), 1); a.salu('s_and_b32', s(sPAR), s(sW), 1)
    a.salu('s_mul_i32', s(sK0), s(sC), 7); a.salu('s_and_b32', s(t2), s(sC), 1); a.salu('s_sub_u32', s(sK0), s(sK0), s(t2))
    srd(a, S_WQ, 6, 1572864)
    for p in range(16):
        a.salu('s_add_u32', s(T1+p), s(sROT), p); a.salu('s_and_b32', s(T1+p), s(T1+p), 15)
    vXW = 26
    a.valu('v_xor_b32', v(vT2), v(vT0), v(vT1)); a.valu('v_lshlrev_b32', v(vT2), 4, v(vT2))
    a.valu('v_add_u32', v(vT0), s(t1), v(vT0)); a.valu('v_lshl_add_u32', v(vXW), v(vT0), 10, v(vT2))
    vG, vI, vRW = TMP + 1, TMP + 2, TMP + 3
    a.valu('v_lshrrev_b32', v(vG), 4, v(vL)); a.valu('v_and_b32', v(vI), 15, v(vL))
    a.salu('s_lshl_b32', s(t0), s(sW), 2); a.valu('v_add_u32', v(vRW), s(t0), v(vG))
    a.valu('v_lshlrev_b32', v(vT0), 1, v(vG)); a.valu('v_xor_b32', v(vT0), v(vT0), v(vI))
    a.valu('v_lshrrev_b32', v(vT1), 3, v(vT0)); a.valu('v_lshlrev_b32', v(vT1), 10, v(vT1))
    a.valu('v_and_b32', v(vT0), 7, v(vT0)); a.valu('v_lshl_add_u32', v(vT1), v(vT0), 4, v(vT1))
    a.valu('v_mul_u32_u24', v(vT0), 3072, v(vRW)); a.valu('v_add_u32', v(vT1), v(vT1), v(vT0))
    a.salu('s_lshl_b32', s(t0), s(sC), 7); a.salu('s_add_u32', s(t0), s(t0), 1024)
    a.valu('v_add_u32', v(vKV), s(t0), v(vT1))
    NST = 14
    REG = lambda i: {0: 2, 1: 3, 2: 4}.get(i, (i - 3) % 4) * 32768
    MISC = 4 * 32768
    vDW = vKV
    POS = [('h', i) for i in range(14)] + [('o', i) for i in range(4)]
    def dma_ops(i):
        ops = []
        for q in range(8):
            def op(q=q):
                if i < 14: a.salu('s_add_u32', 'm0', s(sWK), hex(REG(i) + q * 4096))
                if i < 4:
                    a.salu('s_mul_i32', s(t0), s(T1 + 4*i + (q >> 1)), 98304)
                    if q & 1: a.salu('s_add_u32', s(t0), s(t0), 16 * 3072)
                    a.bload_lds(v(vKV), s(S_WQ, 4), s(t0))
                elif i < 12:
                    hf = (i - 4) >> 2; jj = (i - 4) & 3
                    a.salu('s_mul_i32', s(t0), s(T1 + 4*jj + (q >> 1)), 114688)
                    if (q & 1) or hf: a.salu('s_add_u32', s(t0), s(t0), (q & 1) * 16 * 3584 + hf * 256)
                    a.bload_lds(v(vF), s(S_W1, 4), s(t0))
                elif i < 14:
                    a.salu('s_mul_i32', s(t0), s(T1 + 8*(i-12) + q), 98304); a.bload_lds(v(vQ), s(S_WQ, 4), s(t0))
                else:
                    p = 2 * (i - 14) + (q >> 2); q4 = q & 3
                    a.salu('s_lshl_b32', s(t1), s(sWK), 3); a.salu('s_add_u32', 'm0', s(t1), hex(REG(i) + q * 1024))
                    if POS[p][0] == 'h':
                        a.salu('s_lshl_b32', s(t0), s(KS+POS[p][1]), 15)
                        if q4: a.salu('s_add_u32', s(t0), s(t0), q4 * 8192)
                        a.bload_lds(v(vDW), s(S_W2, 4), s(t0))
                    else:
                        a.salu('s_lshl_b32', s(t0), s(sW), 17); a.salu('s_add_u32', s(t0), s(t0), POS[p][1] * 32768 + q4 * 8192)
                        a.bload_lds(v(vDW), s(S_WO, 4), s(t0))
                vm.add(('st', i))
            ops.append(op)
        return ops
    a.barrier()
    NPRE = opt('npre', 6)
    early = dma_ops(0) + dma_ops(1) + dma_ops(2)
    for op in early[:NPRE]: op()
    early = early[NPRE:]
    srd(a, S_WP, 8, 16384); srd(a, S_B1, 12, 3584)
    srd(a, S_W1, 10, 1835008); srd(a, S_W2, 16, 1835008); srd(a, S_WO, 18, 524288)
    a.valu('v_lshlrev_b32', v(vT0), 2, v(vG)); a.valu('v_xor_b32', v(vT0), v(vT0), v(vI))
    a.valu('v_mul_u32_u24', v(vT1), 3584, v(vRW)); a.valu('v_lshl_add_u32', v(vT1), v(vT0), 4, v(vT1))
    a.salu('s_lshl_b32', s(t0), s(sK0), 6); a.valu('v_add_u32', v(vF), s(t0), v(vT1))
    vDC = TMP + 4
    a.valu('v_lshrrev_b32', v(vT0), 2, v(vL)); a.valu('v_and_b32', v(vT0), 4, v(vT0)); a.valu('v_and_b32', v(vT1), 7, v(vL)); a.valu('v_xor_b32', v(vDC), v(vT0), v(vT1))
    a.valu('v_lshrrev_b32', v(vT0), 3, v(vL)); a.salu('s_lshl_b32', s(t0), s(sW), 3); a.valu('v_add_u32', v(vT0), s(t0), v(vT0))
    a.valu('v_mul_u32_u24', v(vT0), 3072, v(vT0)); a.valu('v_lshl_add_u32', v(vT0), v(vDC), 4, v(vT0))
    a.salu('s_lshl_b32', s(t0), s(sC), 7); a.valu('v_add_u32', v(vQ), s(t0), v(vT0))
    vTA = TMP + 8
    if 'notouch' not in EXP:
        a.salu('s_lshr_b32', s(t0), 's2', 3); a.salu('s_lshl_b32', s(t0), s(t0), 2); a.salu('s_add_u32', s(t0), s(t0), s(sW))
        a.salu('s_lshr_b32', s(t2), s(sC), 2); a.salu('s_lshl_b32', s(t1), s(t0), 2)
        a.valu('v_add_u32', v(vT0), s(t1), v(vG)); a.valu('v_mul_u32_u24', v(vT1), 3584, v(vT0)); a.valu('v_min_u32', v(vT2), 13, v(vI)); a.valu('v_lshl_add_u32', v(vT1), v(vT2), 7, v(vT1))
        a.salu('s_mul_i32', s(t3), s(t2), 1792); a.valu('v_add_u32', v(vTA), s(t3), v(vT1))
        a.valu('v_and_b32', v(vT2), 3, v(vL)); a.valu('v_lshlrev_b32', v(vT2), 7, v(vT2)); a.salu('s_lshl_b32', s(t3), s(t2), 9); a.valu('v_add_u32', v(vT2), s(t3), v(vT2))
        a.valu('v_lshrrev_b32', v(vT0), 2, v(vL)); a.valu('v_and_b32', v(vT1), 3, v(vT0)); a.valu('v_add_u32', v(vT1), s(t1), v(vT1))
        a.valu('v_lshl_add_u32', v(vTW), v(vT1), 10, v(vT2))
        a.valu('v_mul_u32_u24', v(vT1), 3072, v(vT1)); a.valu('v_add_u32', v(vTA+1), v(vT1), v(vT2))
        a.salu('s_mul_i32', s(t0), s(t0), 14); a.valu('v_min_u32', v(vT0), 13, v(vT0)); a.valu('v_add_u32', v(vT0), s(t0), v(vT0))
        a.valu('v_lshl_add_u32', v(vTW+1), v(vT0), 10, v(vT2))
        for k, sd in enumerate((S_W1, S_WQ)):
            def op(k=k, sd=sd):
                a.bload('buffer_load_dword', 'v0', v(vTA+k), s(sd, 4), 0); vm.add('touch')
            early.append(op)
    vRR, vROW, vNH, vC8 = TMP + 5, TMP + 6, TMP + 7, TMP + 10
    a.valu('v_lshrrev_b32', v(vRR), 2, v(vI)); a.valu('v_lshrrev_b32', v(vT0), 1, v(vG)); a.valu('v_lshl_add_u32', v(vROW), v(vT0), 3, v(vRR))
    a.valu('v_and_b32', v(vNH), 1, v(vG)); a.valu('v_and_b32', v(vC8), 3, v(vI)); a.valu('v_lshlrev_b32', v(vC8), 3, v(vC8))
    a.valu('v_lshlrev_b32', v(vT1), 2, v(vNH)); a.valu('v_or_b32', v(vT1), s(sW), v(vT1)); a.valu('v_xor_b32', v(vT1), v(vT1), v(vRR))
    a.valu('v_lshl_add_u32', v(vT1), v(vT1), 5, v(vC8)); a.valu('v_lshl_add_u32', v(aKV), v(vROW), 8, v(vT1))
    a.valu('v_xor_b32', v(vT1), s(sW), v(vRR)); a.valu('v_lshl_or_b32', v(vT1), v(vT1), 1, v(vNH))
    a.valu('v_lshl_add_u32', v(vT1), v(vT1), 5, v(vC8)); a.valu('v_lshl_add_u32', v(aF), v(vROW), 8, v(vT1))
    a.valu('v_lshrrev_b32', v(vT1), 1, v(vRR)); a.valu('v_xor_b32', v(vT1), s(sHP), v(vT1)); a.valu('v_lshl_or_b32', v(vT1), v(vT1), 1, v(vNH))
    a.valu('v_lshl_add_u32', v(vT1), v(vT1), 5, v(vC8)); a.valu('v_lshl_add_u32', v(aQ), v(vROW), 7, v(vT1))
    vXR = 27
    a.valu('v_lshrrev_b32', v(vT0), 5, v(vL)); a.valu('v_xor_b32', v(vT0), v(vT0), v(vI)); a.valu('v_lshlrev_b32', v(vT0), 4, v(vT0))
    a.valu('v_and_b32', v(vT1), 31, v(vL)); a.valu('v_lshl_add_u32', v(vT0), v(vT1), 10, v(vT0))
    a.salu('s_lshl_b32', s(t0), s(sPAR), 15); a.valu('v_add_u32', v(vXR), s(t0), v(vT0))
    a.salu('s_and_b32', s(t0), s(sC), 3); a.salu('s_mul_i32', s(t1), s(sW), 14)
    a.scmp('s_cmp_eq_u32', s(t0), 3); a.salu('s_cselect_b32', s(t2), 0, s(t0))
    for p in range(3):
        a.salu('s_add_u32', s(t3), s(t2), p); a.salu('s_sub_u32', s(KS+p), s(t3), 3); a.scmp('s_cmp_ge_u32', s(t3), 3)
        a.salu('s_cselect_b32', s(KS+p), s(KS+p), s(t3)); a.salu('s_add_u32', s(KS+p), s(KS+p), s(t1)); a.salu('s_add_u32', s(KS+3+p), s(KS+p), 7)
    for p in range(4):
        a.salu('s_add_u32', s(t3), s(t0), p); a.salu('s_and_b32', s(t3), s(t3), 3); a.salu('s_add_u32', s(t3), s(t3), s(t1))
        a.salu('s_add_u32', s(KS+6+p), s(t3), 3); a.salu('s_add_u32', s(KS+10+p), s(t3), 10)
    a.valu('v_lshrrev_b32', v(vT0), 5, v(vL)); a.valu('v_lshlrev_b32', v(vT0), 2, v(vT0)); a.valu('v_and_b32', v(vT1), 31, v(vL)); a.valu('v_sub_u32', v(vT0), v(vT1), v(vT0))
    a.valu('v_mov_b32', v(vT2), '0x3f80'); a.valu('v_mov_b32', v(vU0), '0x3f800000')
    for base, dst in ((0, vIP), (16, vIM)):
        for k, d0 in enumerate((0, 2, 8, 10)):
            a.valu('v_cmp_eq_u32', 'vcc', base + d0, v(vT0)); a.valu('v_cndmask_b32', v(dst+k), 0, v(vT2), 'vcc')
            a.valu('v_cmp_eq_u32', 'vcc', base + d0 + 1, v(vT0)); a.valu('v_cndmask_b32', v(dst+k), v(dst+k), v(vU0), 'vcc')
    a.valu('v_and_b32', v(vT0), 27, v(vT1)); a.valu('v_cmp_eq_u32', 'vcc', 16, v(vT0)); a.valu('v_cndmask_b32', v(vC1), 0, v(vU0), 'vcc')
    a.valu('v_cmp_ge_u32', s(sMSK, 2), 16, v(vT1))
    vwait(('x', 0))
    stamp()
    a.valu('v_readfirstlane_b32', s(sTAG), v(vEP))
    ln = Rec(a)
    ln.salu('s_add_u32', s(sTAG), s(sTAG), 1)
    S0 = 160; vM2 = 168; vR2 = 170
    PKN = "op_sel_hi:[1,0] neg_lo:[0,1] neg_hi:[0,1]"
    for gq in range(2):
        X = X0 + 32*gq
        if gq: ln.block(lambda: vwait(('x', 1)))
        for j in range(32):
            ln.valu('v_lshlrev_b32', v(F+2*j), 16, v(X+j)); ln.valu('v_and_b32', v(F+2*j+1), '0xffff0000', v(X+j))
        for k in range(4): ln.valu('v_pk_add_f32', v(S0+2*k, 2), v(F+2*k, 2), v(F+8+2*k, 2))
        for j in range(8, 32): ln.valu('v_pk_add_f32', v(S0+2*(j%4), 2), v(S0+2*(j%4), 2), v(F+2*j, 2))
        def fold():
            ln.valu('v_pk_add_f32', v(S0, 2), v(S0, 2), v(S0+2, 2)); ln.valu('v_pk_add_f32', v(S0+4, 2), v(S0+4, 2), v(S0+6, 2))
            ln.valu('v_pk_add_f32', v(S0, 2), v(S0, 2), v(S0+4, 2)); ln.valu('v_add_f32', v(S0), v(S0), v(S0+1))
            for md in ("quad_perm:[1,0,3,2]", "quad_perm:[2,3,0,1]", "row_half_mirror"):
                ln.valu('v_add_f32_dpp', v(S0), v(S0), v(S0), mod=md + " " + DPPM)
        fold()
        vMEAN = vM2 + 1
        ln.valu('v_mul_f32', v(vMEAN), '0x3b000000', v(S0))
        ln.valu('v_cvt_pk_bf16_f32', v(vM2), v(vMEAN), v(vMEAN)); ln.valu('v_lshlrev_b32', v(vM2), 16, v(vM2))
        for j in range(32): ln.valu('v_pk_add_f32', v(F+2*j, 2), v(F+2*j, 2), v(vM2, 2), mod=PKN)
        for k in range(4): ln.valu('v_pk_mul_f32', v(S0+2*k, 2), v(F+2*k, 2), v(F+2*k, 2))
        for j in range(4, 32): ln.valu('v_pk_fma_f32', v(S0+2*(j%4), 2), v(F+2*j, 2), v(F+2*j, 2), v(S0+2*(j%4), 2))
        fold()
        ln.valu('v_sub_f32', v(vMEAN), v(vMEAN), v(vM2))
        ln.valu('v_mul_f32', v(S0), '0x3b000000', v(S0))
        ln.valu('v_fma_f32', v(S0), '-' + v(vMEAN), v(vMEAN), v(S0)); ln.valu('v_max_f32', v(S0), 0, v(S0))
        ln.valu('v_cvt_pk_bf16_f32', v(S0), v(S0), v(S0)); ln.valu('v_lshlrev_b32', v(S0), 16, v(S0))
        ln.valu('v_add_f32', v(S0), '0x3727c5ac', v(S0))
        ln.valu('v_cvt_pk_bf16_f32', v(S0), v(S0), v(S0)); ln.valu('v_lshlrev_b32', v(S0), 16, v(S0))
        ln.valu('v_sqrt_f32', v(S0), v(S0))
        ln.valu('v_cvt_pk_bf16_f32', v(S0), v(S0), v(S0)); ln.valu('v_lshlrev_b32', v(S0), 16, v(S0))
        ln.valu('v_rcp_f32', v(vR2), v(S0))
        ln.valu('v_fma_f32', v(S0+1), '-' + v(S0), v(vR2), 1.0); ln.valu('v_fma_f32', v(vR2), v(S0+1), v(vR2), v(vR2))
        ln.valu('v_xor_b32', v(vT1), 128, v(vXW))
        for j in range(8):
            fs = [F + 8*j + i for i in range(8)]
            rbf_pairs(ln, fs, [X + 4*j + i for i in range(4)])
            for i in range(4): ln.valu('v_pk_mul_f32', v(fs[2*i], 2), v(fs[2*i], 2), v(vR2, 2), mod="op_sel_hi:[1,0]")
            for i in range(4): ln.valu('v_cvt_pk_bf16_f32', v(X+4*j+i), v(fs[2*i]), v(fs[2*i+1]))
            ln.ds_write('ds_write_b128', v(vXW if (j + gq) % 2 == 0 else vT1), v(X+4*j, 4), offset=(j >> 1) * 256 + gq * 8192)
    LNP = max(1, (len(ln.items) - 40) // max(1, len(early)))
    for n_, it in enumerate(ln.items):
        it()
        if n_ % LNP == LNP - 1 and early: early.pop(0)()
    for op in early: op()
    vXB = SP1
    for sl in range(2):
        for k7 in range(8): a.valu('v_xor_b32', v(vXB+sl*8+k7), (k7 << 5) | (sl << 15), v(vXR))
    XOV = 'noxov' not in EXP
    if XOV: vwait(('st', 0), lgkm=0)
    else: a.waitcnt(lgkm=0)
    a.barrier()
    stamp()
    xreads = []
    for k16 in range(32):
        for sl in range(2):
            xreads.append(lambda k16=k16, sl=sl: a.ds_read('ds_read_b128', ag((sl*32+k16)*4, 4), v(vXB + sl*8 + k16 % 8), offset=(k16 >> 3) * 256))
    nx = 16 if XOV else 64
    for op in xreads[:nx]: op()
    xreads = xreads[nx:]
    xf = lambda sl, k16: ag((sl*32+k16)*4, 4)
    curbase = {}
    WFb = lambda u: WF1 if u & 1 else WF0
    def read_ops(u):
        j = u >> 1; sb = REG(j) + (u & 1) * 16384; W0 = WFb(u)
        if j < 4: b, n, d1, d2 = aKV, 4, 4096, 1024
        elif j < 12: b, n, d1, d2 = aF, 4, 4096, 1024
        else: b, n, d1, d2 = aQ, 8, 2048, 512
        hi = (sb // 65536) * 65536; lo = sb - hi
        if hi:
            if curbase.get(0) != (b, hi):
                a.valu('v_add_u32', v(vCUR), hex(hi), v(b)); curbase[0] = (b, hi)
            cur = vCUR
        else: cur = b
        ops = []
        for i in range(n):
            ops.append(lambda i=i: a.ds_read('ds_read_b64_tr_b16', v(W0+4*i, 2), v(cur), offset=lo + i*d1))
            ops.append(lambda i=i: a.ds_read('ds_read_b64_tr_b16', v(W0+4*i+2, 2), v(cur), offset=lo + i*d1 + d2))
        return ops
    def mfma_ops(u):
        if u < 0: return []
        W0 = WFb(u); ops = []
        if u < 24:
            A0 = ACCB if u >= 16 else ACCA
            for i in range(4):
                for sl in range(2):
                    d = v(A0 + 16*sl, 16)
                    ops.append(lambda d=d, i=i, sl=sl: a.mfma(d, v(W0+4*i, 4), xf(sl, 4*(u & 7) + i), 0 if (u == 0 and i == 0) else d, op=M32))
        else:
            d = v(ACCQ, 16)
            for i in range(8):
                ops.append(lambda i=i: a.mfma(d, v(W0+4*i, 4), xf(0, 8*(u-24) + i), 0 if (u == 24 and i == 0) else d, op=M32))
        return ops
    def flag_store(setup, ts=t0, tv=(vT0, vT1)):
        setup()
        a.valu('v_mov_b32', v(tv[0]), 0); a.valu('v_mov_b32', v(tv[1]), s(sTAG))
        a.salu('s_mov_b64', 'exec', 1)
        a.bstore('buffer_store_dword', v(tv[1]), v(tv[0]), s(S_WS, 4), s(ts), flags=COH)
        a.salu('s_mov_b64', 'exec', -1)
    def tagcheck(regs_, label, reload, tv=(vT0, vT1), mask=None):
        a.salu('s_mov_b32', s(sSPIN), 0)
        a.label(f"L_{label}_chk")
        a.valu('v_xor_b32', v(tv[0]), s(sTAG), v(regs_[0]))
        for r_ in regs_[1:]:
            a.valu('v_xor_b32', v(tv[1]), s(sTAG), v(r_)); a.valu('v_or_b32', v(tv[0]), v(tv[0]), v(tv[1]))
        a.valu('v_cmp_ne_u32', 'vcc', 0, v(tv[0]))
        a.nop(1); a.scmp('s_cmp_eq_u64', 'vcc', 0); a.other(f"s_cbranch_scc1 L_{label}_ok")
        a.salu('s_add_u32', s(sSPIN), s(sSPIN), 1); a.scmp('s_cmp_ge_u32', s(sSPIN), 200000); a.other(f"s_cbranch_scc1 L_{label}_ok")
        a.other("s_sleep 2")
        reload(); a.waitcnt(vm=0)
        a.other(f"s_branch L_{label}_chk")
        a.label(f"L_{label}_ok")
    def head_s(dst):
        a.salu('s_lshl_b32', s(dst), s(sC), 2); a.salu('s_add_u32', s(dst), s(dst), s(sW))
    st = {'j': 0, 'done': -1, 'marks': {}}
    bg = Rec(a); b = bg
    def mark_j(name): bg.block(lambda: st['marks'].__setitem__(name, st['j']))
    def wait_j(name, d): bg.gate(lambda: st['j'] >= st['marks'][name] + d or st['j'] >= NST)
    def softmax8(r, P, E, EE, M, PH):
        rbf_pairs(r, [P+i for i in range(8)], [E+i for i in range(4)])
        for k, sg in enumerate(('', '-')):
            r.valu('v_max3_f32', v(M+k), sg+v(P), sg+v(P+1), sg+v(P+2)); r.valu('v_max3_f32', v(E+k), sg+v(P+3), sg+v(P+4), sg+v(P+5))
        for k, sg in enumerate(('', '-')):
            r.valu('v_max3_f32', v(M+k), v(M+k), sg+v(P+6), sg+v(P+7))
        for k in range(2): r.valu('v_max_f32', v(M+k), v(M+k), v(E+k))
        def xred(op, mid):
            r.valu('v_mov_b32', v(M+2), 0)
            r.valu('v_permlane32_swap_b32', v(M), v(M+1)); r.valu(op, v(M), v(M), v(M+1)); mid(M)
            r.valu('v_mov_b32', v(M+1), v(M)); r.valu('v_mov_b32', v(M+2), 0)
            r.valu('v_permlane32_swap_b32', v(M), v(M+1))
        xred('v_max_f32', lambda x: r.valu('v_mul_f32', v(x), hex(L2E), v(x)))
        for i in range(8): r.valu('v_fma_f32', v(E+i), v(P+i), v(vU1), '-'+v(M))
        for i in range(8): r.valu('v_fma_f32', v(EE+i), '-'+v(P+i), v(vU1), '-'+v(M+1))
        for i in range(8): r.valu('v_exp_f32', v(E+i), v(E+i))
        for i in range(8): r.valu('v_exp_f32', v(EE+i), v(EE+i))
        for k, e in enumerate((E, EE)):
            r.valu('v_pk_add_f32', v(P+4*k, 2), v(e, 2), v(e+2, 2)); r.valu('v_pk_add_f32', v(P+4*k+2, 2), v(e+4, 2), v(e+6, 2))
        for k in range(2): r.valu('v_pk_add_f32', v(P+4*k, 2), v(P+4*k, 2), v(P+4*k+2, 2))
        for k in range(2): r.valu('v_add_f32', v(M+k), v(P+4*k), v(P+4*k+1))
        xred('v_add_f32', lambda x: r.valu('v_rcp_f32', v(x), v(x)))
        r.valu('v_mov_b32', v(M+2), v(M+1))
        for i in range(4): r.valu('v_pk_mul_f32', v(E+2*i, 2), v(E+2*i, 2), v(M, 2), mod="op_sel_hi:[1,0]")
        for i in range(4): r.valu('v_pk_mul_f32', v(EE+2*i, 2), v(EE+2*i, 2), v(M+2, 2), mod="op_sel_hi:[1,0]")
        for i in range(4): r.valu('v_cvt_pk_bf16_f32', v(PH+i), v(E+2*i), v(E+2*i+1))
        for i in range(4): r.valu('v_cvt_pk_bf16_f32', v(PH+4+i), v(EE+2*i), v(EE+2*i+1))
    KBV = TMP
    PB = SP0; EB = SP0 + 16; KVA = SP1; PH = SP1 + 16; PT = SP1 + 24; VT = ACCQ; MM = ACCQ + 8; DB = SP0 + 16
    def kv_convert():
        for sl in range(2):
            for i in range(8): a.valu('v_cvt_pk_bf16_f32', v(KBV+8*sl+i), v(ACCA+16*sl+2*i), v(ACCA+16*sl+2*i+1))
        st['kvconv'] = True
    b.gate(lambda: st.get('kvconv'))
    b.valu('v_mov_b32', v(vU1), hex(L2E))
    for sl in range(2):
        for i in range(16): b.valu('v_mov_b32', v(DB+i), v(vC1))
        b.mfma(v(DB, 16), v(KBV+8*sl+4, 4), v(vIP, 4), v(DB, 16), op=M32)
        b.mfma(v(PB, 16), v(vWPO, 4), v(KBV+8*sl, 4), 0, op=M32)
        b.gate(lambda: True);
        for i in range(5): b.valu('v_mov_b32', v(MM+2), 0)
        for i in range(8): b.valu('v_cvt_pk_bf16_f32', v(VT+i), v(DB+2*i), v(DB+2*i+1))
        softmax8(b, PB, EB, EB+8, MM, PH)
        b.mfma(v(PB, 16), v(PH, 4), v(vIP, 4), 0, op=M32); b.mfma(v(PB, 16), v(PH+4, 4), v(vIM, 4), v(PB, 16), op=M32)
        for i in range(6): b.valu('v_mov_b32', v(MM+2), 0)
        for i in range(8): b.valu('v_cvt_pk_bf16_f32', v(PT+i), v(PB+2*i), v(PB+2*i+1))
        b.mfma(v(KVA, 16), v(PT, 4), v(VT, 4), v(KVA, 16) if sl else 0, op=M32); b.mfma(v(KVA, 16), v(PT+4, 4), v(VT+4, 4), v(KVA, 16), op=M32)
    G = SP0
    for i in range(6): b.valu('v_mov_b32', v(G+4*i+3), s(sTAG))
    b.valu('v_lshlrev_b32', v(vU0), 4, v(vL))
    for i in range(16): b.valu('v_mov_b32', v(G + 4*(i//3) + i%3), v(KVA+i))
    def kv_publish():
        head_s(u0); a.salu('s_lshl_b32', s(u0), s(u0), 5); a.salu('s_add_u32', s(u0), s(u0), s(sR)); a.salu('s_mul_i32', s(u0), s(u0), PSTR)
        a.salu('s_add_u32', s(u0), s(u0), hex(PART)); a.salu('s_add_u32', s(u1), s(u0), 4096)
        a.salu('s_mov_b64', 'exec', s(sMSK, 2))
        for i in range(6): a.bstore('buffer_store_dwordx4', v(G+4*i, 4), v(vU0), s(S_WS, 4), s(u0 if i < 4 else u1), offset=1024*(i % 4), flags=COH)
        a.salu('s_mov_b64', 'exec', -1)
        vm.add('pst', 6); st['pub'] = True; stamp()
    b.block(kv_publish); mark_j('pub')
    vWQ0, vWQ1 = vIP, vIM
    def wq_reads():
        a.salu('s_lshl_b32', s(u0), s(sPAR), 9); a.valu('v_subrev_u32', v(vU0), s(u0), v(vWA))
        for e, d in enumerate((vWQ0, vWQ1)):
            a.ds_read('ds_read_b64_tr_b16', v(d, 2), v(vU0), offset=512*e); a.ds_read('ds_read_b64_tr_b16', v(d+2, 2), v(vU0), offset=512*e + 256)
    b.block(wq_reads)
    RDr = lambda k: (SP0 + 4*k) if k < 8 else (SP1 + 4*(k-8))
    vRO = vTW
    def red_loads():
        for pg in range(2):
            for i in range(6):
                a.bload('buffer_load_dwordx4', v(RDr(pg*6+i), 4), v(vRO + pg + (0 if i < 4 else 2)), s(S_WS, 4), s(sRED), offset=1024*(i % 4), flags=COH)
    def red_issue():
        a.salu('s_mov_b32', s(sRED), -1)
        a.salu('s_lshr_b32', s(u0), s(sR), 3); a.salu('s_and_b32', s(u1), s(sR), 7)
        a.valu('v_and_b32', v(vU1), 3, v(vL))
        a.scmp('s_cmp_eq_u32', s(u0), s(sW)); a.other("s_cbranch_scc1 L_red_kv")
        a.salu('s_add_u32', s(sSL), s(sW), 1); a.salu('s_and_b32', s(sSL), s(sSL), 3); a.scmp('s_cmp_lg_u32', s(u0), s(sSL)); a.other("s_cbranch_scc1 L_nored1")
        a.scmp('s_cmp_ge_u32', s(u1), 2); a.other("s_cbranch_scc1 L_nored1")
        a.salu('s_lshl_b32', s(sSL), s(u1), 9); a.salu('s_add_u32', s(sSL), s(sSL), 256); a.valu('v_mov_b32', v(vU1), 0)
        a.other("s_branch L_red_go")
        a.label("L_red_kv")
        a.salu('s_lshr_b32', s(sSL), s(u1), 2); a.salu('s_lshl_b32', s(sSL), s(sSL), 9); a.salu('s_and_b32', s(u1), s(u1), 3); a.salu('s_lshl_b32', s(u1), s(u1), 6); a.salu('s_add_u32', s(sSL), s(sSL), s(u1))
        a.label("L_red_go")
        head_s(u0); a.salu('s_mul_i32', s(u0), s(u0), 32*PSTR); a.salu('s_add_u32', s(u0), s(u0), s(sSL)); a.salu('s_add_u32', s(sRED), s(u0), hex(PART))
        a.valu('v_lshrrev_b32', v(vU0), 2, v(vL)); a.valu('v_mul_u32_u24', v(vU0), PSTR, v(vU0))
        a.valu('v_lshl_add_u32', v(vRO), v(vU1), 4, v(vU0)); a.valu('v_add_u32', v(vRO+1), hex(16*PSTR), v(vRO))
        a.valu('v_add_u32', v(vRO+2), 4096, v(vRO)); a.valu('v_add_u32', v(vRO+3), 4096, v(vRO+1))
        a.valu('v_lshlrev_b32', v(vC1), 4, v(vU1))
        red_loads()
        a.label("L_nored1")
        vm.mark = len(vm.q)
    def red_finish():
        a.scmp('s_cmp_eq_u32', s(sRED), -1); a.other("s_cbranch_scc1 L_nored2")
        a.waitcnt(vm=min(63, len(vm.q) - vm.mark))
        tagcheck([RDr(k) + 3 for k in range(12)], "red", red_loads, tv=(vU0, vU1))
        V = [RDr(i//3) + i%3 for i in range(16)]; V2 = [RDr(6 + i//3) + i%3 for i in range(16)]
        for x, y in zip(V, V2): a.valu('v_add_f32', v(x), v(x), v(y))
        for sh in (8, 4):
            for x in V: a.valu('v_add_f32_dpp', v(x), v(x), v(x), mod=f"row_ror:{sh} " + DPPM)
        for sw in ('v_permlane16_swap_b32', 'v_permlane32_swap_b32'):
            for x, y in zip(V, V2): a.valu('v_mov_b32', v(y), v(x))
            for x, y in zip(V, V2): a.valu(sw, v(x), v(y))
            for x, y in zip(V, V2): a.valu('v_add_f32', v(x), v(x), v(y))
        GG = TMP
        for i in range(8): a.valu('v_cvt_pk_bf16_f32', v(GG + 4*(i//3) + i%3), v(V[2*i]), v(V[2*i+1]))
        for i in range(3): a.valu('v_mov_b32', v(GG+4*i+3), s(sTAG))
        head_s(u0); a.salu('s_mul_i32', s(u0), s(u0), RSTR); a.salu('s_add_u32', s(u0), s(u0), s(sSL)); a.salu('s_add_u32', s(u0), s(u0), hex(RED))
        a.salu('s_mov_b64', 'exec', 15)
        for i in range(3): a.bstore('buffer_store_dwordx4', v(GG+4*i, 4), v(vC1), s(S_WS, 4), s(u0), offset=1024*i, flags=COH)
        a.salu('s_mov_b64', 'exec', -1); a.nop(2)
        a.label("L_nored2")
        stamp()
    wait_j('pub', opt('rd1', 2)); b.block(red_issue); mark_j('red')
    vB1 = ACCQ
    def b1_loads(hf, dst):
        def f():
            a.salu('s_add_u32', s(t0), s(sK0), s(sW)); a.salu('s_lshl_b32', s(t0), s(t0), 6)
            a.valu('v_lshrrev_b32', v(vT0), 5, v(vL)); a.valu('v_lshlrev_b32', v(vT0), 3, v(vT0))
            for q in range(4): a.bload('buffer_load_dwordx2', v(dst+2*q, 2), v(vT0), s(S_B1, 4), s(t0), offset=256*hf + 16*q)
            vm.add(('b1', hf), 4)
        return f
    def b1_init(hf, src):
        A0 = ACCB if hf else ACCA
        vwait(('b1', hf))
        for sl in range(2):
            for i in range(8):
                d = A0 + 16*sl + 2*i
                a.valu('v_lshlrev_b32', v(d), 16, v(src+i)); a.valu('v_and_b32', v(d+1), '0xffff0000', v(src+i))
    def h_epilogue(r, hf, us):
        A0 = ACCB if hf else ACCA
        r.valu('v_lshlrev_b32', v(vU0), 4, v(vL)); r.salu('s_lshl_b32', s(us[0]), s(sPAR), 11); r.valu('v_add_u32', v(vU0), s(us[0]), v(vU0)); r.valu('v_xor_b32', v(vU1), 2048, v(vU0))
        r.salu('s_mul_i32', s(us[0]), s(sR), 72); r.salu('s_add_u32', s(us[0]), s(us[0]), s(sK0)); r.salu('s_add_u32', s(us[0]), s(us[0]), s(sW))
        if hf: r.salu('s_add_u32', s(us[0]), s(us[0]), 4)
        r.salu('s_lshl_b32', s(us[0]), s(us[0]), 12)
        if 'dups' not in EXP:
            def skipdup():
                a.salu('s_and_b32', s(us[1]), s(sC), 1); a.salu('s_lshl_b32', s(us[1]), s(us[1]), 2); a.salu('s_add_u32', s(us[1]), s(us[1]), s(sW))
                a.scmp('s_cmp_eq_u32', s(us[1]), 3 if hf else 4); a.salu('s_cselect_b32', s(us[0]), '0x4000000', s(us[0]))
            if r is a: skipdup()
            else: r.block(skipdup)
        for sl in range(2):
            for m in range(2):
                vals = [A0 + 16*sl + 8*m + k for k in range(8)]
                for x in vals: r.valu('v_max_f32', v(x), 0, v(x))
                for k in range(4): r.valu('v_pk_mul_f32', v(vals[2*k], 2), v(vals[2*k], 2), v(vals[2*k], 2))
                for k in range(4): r.valu('v_cvt_pk_bf16_f32', v(vals[0]+k), v(vals[2*k]), v(vals[2*k+1]))
                def stv(O=vals[0], sl=sl, m=m):
                    a.bstore('buffer_store_dwordx4', v(O, 4), v(vU1 if sl else vU0), s(S_WS, 4), s(us[0]), offset=m*1024, flags=COH); vm.add(('hst', hf))
                if r is a: stv()
                else: r.block(stv)
    def hf_off(base, ts=(t0, t1)):
        def f():
            a.salu('s_lshl_b32', s(ts[0]), s(sR), 7); a.salu('s_lshl_b32', s(ts[1]), s(sW), 5); a.salu('s_add_u32', s(ts[0]), s(ts[0]), s(ts[1])); a.salu('s_add_u32', s(ts[0]), s(ts[0]), hex(base))
        return f
    def hf_own(base, ts=(t0, t1)):
        def f():
            a.salu('s_lshl_b32', s(ts[0]), s(sR), 7); a.salu('s_lshl_b32', s(ts[1]), s(sC), 4); a.salu('s_add_u32', s(ts[0]), s(ts[0]), s(ts[1]))
            a.salu('s_lshl_b32', s(ts[1]), s(sW), 2); a.salu('s_add_u32', s(ts[0]), s(ts[0]), s(ts[1])); a.salu('s_add_u32', s(ts[0]), s(ts[0]), hex(base))
        return f
    def h_flag(hf):
        def f():
            vwait(('hst', hf)); flag_store(hf_own(F_HB if hf else F_HA, (u0, u1)), ts=u0, tv=(vU0, vU1)); vm.add('fl')
        return f
    b.gate(lambda: st['done'] >= 15)
    h_epilogue(b, 0, (u0, u1)); mark_j('ha')
    wait_j('red', opt('rd2', 2)); b.block(red_finish); mark_j('redf')
    b.block(lambda: st.__setitem__('spfree', True))
    wait_j('ha', 3); b.block(h_flag(0))
    b.gate(lambda: st['done'] >= 23)
    h_epilogue(b, 1, (u0, u1)); mark_j('hb')
    vL4, vL8, vKO, vPOLL = aKV, aF, vTW, vTW + 1
    def poll(base):
        def f():
            hf_off(base)(); a.bload('buffer_load_dword', v(vPOLL), v(vL8), s(S_WS, 4), s(t0), flags=COH)
        return f
    b.valu('v_lshlrev_b32', v(vL4), 4, v(vL)); b.valu('v_and_b32', v(vL8), 7, v(vL)); b.valu('v_lshlrev_b32', v(vL8), 2, v(vL8))
    b.valu('v_and_b32', v(vKO), 31, v(vL)); b.valu('v_min_u32', v(vKO), 16, v(vKO)); b.valu('v_and_b32', v(vU0), 32, v(vL)); b.valu('v_add_u32', v(vKO), v(vKO), v(vU0)); b.valu('v_lshlrev_b32', v(vKO), 4, v(vKO))
    def pha(): poll(F_HA)(); vm.add('ha')
    b.gate(lambda: st['done'] >= 25)
    b.block(pha)
    def bg_take(n):
        k = 0
        while k < n and bg.items:
            it = bg.items[0]
            if isinstance(it, tuple):
                if not it[1](): return
                bg.items.pop(0); continue
            bg.items.pop(0); it(); k += 1
    BG = opt('bg', 4); BG0 = opt('bg0', 8)
    def interleave(ms, fs, lead=2, per=2, rate=None):
        fs = list(fs)
        for _ in range(min(lead, len(fs))): fs.pop(0)()
        for m in ms:
            m()
            for _ in range(min(per, len(fs))): fs.pop(0)()
            bg_take(rate if rate is not None else (BG if st.get('pub') else BG0))
        for f in fs: f()
    vWA = vEP
    for j in range(NST):
        st['j'] = j
        if j or not XOV: vwait(('st', j), lgkm=0); a.barrier()
        if j >= 3: stamp('it')
        d = []
        if XOV:
            if j == 1: d = dma_ops(3) + dma_ops(4) + dma_ops(5)
            elif j == 2: d = dma_ops(6)
            elif j >= 4: d = dma_ops(j + 3)
        else:
            if j == 0: d = dma_ops(3) + dma_ops(4)
            elif j in (1, 2): d = dma_ops(j + 4)
            elif j >= 4: d = dma_ops(j + 3)
        if j == 2:
            a.valu('v_lshrrev_b32', v(vT0), 2, v(vL)); a.valu('v_and_b32', v(vT1), 4, v(vT0)); a.valu('v_and_b32', v(vT2), 7, v(vL))
            a.valu('v_xor_b32', v(vT1), v(vT1), v(vT2)); a.valu('v_lshlrev_b32', v(vT1), 4, v(vT1)); a.valu('v_lshrrev_b32', v(vT2), 3, v(vL))
            a.valu('v_lshl_add_u32', v(vT1), v(vT2), 10, v(vT1)); a.salu('s_lshl_b32', s(t0), s(sC), 7); a.valu('v_add_u32', v(vDW), s(t0), v(vT1))
            d = d + [b1_loads(0, SP1 + 24)]
        if j == 3:
            def wpl():
                a.salu('s_lshl_b32', s(t1), s(sPAR), 10); a.salu('s_add_u32', 'm0', s(t1), hex(MISC))
                a.salu('s_lshl_b32', s(t0), s(sC), 11); a.salu('s_add_u32', s(t0), s(t0), s(t1)); a.valu('v_lshlrev_b32', v(vT0), 4, v(vL))
                a.bload_lds(v(vT0), s(S_WP, 4), s(t0)); vm.add(('st', 4))
                a.valu('v_and_b32', v(vT1), 15, v(vL)); a.valu('v_lshrrev_b32', v(vT2), 2, v(vT1)); a.valu('v_lshrrev_b32', v(vT0), 5, v(vL)); a.valu('v_lshl_add_u32', v(vT2), v(vT0), 2, v(vT2))
                a.valu('v_and_b32', v(vT1), 3, v(vT1)); a.valu('v_lshlrev_b32', v(vT1), 3, v(vT1)); a.valu('v_lshl_add_u32', v(vT1), v(vT2), 5, v(vT1))
                a.salu('s_lshl_b32', s(t0), s(sW), 9); a.salu('s_add_u32', s(t0), s(t0), hex(MISC)); a.valu('v_add_u32', v(vWA), s(t0), v(vT1))
            d = d + [wpl]
        if j == opt('w2j', 4) and 'notouch' not in EXP:
            def tw(k, sd):
                def f(): a.bload('buffer_load_dword', 'v0', v(vTW+k), s(sd, 4), 0); vm.add('touch')
                return f
            d = d + [tw(0, S_WO), tw(1, S_W2)]
        if j == 7: d = [b1_loads(1, WPB)] + d
        nd = (len(d) + 1) // 2
        for h in range(2):
            u = 2*j + h
            if h: a.waitcnt(lgkm=0)
            r = read_ops(u)
            if u == 8:
                r = [lambda: a.ds_read('ds_read_b64_tr_b16', v(vWPO, 2), v(vWA)), lambda: a.ds_read('ds_read_b64_tr_b16', v(vWPO+2, 2), v(vWA), offset=256)] + r
            if u == 9:
                stamp(); kv_convert(); b1_init(0, SP1 + 24)
            if u == 17: b1_init(1, WPB)
            if u == 25: assert st.get('pub')
            dd = d[h*nd:(h+1)*nd]
            if 'dlate' in EXP: fs = r + dd
            else:
                fs = r[:4]; rr_ = r[4:]
                while rr_ or dd:
                    if dd: fs.append(dd.pop(0))
                    fs += rr_[:2]; rr_ = rr_[2:]
            if u == 0: interleave([], fs)
            elif u == 1 and XOV: interleave(mfma_ops(0), fs + xreads, per=7)
            else: interleave(mfma_ops(u - 1), fs, per=2 if u < 24 else 3)
            st['done'] = u - 1
    st['j'] = NST
    a.waitcnt(lgkm=0); a.barrier()
    interleave(mfma_ops(27), dma_ops(17), lead=0, per=1)
    st['done'] = 27
    bg_take(10000)
    assert not bg.items
    stamp()
    a.other('s_setprio 3')
    A2 = 32; WF2 = 96
    Z0 = 128
    QB2, PB2, EB2, MM2, PH2, KVD = Z0, Z0 + 8, Z0 + 24, Z0 + 40, Z0 + 44, Z0 + 60
    aW = 12; aH = 14; vA2 = vF
    for i in range(8): a.valu('v_cvt_pk_bf16_f32', v(QB2+i), v(ACCQ+2*i), v(ACCQ+2*i+1))
    a.salu('s_mul_i32', s(t2), s(sR), 294912); a.valu('v_add_u32', v(vA2), s(t2), v(vL4))
    afreg = lambda p, k: ag(((p % 16) * 4 + k) * 4, 4)
    def ldA_ops(p):
        ops = []
        for k in range(4):
            def op(k=k):
                if POS[p][0] == 'h': a.salu('s_lshl_b32', s(t1), s(KS+POS[p][1]), 12)
                else:
                    a.salu('s_lshl_b32', s(t1), s(sW), 14); a.salu('s_add_u32', s(t1), s(t1), (56 + POS[p][1]) * 4096)
                a.bload('buffer_load_dwordx4', afreg(p, k), v(vA2), s(S_WS, 4), s(t1), offset=k*1024, flags=COH); vm.add(('A', p))
            ops.append(op)
        return ops
    def kv_loads2():
        a.salu('s_lshl_b32', s(u0), s(sC), 2); a.salu('s_lshl_b32', s(u1), s(sHP), 1); a.salu('s_add_u32', s(u0), s(u0), s(u1)); a.salu('s_mul_i32', s(u0), s(u0), RSTR); a.salu('s_add_u32', s(u0), s(u0), hex(RED))
        a.salu('s_add_u32', s(u1), s(u0), RSTR)
        for e in range(2):
            for i in range(3): a.bload('buffer_load_dwordx4', v(KVD + 12*e + 4*i, 4), v(vKO), s(S_WS, 4), s(u1 if e else u0), offset=1024*i, flags=COH)
    vwait('ha'); tagcheck([vPOLL], "ha", poll(F_HA))
    for op in ldA_ops(0): op()
    a.valu('v_and_b32', v(vT1), 15, v(vL)); a.valu('v_lshrrev_b32', v(vT2), 2, v(vT1)); a.valu('v_lshrrev_b32', v(vT0), 5, v(vL)); a.valu('v_lshl_add_u32', v(vCUR), v(vT0), 2, v(vT2))
    a.valu('v_and_b32', v(vT2), 2, v(vT2)); a.valu('v_lshrrev_b32', v(vT0), 4, v(vL)); a.valu('v_and_b32', v(vT0), 1, v(vT0)); a.valu('v_or_b32', v(vT2), v(vT2), v(vT0))
    a.valu('v_and_b32', v(vT1), 3, v(vT1)); a.valu('v_lshlrev_b32', v(vT1), 3, v(vT1)); a.valu('v_lshl_add_u32', v(vT1), v(vT2), 5, v(vT1))
    a.valu('v_lshl_add_u32', v(vT1), v(vCUR), 7, v(vT1)); a.salu('s_lshl_b32', s(u0), s(sWK), 3); a.valu('v_add_u32', v(aW), s(u0), v(vT1))
    a.valu('v_xor_b32', v(aW+1), 64, v(aW))
    for nb in range(2): a.valu('v_add_u32', v(aH+nb), '0x10000', v(aW+nb))
    b.valu('v_mov_b32', v(vU1), hex(L2E))
    for e, wq in enumerate((vWQ0, vWQ1)):
        b.mfma(v(PB2, 16), v(wq, 4), v(QB2+4*e, 4), 0, op=M32)
        for i in range(8): b.valu('v_mov_b32', v(MM2+2), 0)
        softmax8(b, PB2, EB2, EB2+8, MM2, PH2 + 8*e)
    def kvchk():
        vwait('kvd'); tagcheck([KVD + 4*k + 3 for k in range(6)], "kvd", kv_loads2, tv=(vU0, vU1)); stamp()
    b.block(kvchk)
    KA = KVD + 24
    for e in range(2):
        for i in range(8): b.valu('v_mov_b32', v(KA + 8*e + i), v(KVD + 12*e + 4*(i//3) + i%3))
    b.salu('s_mul_i32', s(u0), s(sR), 72); b.salu('s_lshl_b32', s(u1), s(sC), 1); b.salu('s_add_u32', s(u0), s(u0), s(u1)); b.salu('s_add_u32', s(u0), s(u0), s(sHP))
    b.salu('s_add_u32', s(u0), s(u0), 56); b.salu('s_lshl_b32', s(u0), s(u0), 12); b.salu('s_lshl_b32', s(u1), s(sPAR), 11); b.salu('s_add_u32', s(u0), s(u0), s(u1))
    for e in range(2):
        D = PB2 if e == 0 else EB2
        b.mfma(v(D, 16), v(KA + 8*e, 4), v(PH2 + 8*e, 4), 0, op=M32); b.mfma(v(D, 16), v(KA + 8*e + 4, 4), v(PH2 + 8*e + 4, 4), v(D, 16), op=M32)
    for e in range(2):
        D = PB2 if e == 0 else EB2; Z = D + 8; T = QB2
        rbf_pairs(b, [D+i for i in range(8)], [T+i for i in range(4)])
        b.valu('v_cvt_pk_bf16_f32', v(Z), v(Z), v(Z)); b.valu('v_lshlrev_b32', v(Z), 16, v(Z))
        b.valu('v_add_f32', v(Z), '0x358637bd', v(Z))
        b.valu('v_cvt_pk_bf16_f32', v(Z), v(Z), v(Z)); b.valu('v_lshlrev_b32', v(Z), 16, v(Z))
        b.valu('v_rcp_f32', v(Z+2), v(Z))
        b.valu('v_fma_f32', v(Z+1), '-' + v(Z), v(Z+2), 1.0); b.valu('v_fma_f32', v(Z+2), v(Z+1), v(Z+2), v(Z+2))
        for i in range(4): b.valu('v_pk_mul_f32', v(D+2*i, 2), v(D+2*i, 2), v(Z+2, 2), mod="op_sel_hi:[1,0]")
        for i in range(4): b.valu('v_cvt_pk_bf16_f32', v(D+12+i), v(D+2*i), v(D+2*i+1))
        def ost(D=D, e=e):
            a.bstore('buffer_store_dwordx4', v(D+12, 4), v(vL4), s(S_WS, 4), s(u0), offset=e*1024, flags=COH); vm.add('ost')
        b.block(ost)
    b.block(lambda: stamp())
    def hbf():
        vwait(('hst', 1)); flag_store(hf_own(F_HB)); vm.add('fl')
    def kvl(): kv_loads2(); vm.add('kvd', 6)
    def phb(): poll(F_HB)(); vm.add('hb')
    def pof(): poll(F_OF)(); vm.add('of')
    hbf(); kvl()
    pre = ldA_ops(1) + ldA_ops(2) + ldA_ops(3)
    QE = opt('qe', 6)
    for x in pre:
        bg_take(QE); x()
    srd(a, S_B2, 20, 1024); srd(a, S_OUT, 22, 2097152)
    def reads2(p):
        sb = REG(14 + (p >> 1)) + (p & 1) * 4096; hi = sb >= 65536; lo = sb - (65536 if hi else 0)
        ops = []
        for m in range(2):
            for nb in range(2):
                r0 = WF2 + (p & 1) * 16 + (m*2+nb) * 4; bb = (aH if hi else aW) + nb
                ops.append(lambda r0=r0, bb=bb, m=m: a.ds_read('ds_read_b64_tr_b16', v(r0, 2), v(bb), offset=lo + m*2048))
                ops.append(lambda r0=r0, bb=bb, m=m: a.ds_read('ds_read_b64_tr_b16', v(r0+2, 2), v(bb), offset=lo + m*2048 + 1024))
        return ops
    def mfmas2(p):
        ops = []
        for m in range(2):
            for nb in range(2):
                for tg in range(2):
                    d = v(A2 + (nb*2+tg)*16, 16)
                    ops.append(lambda d=d, nb=nb, tg=tg, m=m: a.mfma(d, v(WF2 + (p & 1)*16 + (m*2+nb)*4, 4), afreg(p, tg*2+m), d if (p or m) else 0, op=M32))
        return ops
    vXX, vBB, vOO = 240, 248, vQ
    def xb():
        a.valu('v_lshrrev_b32', v(vT0), 3, v(vL)); a.valu('v_lshlrev_b32', v(vT1), 2, v(vL8))
        a.salu('s_lshl_b32', s(t0), s(sR), 6); a.salu('s_lshl_b32', s(t1), s(sW), 4); a.salu('s_add_u32', s(t0), s(t0), s(t1))
        a.valu('v_add_u32', v(vT0), s(t0), v(vT0)); a.valu('v_lshl_add_u32', v(vOO), v(vT0), 10, v(vT1))
        a.salu('s_lshl_b32', s(t3), s(sC), 7); a.salu('s_add_u32', s(t2), s(t3), 8192)
        a.bload('buffer_load_dwordx4', v(vXX, 4), v(vOO), s(S_X, 4), s(t3)); a.bload('buffer_load_dwordx4', v(vXX+4, 4), v(vOO), s(S_X, 4), s(t2))
        a.bload('buffer_load_dwordx4', v(vBB, 4), v(vT1), s(S_B2, 4), s(t3)); vm.add('xb', 3)
    DRP = opt('drp', 4); HBP = opt('hbp', 5); OFP = opt('ofp', 11)
    pend = ldA_ops(4) + ldA_ops(5)
    for p in range(19):
        stamp('p2')
        fill = []
        if p < 18:
            vwait(('st', 14 + (p >> 1)), lgkm=0)
            fill = reads2(p)
        else: a.waitcnt(lgkm=0)
        vs = []
        if p == DRP:
            bg_take(10000); phb()
        if p == HBP:
            vwait('hb'); flag_store(hf_own(F_OF)); vm.add('fl')
            a.other('s_setprio 0')
            tagcheck([vPOLL], "hb", poll(F_HB))
            for pp in range(6, 14): pend += ldA_ops(pp)
            for f in pend[:8]: f()
            pend = pend[8:]
        if p == OFP - 2: vs.append(pof)
        if p == OFP:
            vwait('of'); tagcheck([vPOLL], "of", poll(F_OF))
            for pp in range(14, 18): pend += ldA_ops(pp)
        if p == 8: vs.append(xb)
        n = opt('pace', 8)
        vs += pend[:n]; pend = pend[n:]
        if p >= 2 and p % 2 == 0 and 14 + (p >> 1) + 3 <= 22: vs += dma_ops(14 + (p >> 1) + 3)
        if p >= 1:
            for f in fill[:4]: f()
            fill = fill[4:]
            vwait(('A', p-1))
            interleave(mfmas2(p - 1), fill + vs, lead=0, per=3, rate=opt('bg2', 8))
        else:
            for f in fill + vs: f()
    assert not pend and not bg.items
    stamp(); stamp('p2')
    a.valu('v_lshrrev_b32', v(vT0), 5, v(vL)); a.valu('v_and_b32', v(vT1), 15, v(vL)); a.valu('v_xor_b32', v(vT0), v(vT0), v(vT1))
    a.valu('v_lshlrev_b32', v(vT0), 4, v(vT0)); a.valu('v_lshl_add_u32', v(vT0), v(vT1), 8, v(vT0))
    a.valu('v_and_b32', v(vT1), 16, v(vL)); a.valu('v_lshl_add_u32', v(vT0), v(vT1), 11, v(vT0)); a.salu('s_lshl_b32', s(t1), s(sWK), 3)
    WA = WF2
    a.valu('v_add_u32', v(WA), s(t1), v(vT0))
    for u in range(1, 8): a.valu('v_xor_b32', v(WA+u), u << 5, v(WA))
    for u in range(8): a.valu('v_add_u32', v(WA+8+u), '0x10000', v(WA+u))
    for tg in range(2):
        for nb in range(2):
            for q in range(4): a.ds_write('ds_write_b128', v(WA + 8*tg + nb*4 + q), v(A2 + (nb*2+tg)*16 + 4*q, 4))
    a.valu('v_lshrrev_b32', v(vT0), 3, v(vL)); a.valu('v_lshrrev_b32', v(vT1), 1, v(vL8)); a.valu('v_xor_b32', v(vT1), v(vT1), v(vT0)); a.valu('v_lshlrev_b32', v(vT1), 4, v(vT1))
    RA = 112
    a.valu('v_lshl_add_u32', v(RA), v(vT0), 8, v(vT1)); a.salu('s_lshl_b32', s(t1), s(sW), 15); a.valu('v_add_u32', v(RA), s(t1), v(RA))
    a.valu('v_xor_b32', v(RA+1), 16, v(RA)); a.valu('v_xor_b32', v(RA+2), 128, v(RA)); a.valu('v_xor_b32', v(RA+3), 144, v(RA))
    U = 208
    for gq in range(2):
        for i in range(4):
            a.valu('v_lshlrev_b32', v(U+8*gq+2*i), 16, v(vXX+4*gq+i)); a.valu('v_and_b32', v(U+8*gq+2*i+1), '0xffff0000', v(vXX+4*gq+i))
    for i in range(4):
        a.valu('v_lshlrev_b32', v(U+16+2*i), 16, v(vBB+i)); a.valu('v_and_b32', v(U+16+2*i+1), '0xffff0000', v(vBB+i))
    for gq in range(2):
        for i in range(4): a.valu('v_pk_add_f32', v(U+8*gq+2*i, 2), v(U+8*gq+2*i, 2), v(U+16+2*i, 2))
    a.waitcnt(lgkm=0); a.barrier()
    R = 128
    for gq in range(2):
        for p in range(4):
            for e in range(2): a.ds_read('ds_read_b128', v(R + ((gq*4+p)*2+e)*4, 4), v(RA + 2*gq + e), offset=p * 8192 + gq * 2048)
    for gq in range(2):
        for p in range(4):
            a.waitcnt(lgkm=14 - 2*(gq*4+p))
            for i in range(4): a.valu('v_pk_add_f32', v(U+8*gq+2*i, 2), v(U+8*gq+2*i, 2), v(R+(gq*4+p)*8+2*i, 2))
        for i in range(4): a.valu('v_cvt_pk_bf16_f32', v(U+24+4*gq+i), v(U+8*gq+2*i), v(U+8*gq+2*i+1))
        a.bstore('buffer_store_dwordx4', v(U+24+4*gq, 4), v(vOO), s(S_OUT, 4), s(t2 if gq else t3))
    a.salu('s_or_b32', s(t0), 's2', s(sW)); a.scmp('s_cmp_lg_u32', s(t0), 0); a.other("s_cbranch_scc1 L_noep")
    flag_store(lambda: a.salu('s_mov_b32', s(t0), hex(F_EPOCH)))
    a.label("L_noep")
    if STAMPS:
        d = S_WQ; vt = TMP
        a.other(f"s_memrealtime {s(S_W1,2)}")
        a.waitcnt(lgkm=0)
        a.salu('s_add_u32', s(d), s(S_WS), hex(STAMP_OFF)); a.salu('s_addc_u32', s(d+1), s(S_WS+1), 0)
        a.salu('s_mov_b32', s(d+2), '0x100000'); a.salu('s_mov_b32', s(d+3), '0x00020000')
        a.salu('s_lshl_b32', 's3', s(sW), 15); a.salu('s_lshl_b32', s(t0), 's2', 7); a.salu('s_add_u32', 's3', 's3', s(t0))
        a.valu('v_mov_b32', v(vt+2), 0); a.salu('s_mov_b64', 'exec', 1)
        for i, pr in enumerate(stamp_pairs[:nst[0]] + [S_W1]):
            a.valu('v_mov_b32', v(vt), s(pr)); a.valu('v_mov_b32', v(vt+1), s(pr+1))
            a.bstore('buffer_store_dwordx2', v(vt, 2), v(vt+2), s(d, 4), 's3', offset=i * 8); a.waitcnt(vm=0)
    a.label("L_end"); a.other("s_endpgm")
    a.label("L_code_end")
    sys.stderr.write(f"marks {st['marks']} nins {a.nins}\n")
    return a.text(), kernel_desc(kn, 512), 163840

WPB = 64 + 24
k, d, l = gen()
hdr = open("cdna_kernels/" + NAME + ".s.ref").read().split("; Override")[0]
out = hdr + f"; @launch grid=(256,1,1) block=(256,1,1) lds={l}\n"
out += f'.amdgcn_target "amdgcn-amd-amdhsa--gfx950"\n.text\n.set CODE_BYTES, L_code_end - {NAME}_kernel - 128\n' + k
out += '.section .rodata,"a"\n.p2align 6\n' + d
sys.stdout.write(out)
```
